```python
import torch

def _softmax(x, axis=-1):
    return torch.softmax(x, dim=axis)
def _gelu(x):
    return torch.nn.functional.gelu(x, approximate="tanh")
def _silu(x):
    return torch.nn.functional.silu(x)
def _sigmoid(x):
    return torch.sigmoid(x)
def _layernorm(x, axis=-1, eps=1e-5):
    m = x.mean(dim=axis, keepdim=True)
    v = x.var(dim=axis, keepdim=True, unbiased=False)
    return (x - m) / torch.sqrt(v + eps)
def _scatter_add(tgt, idx, src, axis=0):
    return tgt.clone().index_add_(axis, idx, src)
def _segment_sum(src, seg, n):
    out = torch.zeros((n,) + src.shape[1:], dtype=src.dtype)
    return out.index_add_(0, seg, src)
def _pad(x, pw):
    flat = tuple(v for pair in reversed(pw) for v in pair)
    return torch.nn.functional.pad(x, flat)

kernel_name = 'standalone__gqa_block_cached__near_ridge'

def setup_inputs():

    _w = (lambda a: (lambda t: t.to(torch.bfloat16) if t.is_floating_point() else t)(torch.as_tensor(a)))
    B, Sq, D = 8, 64, 576
    Hq, Hkv, Sk, Dh = 32, 16, 512, 128
    assert Hq % Hkv == 0, (Hq, Hkv)
    return {
        "x": _w((lambda *s: torch.randn(*s, dtype=torch.bfloat16) * 0.8)(B, Sq, D)),
        "k_cache": _w((lambda *s: torch.randn(*s, dtype=torch.bfloat16) * 0.8)(B, Hkv, Sk, Dh)),
        "v_cache": _w((lambda *s: torch.randn(*s, dtype=torch.bfloat16) * 0.05)(B, Hkv, Sk, Dh)),
        "wq": _w((lambda *s: torch.randn(*s, dtype=torch.bfloat16) * 0.8)(D, Hq * Dh) * (D ** -0.5)),
        "wo": _w((lambda *s: torch.randn(*s, dtype=torch.bfloat16) * 0.05)(Hq * Dh, D) * ((Hq * Dh) ** -0.5)),
    }

def reference(x, k_cache, v_cache, wq, wo):
    B, Sq, D = x.shape
    Hq, Dh = 32, 128
    Hkv = k_cache.shape[1]
    rep = Hq // Hkv
    q = (lambda x, *d: x.permute(*d))((x @ wq).reshape(B, Sq, Hq, Dh), 0, 2, 1, 3)
    k = (lambda x, n, axis: torch.repeat_interleave(x, n, dim=axis))(k_cache, rep, axis=1)
    v = (lambda x, n, axis: torch.repeat_interleave(x, n, dim=axis))(v_cache, rep, axis=1)
    scores = torch.einsum("bhqd,bhkd->bhqk", q, k) * (Dh ** -0.5)
    p = _softmax(scores, axis=-1)
    o = torch.einsum("bhqk,bhkd->bhqd", p, v)
    return (lambda x, *d: x.permute(*d))(o, 0, 2, 1, 3).reshape(B, Sq, Hq * Dh) @ wo
```

```python
import re

class Asm:
    def __init__(self):
        self.lines = []
    def I(self, s):
        self.lines.append("  " + s)
    def L(self, name):
        self.lines.append(name + ":")
    def C(self, s):
        self.lines.append("  ; " + s)
    def raw(self, s):
        self.lines.append(s)
    def nop(self, n):
        while n > 0:
            k = min(n, 16)
            self.I("s_nop %d" % (k - 1))
            n -= k
    def text(self):
        return "\n".join(self.lines) + "\n"

def vr(base, n=1):
    return "v%d" % base if n == 1 else "v[%d:%d]" % (base, base + n - 1)
def sr(base, n=1):
    return "s%d" % base if n == 1 else "s[%d:%d]" % (base, base + n - 1)

class LdsQ:
    def __init__(self, a):
        self.a = a; self.issued = 0; self.done = 0
    def issue(self):
        t = self.issued; self.issued += 1
        assert self.issued - self.done <= 15 or True
        return t
    def outstanding(self):
        return self.issued - self.done
    def wait(self, ticket):
        if ticket < self.done: return
        n = self.issued - ticket - 1
        assert n <= 15, "lgkm overflow %d" % n
        self.a.I("s_waitcnt lgkmcnt(%d)" % n)
        self.done = ticket + 1
    def drain(self):
        self.a.I("s_waitcnt lgkmcnt(0)")
        self.done = self.issued

_reg_re = re.compile(r"\b([vsa])(\d+)\b|\b([vsa])\[(\d+):(\d+)\]")
def regs_of(op):
    out = []
    for m in _reg_re.finditer(op):
        if m.group(1):
            out.append((m.group(1), int(m.group(2))))
        else:
            for i in range(int(m.group(4)), int(m.group(5)) + 1):
                out.append((m.group(3), i))
    if re.search(r"\bvcc\b", op): out.append(("c", 0))
    if re.search(r"\bm0\b", op): out.append(("m", 0))
    if re.search(r"\bexec\b", op): out.append(("e", 0))
    return out

TRANS = ("v_exp_f32", "v_log_f32", "v_rcp_f32", "v_rsq_f32", "v_sqrt_f32", "v_sin_f32", "v_cos_f32")

def split_ops(rest):
    ops = []; depth = 0; cur = ""
    for ch in rest:
        if ch == "[": depth += 1
        if ch == "]": depth -= 1
        if ch == "," and depth == 0:
            ops.append(cur.strip()); cur = ""
        else:
            cur += ch
    if cur.strip(): ops.append(cur.strip())
    return ops

def parse(line):
    s = line.split(";")[0].strip()
    if not s or s.endswith(":") or s.startswith("."): return None
    parts = s.split(None, 1)
    mn = parts[0]; rest = parts[1] if len(parts) > 1 else ""
    ops = split_ops(rest)
    return mn, ops

def check_hazards(lines, name=""):
    probs = []
    pos = 0
    mfma_w = {}
    mfma_c = {}
    valu_w = {}
    trans_w = {}
    sgpr_valu_w = {}
    m0_w = -100
    store_data = {}
    exec_valu_w = -100
    for ln, line in enumerate(lines):
        p = parse(line)
        if p is None: continue
        mn, ops = p
        if mn == "s_nop":
            pos += int(ops[0]) + 1; continue
        def P(msg): probs.append("%s line %d: %s :: %s" % (name, ln, msg, line.strip()))
        is_mfma = mn.startswith("v_mfma")
        is_valu = mn.startswith("v_") and not is_mfma
        is_ds = mn.startswith("ds_")
        is_vmem = mn.startswith("buffer_") or mn.startswith("global_")
        reads = []; writes = []
        if is_mfma:
            writes = regs_of(ops[0]); A = regs_of(ops[1]); B = regs_of(ops[2]); Cc = regs_of(ops[3])
            passes = 8 if "32x32" in mn else 4
            for r in A + B + Cc:
                if r[0] == "v" and r in valu_w and pos - valu_w[r] - 1 < 2: P("VALU->MFMA %s" % (r,))
            for r in A + B:
                if r in mfma_w:
                    q, ps, _ = mfma_w[r]
                    need = 12 if ps == 8 else 8
                    if pos - q - 1 < need: P("MFMA D->A/B %s gap %d" % (r, pos - q - 1))
            for r in Cc:
                if r in mfma_w:
                    q, ps, dt = mfma_w[r]
                    if dt == tuple(Cc) and ps == passes: continue
                    need = 10 if ps == 8 else 6
                    if pos - q - 1 < need: P("MFMA D->C overlap %s" % (r,))
            for r in writes:
                if r in mfma_w and r not in Cc:
                    q, ps, dt = mfma_w[r]
                    need = 10 if ps == 8 else 6
                    if dt != tuple(writes) and pos - q - 1 < need: P("MFMA WAW %s" % (r,))
            for r in writes: mfma_w[r] = (pos, passes, tuple(writes))
            for r in Cc: mfma_c[r] = (pos, passes)
            pos += 1; continue
        if is_valu:
            base = mn.replace("_e32", "").replace("_e64", "")
            if base.startswith("v_cmp"):
                writes = regs_of(ops[0]); reads = sum((regs_of(o) for o in ops[1:]), [])
                if base.startswith("v_cmpx"): exec_valu_w = pos
            elif base in ("v_readfirstlane_b32", "v_readlane_b32"):
                writes = regs_of(ops[0]); reads = sum((regs_of(o) for o in ops[1:]), [])
                for r in reads:
                    if r[0] == "v" and r in valu_w and pos - valu_w[r] - 1 < 1: P("VALU->readlane %s" % (r,))
            elif base.startswith("v_permlane"):
                writes = regs_of(ops[0]) + regs_of(ops[1]); reads = list(writes)
                for r in reads:
                    if r in valu_w and pos - valu_w[r] - 1 < 2: P("VALU->permlane %s" % (r,))
            elif base.startswith("v_add_co") or base.startswith("v_addc_co") or base.startswith("v_sub_co"):
                writes = regs_of(ops[0]) + regs_of(ops[1]); reads = sum((regs_of(o) for o in ops[2:]), [])
            else:
                writes = regs_of(ops[0]); reads = sum((regs_of(o) for o in ops[1:]), [])
                if base.startswith("v_fmac") or base.startswith("v_pk_fmac") or base.startswith("v_accvgpr"): reads += writes
                if base.startswith("v_cndmask") and len(ops) == 3: reads.append(("c", 0))
            if "dpp" in mn or "row_" in line or "quad_perm" in line:
                for r in reads:
                    if r in valu_w and pos - valu_w[r] - 1 < 2: P("VALU->DPP %s" % (r,))
            for r in reads + writes:
                if r in mfma_w:
                    q, ps, _ = mfma_w[r]
                    need = 12 if ps == 8 else 8
                    if pos - q - 1 < need: P("MFMA D->VALU %s gap %d" % (r, pos - q - 1))
            for r in writes:
                if r in mfma_c:
                    q, ps = mfma_c[r]
                    need = 7 if ps == 8 else 3
                    if pos - q - 1 < need: P("MFMA srcC WAR %s" % (r,))
                if r in store_data and pos - store_data[r] - 1 < 2: P("store data WAR %s" % (r,))
            if base not in TRANS:
                for r in reads:
                    if r in trans_w and pos - trans_w[r] - 1 < 1: P("trans->VALU %s" % (r,))
            for r in reads:
                if r[0] in ("s", "c") and r in sgpr_valu_w and pos - sgpr_valu_w[r] - 1 < 2: P("VALU sgpr->VALU %s" % (r,))
            for r in writes:
                if r[0] == "v":
                    valu_w[r] = pos
                    if base in TRANS: trans_w[r] = pos
                    else: trans_w.pop(r, None)
                else:
                    sgpr_valu_w[r] = pos
            pos += 1; continue
        if is_ds or is_vmem:
            allr = sum((regs_of(o) for o in ops), [])
            for r in allr:
                if r in mfma_w:
                    q, ps, _ = mfma_w[r]
                    need = 12 if ps == 8 else 8
                    if pos - q - 1 < need: P("MFMA D->mem %s gap %d" % (r, pos - q - 1))
                if is_vmem and r[0] in ("s", "c") and r in sgpr_valu_w and pos - sgpr_valu_w[r] - 1 < 5: P("VALU sgpr->VMEM %s" % (r,))
            if is_vmem and " lds" in line and pos - m0_w - 1 < 1: P("M0->LDS DMA")
            if is_vmem and ("store_dwordx4" in mn or "store_dwordx3" in mn):
                for r in regs_of(ops[0]): store_data[r] = pos
            if (is_ds and mn.startswith("ds_read")) or (is_vmem and "load" in mn and " lds" not in line):
                for r in regs_of(ops[0]):
                    valu_w.pop(r, None); trans_w.pop(r, None)
                    if r in mfma_c:
                        q, ps = mfma_c[r]
            pos += 1; continue
        if mn.startswith("s_"):
            if ops and re.match(r"^m0$", ops[0]) and mn not in ("s_cmp_eq_u32",): m0_w = pos
            pos += 1; continue
        pos += 1
    return probs
```

```python
import sys, struct
from asmlib import *

KNAME = "standalone__gqa_block_cached__near_ridge_kernel"
OPT = dict(dump=0, stamps=0)
for a in sys.argv[2:]:
    k, v = a.split("="); OPT[k] = int(v)

WS_EPOCH = 0x0
WS_FLAG1 = 0x1000
WS_FLAG2 = 0x10000
WS_IMG   = 0x100000
WS_SLAB  = 0x800000
SLAB_BYTES = 36864
WS_DUMP  = 0x2000000
WS_STAMP = 0x1800000
WS_SIZE  = 0x10000000

SX, SW, SK, SV, SWO, SWS, SOUT = 8, 12, 16, 20, 24, 28, 32
KARG = 36
sKS, sJQ, sB, sH, sWAVE, sLW, sTAG, sID = 52, 53, 54, 55, 56, 57, 58, 59
sT0, sT1, sT2, sT3 = 60, 61, 62, 63
sC = 64
sLW8K = 66
sA0, sA1, sA2, sA3 = 67, 68, 69, 70
sSTAMP = 72

SLOT = lambda i: i * 16384
LDS_BYTES = 163840

def f32bits(x): return struct.unpack("<I", struct.pack("<f", x))[0]
SCALE = (128 ** -0.5) * 1.4426950408889634

a = Asm()

tiles = {}
for i in range(9):
    tiles["W%d" % i] = (SLOT(i % 4), "W%d" % (i - 4) if i >= 4 else None, "A")
    tiles["X%d" % i] = (SLOT(4) + (i % 4) * 8192, "X%d" % (i - 4) if i >= 4 else None, "A")
kslot = [6, 7, 8, 9, 1, 2, 3, 0]
kpred = [None, None, None, None, "W5", "W6", "W7", "W8"]
for t in range(8): tiles["K%d" % t] = (SLOT(kslot[t]), kpred[t], "B")
QS_ADDR = SLOT(4) + 8192
vslot = [4, 5, 6, 7, 8, 9, 1, 3]
vpred = [["QS", "X8"], ["QS", "X7"], "K0", "K1", "K2", "K3", "K4", "K6"]
for t in range(8): tiles["V%d" % t] = (SLOT(vslot[t]), vpred[t], "B")
MX_ADDR = SLOT(2)
woslot = [0, 2, 4, 5, 6, 0, 2, 4]
wopred = ["K7", "MXS", "V0", "V1", "V2", "WO0", "WO1", "WO2"]
for u in range(8): tiles["WO%d" % u] = (SLOT(woslot[u]), wopred[u], "B")
tiles["WOR"] = (SLOT(7), "V3", "B")
OR_ADDR = SLOT(8)
oislot = [1, 8, 9, 3]
IMG_ADDR = [SLOT(s) for s in oislot]
tiles["OI1"] = (IMG_ADDR[1], "ORS", "A")
tiles["OI2"] = (IMG_ADDR[2], "ORS", "A")
tiles["OI3"] = (IMG_ADDR[3], "V7", "A")

barriers = []
need_at = {}
last_ticket = {}
free_after = {}

hdr = []
hdr.append("; @launch grid=(256,1,1) block=(512,1,1) lds=%d" % LDS_BYTES)
hdr.append('.amdgcn_target "amdgcn-amd-amdhsa--gfx950"')
hdr.append(".text")
hdr.append(".globl %s" % KNAME)
hdr.append(".p2align 8")
hdr.append(".type %s,@function" % KNAME)
hdr.append("%s:" % KNAME)

def stamp(idx):
    if OPT["stamps"]:
        a.I("s_memrealtime %s" % sr(sSTAMP + 2 * idx, 2))
        a.I("s_waitcnt lgkmcnt(0)")

a.I("s_cmp_ge_u32 s2, 256")
a.I("s_cbranch_scc1 L_END")
a.I("s_load_dwordx16 %s, s[0:1], 0" % sr(KARG, 16))
if OPT["stamps"]:
    a.I("s_memrealtime %s" % sr(sSTAMP, 2))
a.I("v_lshrrev_b32 v2, 6, v0")
a.I("v_and_b32 v1, 63, v0")
a.I("s_mov_b32 %s, s2" % sr(sID))
a.I("v_readfirstlane_b32 %s, v2" % sr(sWAVE))
a.I("s_and_b32 %s, s2, 7" % sr(sKS))
a.I("s_lshr_b32 %s, s2, 3" % sr(sJQ))
a.I("s_and_b32 %s, %s, 3" % (sr(sJQ), sr(sJQ)))
a.I("s_lshr_b32 %s, s2, 5" % sr(sB))
a.I("s_lshl_b32 %s, %s, 2" % (sr(sH), sr(sKS)))
a.I("s_add_u32 %s, %s, %s" % (sr(sH), sr(sH), sr(sJQ)))
a.I("s_and_b32 %s, %s, 1" % (sr(sLW), sr(sWAVE)))
a.I("s_lshl_b32 %s, %s, 13" % (sr(sLW8K), sr(sLW)))
a.I("s_mov_b32 %s, 0x%x" % (sr(sC), f32bits(SCALE)))
a.I("s_mov_b32 %s, 0x%x" % (sr(sC + 1), f32bits(SCALE)))
a.I("v_lshrrev_b32 v2, 4, v1")
a.I("v_and_b32 v3, 15, v1")
a.I("s_waitcnt lgkmcnt(0)")
pX, pK, pV, pWQ, pWO, pOUT, pDBG, pWS = [KARG + 2 * i for i in range(8)]
def mk_srd(d, p, off_sgpr, size):
    if off_sgpr is None:
        a.I("s_mov_b32 %s, %s" % (sr(d), sr(p)))
        a.I("s_mov_b32 %s, %s" % (sr(d + 1), sr(p + 1)))
    else:
        a.I("s_add_u32 %s, %s, %s" % (sr(d), sr(p), sr(off_sgpr)))
        a.I("s_addc_u32 %s, %s, 0" % (sr(d + 1), sr(p + 1)))
    a.I("s_mov_b32 %s, 0x%x" % (sr(d + 2), size))
    a.I("s_mov_b32 %s, 0x00020000" % sr(d + 3))
a.I("s_mul_i32 %s, %s, 73728" % (sr(sT0), sr(sB)))
mk_srd(SX, pX, sT0, 73728)
a.I("s_lshl_b32 %s, %s, 8" % (sr(sT0), sr(sH)))
mk_srd(SW, pWQ, sT0, 575 * 8192 + 256)
a.I("s_lshr_b32 %s, %s, 1" % (sr(sT0), sr(sH)))
a.I("s_lshl_b32 %s, %s, 4" % (sr(sT1), sr(sB)))
a.I("s_add_u32 %s, %s, %s" % (sr(sT0), sr(sT0), sr(sT1)))
a.I("s_lshl_b32 %s, %s, 17" % (sr(sT0), sr(sT0)))
mk_srd(SK, pK, sT0, 131072)
mk_srd(SV, pV, sT0, 131072)
a.I("s_mul_i32 %s, %s, 589824" % (sr(sT0), sr(sKS)))
mk_srd(SWO, pWO, sT0, 589824)
mk_srd(SWS, pWS, None, WS_SIZE)
mk_srd(SOUT, pOUT, None, 589824)
a.I("s_cmp_lt_u32 %s, 4" % sr(sWAVE))
a.I("s_cbranch_scc1 L_COMPUTE")
a.I("s_cmp_lt_u32 %s, 6" % sr(sWAVE))
a.I("s_cbranch_scc1 L_LOADA")
a.I("s_branch L_LOADB")
entry_lines = a.lines
a = Asm()

q = LdsQ(a)
def barrier(name, need=()):
    for t, tk in last_ticket.items():
        if t not in free_after and tk < q.done:
            free_after[t] = name
    barriers.append(name)
    need_at[name] = list(need)
    a.I("s_barrier")

def ds_read(kind, dst, n, addr, off, tile):
    assert 0 <= off < 65536, off
    a.I("%s %s, %s offset:%d" % (kind, vr(dst, n), vr(addr), off))
    t = q.issue()
    if tile:
        last_ticket[tile] = t
        free_after.pop(tile, None)
    return t
def rd128(dst, addr, off, tile): return ds_read("ds_read_b128", dst, 4, addr, off, tile)
def rdtr(dst, addr, off, tile): return ds_read("ds_read_b64_tr_b16", dst, 2, addr, off, tile)
def ds_write(kind, addr, src, n, off):
    assert 0 <= off < 65536
    a.I("%s %s, %s offset:%d" % (kind, vr(addr), vr(src, n), off))
    return q.issue()
def mfma32(d, A, B, c0=False):
    a.I("v_mfma_f32_32x32x16_bf16 %s, %s, %s, %s" % (vr(d, 16), vr(A, 4), vr(B, 4), "0" if c0 else vr(d, 16)))
def mfma16(d, A, B, c0=False):
    a.I("v_mfma_f32_16x16x32_bf16 %s, %s, %s, %s" % (vr(d, 4), vr(A, 4), vr(B, 4), "0" if c0 else vr(d, 4)))

vLANE = 1
aX = [2, 3, 4, 5]; aW = [6, 7]; aK = 8; aV = [11, 12, 13, 14]; aWO = [15, 16]; aOI = 17; aRA = 18; aRB = 19
tA, tB, tC, tD, tE, tF = 20, 21, 22, 23, 24, 25
vM, vL = 28, 29
vP0, vP1 = 30, 31
RING = 32
QF = 64
KR = 96
OACC = 64
S = 128

a.L("L_COMPUTE")
sQH = sA0
a.I("s_lshr_b32 %s, %s, 1" % (sr(sQH), sr(sWAVE)))
a.I("s_lshl_b32 %s, %s, 7" % (sr(sT0), sr(sB)))
a.I("v_mov_b32 v26, %s" % sr(sT0))
a.I("buffer_load_dword v27, v26, %s, 0 offen sc1" % sr(SWS, 4))
hf, r_, c4, mh, l31 = 32, 33, 34, 35, 36
L4, L15 = 43, 44
a.I("v_mov_b32 v43, v2")
a.I("v_mov_b32 v44, v3")
a.I("v_lshrrev_b32 %s, 5, v1" % vr(hf))
a.I("v_lshrrev_b32 %s, 2, v3" % vr(r_))
a.I("v_and_b32 %s, 3, v1" % vr(c4))
a.I("v_and_b32 %s, 1, v2" % vr(mh))
a.I("v_and_b32 %s, 31, v1" % vr(l31))
T1, T2, T3 = 37, 38, 39
a.I("s_lshl_b32 %s, %s, 12" % (sr(sT0), sr(sQH)))
a.I("s_add_u32 %s, %s, %d" % (sr(sT0), sr(sT0), SLOT(4)))
a.I("v_lshlrev_b32 %s, 7, %s" % (vr(T1), vr(l31)))
a.I("v_add_u32 %s, %s, %s" % (vr(T1), sr(sT0), vr(T1)))
a.I("v_bfe_u32 %s, %s, 1, 3" % (vr(T2), vr(l31)))
a.I("v_xor_b32 %s, %s, %s" % (vr(T2), vr(hf), vr(T2)))
a.I("v_lshlrev_b32 %s, 4, %s" % (vr(T2), vr(T2)))
a.I("v_add_u32 %s, %s, %s" % (vr(aX[0]), vr(T1), vr(T2)))
for s in range(1, 4):
    a.I("v_xor_b32 %s, %d, %s" % (vr(aX[s]), 32 * s, vr(aX[0])))
swp = 40
a.I("v_and_b32 %s, 1, %s" % (vr(T1), vr(c4)))
a.I("v_lshlrev_b32 %s, 1, %s" % (vr(T1), vr(T1)))
a.I("v_lshrrev_b32 %s, 1, %s" % (vr(T2), vr(c4)))
a.I("v_or_b32 %s, %s, %s" % (vr(swp), vr(T1), vr(T2)))
def tr_addr(dst, rowlane, cq, blk_sgpr_or_const, extra_sgpr=None):
    a.I("v_xor_b32 %s, %s, %s" % (vr(T1), blk_sgpr_or_const, vr(r_)))
    a.I("v_lshlrev_b32 %s, 6, %s" % (vr(T1), vr(T1)))
    a.I("v_lshrrev_b32 %s, 1, %s" % (vr(T2), vr(cq)))
    a.I("v_lshl_add_u32 %s, %s, 1, %s" % (vr(T2), vr(mh), vr(T2)))
    a.I("v_lshl_add_u32 %s, %s, 4, %s" % (vr(T1), vr(T2), vr(T1)))
    a.I("v_and_b32 %s, 1, %s" % (vr(T2), vr(cq)))
    a.I("v_lshl_add_u32 %s, %s, 3, %s" % (vr(T1), vr(T2), vr(T1)))
    a.I("v_lshl_add_u32 %s, %s, 8, %s" % (vr(dst), vr(rowlane), vr(T1)))
    if extra_sgpr is not None:
        a.I("v_add_u32 %s, %s, %s" % (vr(dst), sr(extra_sgpr), vr(dst)))
rowA = 41
a.I("v_lshl_add_u32 %s, %s, 3, %s" % (vr(rowA), vr(hf), vr(r_)))
for i in range(2):
    a.I("s_lshl_b32 %s, %s, 1" % (sr(sT0), sr(sLW)))
    a.I("s_add_u32 %s, %s, %d" % (sr(sT0), sr(sT0), i))
    tr_addr(aW[i], rowA, swp, sr(sT0))
a.I("v_xor_b32 %s, %s, v44" % (vr(T1), vr(hf)))
a.I("s_lshl_b32 %s, %s, 3" % (sr(sT0), sr(sLW)))
a.I("v_xor_b32 %s, %s, %s" % (vr(T1), sr(sT0), vr(T1)))
a.I("v_lshlrev_b32 %s, 4, %s" % (vr(T1), vr(T1)))
a.I("v_lshl_add_u32 %s, %s, 8, %s" % (vr(aK), vr(l31), vr(T1)))
a.I("v_add_u32 %s, %s, %s" % (vr(aK), sr(sLW8K), vr(aK)))
rowB = 42
a.I("v_lshl_add_u32 %s, %s, 2, %s" % (vr(rowB), vr(hf), vr(r_)))
for i in range(4):
    a.I("s_lshl_b32 %s, %s, 1" % (sr(sT0), sr(sLW)))
    a.I("s_xor_b32 %s, %s, %d" % (sr(sT0), sr(sT0), i))
    tr_addr(aV[i], rowB, c4, sr(sT0), sLW8K)
for i in range(2):
    a.I("s_lshl_b32 %s, %s, 1" % (sr(sT0), sr(sLW)))
    a.I("s_add_u32 %s, %s, %d" % (sr(sT0), sr(sT0), i))
    tr_addr(aWO[i], rowB, c4, sr(sT0))
a.I("s_lshl_b32 %s, %s, 13" % (sr(sT0), sr(sQH)))
a.I("v_lshlrev_b32 %s, 4, v1" % vr(T1))
a.I("v_add_u32 %s, %s, %s" % (vr(aOI), sr(sT0), vr(T1)))
a.I("v_lshrrev_b32 %s, 1, v43" % vr(T1))
a.I("v_lshlrev_b32 %s, 4, %s" % (vr(T1), vr(T1)))
a.I("v_lshl_add_u32 %s, %s, 2, %s" % (vr(T1), vr(mh), vr(T1)))
a.I("v_add_u32 %s, %s, %s" % (vr(T1), vr(T1), vr(r_)))
a.I("v_lshlrev_b32 %s, 5, %s" % (vr(T1), vr(T1)))
a.I("v_lshl_add_u32 %s, %s, 3, %s" % (vr(T1), vr(c4), vr(T1)))
a.I("v_add_u32 %s, %d, %s" % (vr(aRA), tiles["WOR"][0], vr(T1)))
a.I("v_lshrrev_b32 %s, 1, v43" % vr(T1))
a.I("v_lshlrev_b32 %s, 10, %s" % (vr(T1), vr(T1)))
a.I("v_lshl_add_u32 %s, %s, 5, v44" % (vr(T2), vr(mh)))
a.I("v_lshl_add_u32 %s, %s, 4, %s" % (vr(T1), vr(T2), vr(T1)))
a.I("s_lshl_b32 %s, %s, 13" % (sr(sT0), sr(sQH)))
a.I("s_lshl_b32 %s, %s, 8" % (sr(sT1), sr(sLW)))
a.I("s_add_u32 %s, %s, %s" % (sr(sT0), sr(sT0), sr(sT1)))
a.I("v_add_u32 %s, %s, %s" % (vr(aRB), sr(sT0), vr(T1)))
a.I("s_waitcnt vmcnt(0)")
a.I("v_readfirstlane_b32 %s, v27" % sr(sTAG))
a.I("s_add_u32 %s, %s, 1" % (sr(sTAG), sr(sTAG)))
stamp(1)

def dump_regs(base, n, slot_index):
    a.I("s_lshl_b32 %s, %s, 2" % (sr(sT0), sr(sID)))
    a.I("s_add_u32 %s, %s, %s" % (sr(sT0), sr(sT0), sr(sWAVE)))
    a.I("s_mul_i32 %s, %s, %d" % (sr(sT0), sr(sT0), n * 256))
    a.I("s_add_u32 %s, %s, 0x%x" % (sr(sT0), sr(sT0), WS_DUMP + slot_index * 0x2000000))
    a.I("v_lshlrev_b32 v26, 4, v1")
    for j in range(0, n, 4):
        a.I("buffer_store_dwordx4 %s, v26, %s, %s offen" % (vr(base + j, 4), sr(SWS, 4), sr(sT0)))
        a.I("s_add_u32 %s, %s, 1024" % (sr(sT0), sr(sT0)))
    a.I("s_waitcnt vmcnt(0)")

a.C("==== phase A ====")
QACC = 128
BR = KR
NG = 36
tick = {}
def a_reads(n, part):
    i, s = divmod(n, 4)
    slot = i % 4
    if part == 0:
        if s == 0: barrier("A%d" % i, ["X%d" % i, "W%d" % i])
        t = rd128(BR + 4 * (n % 4), aX[s], slot * 8192, "X%d" % i)
        base = RING + 8 * (n % 4)
        o = SLOT(slot) + 4096 * s
        rdtr(base, aW[0], o, "W%d" % i)
        t = rdtr(base + 2, aW[0], o + 1024, "W%d" % i)
        tick[(n, 0)] = t
    else:
        base = RING + 8 * (n % 4) + 4
        o = SLOT(slot) + 4096 * s
        rdtr(base, aW[1], o, "W%d" % i)
        t = rdtr(base + 2, aW[1], o + 1024, "W%d" % i)
        tick[(n, 1)] = t
DG = 3
for n in range(DG):
    a_reads(n, 0); a_reads(n, 1)
for n in range(NG):
    q.wait(tick[(n, 0)])
    mfma32(QACC, RING + 8 * (n % 4), BR + 4 * (n % 4), c0=(n == 0))
    if n + DG < NG: a_reads(n + DG, 0)
    q.wait(tick[(n, 1)])
    mfma32(QACC + 16, RING + 8 * (n % 4) + 4, BR + 4 * (n % 4), c0=(n == 0))
    if n + DG < NG: a_reads(n + DG, 1)
stamp(2)
a.nop(12)
if OPT["dump"] == 1:
    dump_regs(QACC, 32, 0)
for t in range(2):
    for j in range(8):
        a.I("v_cvt_pk_bf16_f32 %s, %s, %s" % (vr(QF + 8 * t + j), vr(QACC + 16 * t + 2 * j), vr(QACC + 16 * t + 2 * j + 1)))
a.I("s_lshl_b32 %s, %s, 12" % (sr(sT0), sr(sWAVE)))
a.I("s_add_u32 %s, %s, %d" % (sr(sT0), sr(sT0), QS_ADDR))
a.I("v_lshlrev_b32 %s, 4, v1" % vr(tA))
a.I("v_add_u32 %s, %s, %s" % (vr(tA), sr(sT0), vr(tA)))
a.I("v_xor_b32 %s, 0x1000, %s" % (vr(tB), vr(tA)))
assert QS_ADDR % 8192 == 0
for sgm in range(4):
    ds_write("ds_write_b128", tA, QF + 4 * sgm, 4, sgm * 1024)
q.drain()
barrier("QX")
qt = []
for sgm in range(4):
    qt.append(rd128(QF + 16 + 4 * sgm, tB, sgm * 1024, "QS"))

a.C("==== phase K ====")
a.I("v_mov_b32 %s, 0xff800000" % vr(vM))
D = 7
tick = {}
def max_ops(t):
    return ["v_max3_f32 %s, %s, %s, %s" % (vr(vM), vr(S + 16 * t + 2 * j), vr(S + 16 * t + 2 * j + 1), vr(vM)) for j in range(8)]
pend = []
for n in range(64 + D):
    m = n - D
    if m >= 0:
        t, s = divmod(m, 8)
        if m == 0:
            pass
        if s >= 4 or True:
            if s == 4 and t == 0: pass
        if m == 4: q.wait(qt[3])
        q.wait(tick[m])
        mfma32(S + 16 * t, KR + 4 * (m % 8), QF + 4 * s, c0=(s == 0))
        if s == 2 and t >= 1: pend = max_ops(t - 1)
        if s >= 3 and pend:
            a.I(pend.pop(0)); a.I(pend.pop(0))
    if n < 64:
        t, s = divmod(n, 8)
        if s == 0:
            barrier("K%d" % t, ["K%d" % t])
            a.I("v_add_u32 %s, 0x%x, %s" % (vr(tC), tiles["K%d" % t][0], vr(aK)))
        tmp = tD if n % 2 == 0 else tE
        if s == 0:
            tick[n] = rd128(KR + 4 * (n % 8), tC, 0, "K%d" % t)
        else:
            a.I("v_xor_b32 %s, %d, %s" % (vr(tmp), 32 * s, vr(tC)))
            tick[n] = rd128(KR + 4 * (n % 8), tmp, 0, "K%d" % t)
assert not pend
stamp(3)
a.nop(12)
for s_ in max_ops(7): a.I(s_)
if OPT["dump"] == 2:
    dump_regs(S, 128, 0)

a.C("==== softmax ====")
a.I("v_mov_b32 %s, %s" % (vr(tA), vr(vM)))
a.nop(2)
a.I("v_permlane32_swap_b32 %s, %s" % (vr(tA), vr(vM)))
a.I("v_max_f32 %s, %s, %s" % (vr(vM), vr(tA), vr(vM)))
a.I("s_lshl_b32 %s, %s, 8" % (sr(sT0), sr(sWAVE)))
a.I("s_add_u32 %s, %s, %d" % (sr(sT0), sr(sT0), MX_ADDR))
a.I("v_lshlrev_b32 %s, 2, v1" % vr(tA))
a.I("v_add_u32 %s, %s, %s" % (vr(tA), sr(sT0), vr(tA)))
a.I("v_xor_b32 %s, 0x100, %s" % (vr(tB), vr(tA)))
ds_write("ds_write_b32", tA, vM, 1, 0)
q.drain()
barrier("MX")
tk = ds_read("ds_read_b32", tC, 1, tB, 0, "MXS")
q.wait(tk)
a.I("v_max_f32 %s, %s, %s" % (vr(vM), vr(tC), vr(vM)))
a.I("v_mul_f32 %s, %s, %s" % (vr(vP0), sr(sC), vr(vM)))
a.I("v_sub_f32 %s, 0, %s" % (vr(vP0), vr(vP0)))
a.I("v_mov_b32 %s, %s" % (vr(vP1), vr(vP0)))
LS = 26
a.I("v_mov_b32 v26, 0")
a.I("v_mov_b32 v27, 0")
for t in range(8):
    b0 = S + 16 * t
    for j in range(8):
        a.I("v_pk_fma_f32 %s, %s, %s, %s" % (vr(b0 + 2 * j, 2), vr(b0 + 2 * j, 2), sr(sC, 2), vr(vP0, 2)))
    for j in range(16):
        a.I("v_exp_f32 %s, %s" % (vr(b0 + j), vr(b0 + j)))
    a.I("s_nop 0")
    for j in range(8):
        a.I("v_pk_add_f32 %s, %s, %s" % (vr(LS, 2), vr(LS, 2), vr(b0 + 2 * j, 2)))
    for j in range(8):
        a.I("v_cvt_pk_bf16_f32 %s, %s, %s" % (vr(b0 + j), vr(b0 + 2 * j), vr(b0 + 2 * j + 1)))
a.I("v_add_f32 %s, v26, v27" % vr(vL))
a.I("v_mov_b32 %s, %s" % (vr(tC), vr(vL)))
a.nop(2)
a.I("v_permlane32_swap_b32 %s, %s" % (vr(tC), vr(vL)))
a.I("v_add_f32 %s, %s, %s" % (vr(vL), vr(tC), vr(vL)))
ds_write("ds_write_b32", tA, vL, 1, 1024)
q.drain()
stamp(4)

a.C("==== phase V ====")
tick = {}
ltk = None
tV = [tC, tD, tE, tF]
for n in range(64 + D):
    m = n - D
    if m >= 0:
        t, rem = divmod(m, 8); u, ai = divmod(rem, 4)
        q.wait(tick[m])
        mfma32(OACC + 16 * ai, RING + 4 * (m % 8), S + 16 * t + 4 * u, c0=(m < 4))
    if n < 64:
        t, rem = divmod(n, 8); u, ai = divmod(rem, 4)
        if rem == 0:
            barrier("V%d" % t, ["V%d" % t])
            if t == 0:
                ltk = ds_read("ds_read_b32", vP0, 1, tB, 1024, "MXS")
            for i in range(4):
                a.I("v_add_u32 %s, 0x%x, %s" % (vr(tV[i]), tiles["V%d" % t][0], vr(aV[i])))
        o = 4096 * u
        rdtr(RING + 4 * (n % 8), tV[ai], o, "V%d" % t)
        tick[n] = rdtr(RING + 4 * (n % 8) + 2, tV[ai], o + 2048, "V%d" % t)
stamp(5)
a.I("v_add_f32 %s, %s, %s" % (vr(vL), vr(vP0), vr(vL)))
a.I("v_rcp_f32 %s, %s" % (vr(vL), vr(vL)))
a.C("==== O reduce ====")
a.I("s_lshl_b32 %s, %s, 13" % (sr(sT0), sr(sWAVE)))
a.I("s_add_u32 %s, %s, %d" % (sr(sT0), sr(sT0), OR_ADDR))
a.I("v_lshlrev_b32 %s, 4, v1" % vr(tA))
a.I("v_add_u32 %s, %s, %s" % (vr(tA), sr(sT0), vr(tA)))
a.I("v_xor_b32 %s, 0x2000, %s" % (vr(tB), vr(tA)))
assert OR_ADDR % 16384 == 0
a.nop(8)
for j in range(8):
    ds_write("ds_write_b128", tA, OACC + 32 + 4 * j, 4, j * 1024)
q.drain()
barrier("OR")
tk = []
for j in range(8):
    tk.append(rd128(RING + 4 * j, tB, j * 1024, "ORS"))
a.I("v_mov_b32 %s, %s" % (vr(vP0), vr(vL)))
a.I("v_mov_b32 %s, %s" % (vr(vP1), vr(vL)))
for j in range(8):
    q.wait(tk[j])
    for h2 in range(2):
        d = OACC + 4 * j + 2 * h2
        a.I("v_pk_add_f32 %s, %s, %s" % (vr(d, 2), vr(d, 2), vr(RING + 4 * j + 2 * h2, 2)))
        a.I("v_pk_mul_f32 %s, %s, %s" % (vr(d, 2), vr(d, 2), vr(vP0, 2)))
if OPT["dump"] == 3:
    dump_regs(OACC, 32, 0)
PK = 96
for j in range(16):
    a.I("v_cvt_pk_bf16_f32 %s, %s, %s" % (vr(PK + j), vr(OACC + 2 * j), vr(OACC + 2 * j + 1)))
a.I("s_lshl_b32 %s, %s, 12" % (sr(sT0), sr(sLW)))
a.I("v_add_u32 %s, %s, %s" % (vr(tA), sr(sT0), vr(aOI)))
a.I("s_lshl_b32 %s, %s, 14" % (sr(sT1), sr(sID)))
a.I("s_add_u32 %s, %s, 0x%x" % (sr(sT1), sr(sT1), WS_IMG))
for j in range(4):
    a.I("buffer_store_dwordx4 %s, %s, %s, %s offen offset:%d sc0 sc1" % (vr(PK + 4 * j, 4), vr(tA), sr(SWS, 4), sr(sT1), j * 1024))
a.I("v_add_u32 %s, 0x%x, %s" % (vr(tB), IMG_ADDR[0], vr(tA)))
for j in range(4):
    last_ticket_dummy = ds_write("ds_write_b128", tB, PK + 4 * j, 4, j * 1024)
q.drain()
stamp(6)

a.C("==== phase P ====")
PACC = 128; RACC = 160; RA = [164, 168]; RB = [172, 176]
tick = {}
tWO = [tC, tD]; tOI = tE; tRB = tF
def flag1():
    a.I("s_waitcnt vmcnt(0)")
    a.I("s_lshl_b32 %s, %s, 7" % (sr(sT0), sr(sID)))
    a.I("s_lshl_b32 %s, %s, 2" % (sr(sT1), sr(sWAVE)))
    a.I("s_add_u32 %s, %s, %s" % (sr(sT0), sr(sT0), sr(sT1)))
    a.I("s_add_u32 %s, %s, 0x%x" % (sr(sT0), sr(sT0), WS_FLAG1))
    a.I("v_mov_b32 %s, %s" % (vr(tA), sr(sTAG)))
    a.I("v_mov_b32 %s, 0" % vr(tB))
    a.I("s_mov_b64 exec, 1")
    a.I("buffer_store_dword %s, %s, %s, %s offen sc0 sc1" % (vr(tA), vr(tB), sr(SWS, 4), sr(sT0)))
    a.I("s_mov_b64 exec, -1")
def p_reads(n, part):
    step, kk = divmod(n, 4)
    hn, hh = divmod(step, 2)
    blk = 2 * hh + (kk >> 1); u = kk & 1
    wt = "WO%d" % step
    it = "OI%d" % hn
    if part == 0:
        if kk == 0:
            if step == 2: flag1()
            need = [wt]
            if step == 0: need.append("WOR")
            if hh == 0 and hn > 0: need.append(it)
            barrier("P%d" % step, need)
            for i in range(2):
                a.I("v_add_u32 %s, 0x%x, %s" % (vr(tWO[i]), tiles[wt][0], vr(aWO[i])))
            if hh == 0:
                a.I("v_add_u32 %s, 0x%x, %s" % (vr(tOI), IMG_ADDR[hn], vr(aOI)))
                a.I("v_add_u32 %s, 0x%x, %s" % (vr(tRB), IMG_ADDR[hn], vr(aRB)))
        rd128(BR + 4 * (n % 4), tOI, (blk * 2 + u) * 1024, it)
        base = RING + 8 * (n % 4)
        o = 8192 * (kk >> 1) + 4096 * u
        rdtr(base, tWO[0], o, wt)
        tick[(n, 0)] = rdtr(base + 2, tWO[0], o + 2048, wt)
    else:
        base = RING + 8 * (n % 4) + 4
        o = 8192 * (kk >> 1) + 4096 * u
        rdtr(base, tWO[1], o, wt)
        tick[(n, 1)] = rdtr(base + 2, tWO[1], o + 2048, wt)
        if u == 0:
            ri = (n // 2) % 2
            o = hn * 4096 + blk * 1024
            rdtr(RA[ri], aRA, o, "WOR")
            rdtr(RA[ri] + 2, aRA, o + 256, "WOR")
            tick[(n, 2)] = rd128(RB[ri], tRB, blk * 2048, it)
DG = 2
NG = 32
for n in range(DG):
    p_reads(n, 0); p_reads(n, 1)
for n in range(NG):
    q.wait(tick[(n, 0)])
    mfma32(PACC, RING + 8 * (n % 4), BR + 4 * (n % 4), c0=(n == 0))
    if n + DG < NG: p_reads(n + DG, 0)
    q.wait(tick[(n, 1)])
    mfma32(PACC + 16, RING + 8 * (n % 4) + 4, BR + 4 * (n % 4), c0=(n == 0))
    if n % 2 == 0:
        q.wait(tick[(n, 2)])
        ri = (n // 2) % 2
        mfma16(RACC, RA[ri], RB[ri], c0=(n == 0))
    if n + DG < NG: p_reads(n + DG, 1)
stamp(7)
a.nop(12)
a.I("s_mul_i32 %s, %s, %d" % (sr(sT1), sr(sID), SLAB_BYTES))
a.I("s_mul_i32 %s, %s, 9216" % (sr(sT0), sr(sWAVE)))
a.I("s_add_u32 %s, %s, %s" % (sr(sT1), sr(sT1), sr(sT0)))
a.I("s_add_u32 %s, %s, 0x%x" % (sr(sT1), sr(sT1), WS_SLAB))
a.I("v_lshlrev_b32 %s, 4, v1" % vr(tA))
for j in range(9):
    if j == 4 or j == 8:
        a.I("s_add_u32 %s, %s, 4096" % (sr(sT1), sr(sT1)))
    a.I("buffer_store_dwordx4 %s, %s, %s, %s offen offset:%d sc0 sc1" % (vr(PACC + 4 * j, 4), vr(tA), sr(SWS, 4), sr(sT1), (j % 4) * 1024))
a.I("s_waitcnt vmcnt(0)")
a.I("s_lshl_b32 %s, %s, 7" % (sr(sT0), sr(sID)))
a.I("s_lshl_b32 %s, %s, 2" % (sr(sT1), sr(sWAVE)))
a.I("s_add_u32 %s, %s, %s" % (sr(sT0), sr(sT0), sr(sT1)))
a.I("s_add_u32 %s, %s, 0x%x" % (sr(sT0), sr(sT0), WS_FLAG2))
a.I("v_mov_b32 %s, %s" % (vr(tA), sr(sTAG)))
a.I("v_mov_b32 %s, 0" % vr(tB))
a.I("s_mov_b64 exec, 1")
a.I("buffer_store_dword %s, %s, %s, %s offen sc0 sc1" % (vr(tA), vr(tB), sr(SWS, 4), sr(sT0)))
a.I("s_mov_b64 exec, -1")
stamp(8)
barrier("E2")
a.I("s_branch L_FINAL")
compute_lines = a.lines

def bidx(name): return barriers.index(name)
def ready_after(tile):
    pred = tiles[tile][1]
    if pred is None: return None
    preds = pred if isinstance(pred, list) else [pred]
    idx = max(bidx(free_after[p]) for p in preds)
    return barriers[idx]

def poll(a, voff, nlanes, label, errcode):
    a.I("s_mov_b32 %s, 0" % sr(sT3))
    a.I("s_mov_b64 exec, 0x%x" % ((1 << nlanes) - 1))
    a.L(label)
    a.I("buffer_load_dword v31, %s, %s, 0 offen sc1" % (vr(voff), sr(SWS, 4)))
    a.I("s_waitcnt vmcnt(0)")
    a.I("v_cmp_ne_u32 vcc, %s, v31" % sr(sTAG))
    a.I("s_add_u32 %s, %s, 1" % (sr(sT3), sr(sT3)))
    a.I("s_cmp_gt_u32 %s, 40000" % sr(sT3))
    a.I("s_cbranch_scc1 %s_X" % label)
    a.I("s_cbranch_vccz %s_X" % label)
    a.I("s_sleep 1")
    a.I("s_branch %s" % label)
    a.L(label + "_X")
    a.I("s_mov_b64 exec, -1")

def gen_loader(kind):
    global a
    a = Asm()
    a.L("L_LOAD" + kind)
    l4, l15 = 2, 3
    T1, T2 = 20, 21
    order = []
    if kind == "A":
        vX = [4, 5, 6, 7]; vW = [8, 9, 10, 11]; vLn = 12
        for i in range(4):
            a.I("v_lshrrev_b32 %s, 3, v1" % vr(T1))
            a.I("v_mul_u32_u24 %s, 1152, %s" % (vr(T1), vr(T1)))
            a.I("v_and_b32 %s, 7, v1" % vr(T2))
            a.I("v_xor_b32 %s, %s, v2" % (vr(T2), vr(T2)))
            if i & 1: a.I("v_xor_b32 %s, 4, %s" % (vr(T2), vr(T2)))
            a.I("v_lshl_add_u32 %s, %s, 4, %s" % (vr(T1), vr(T2), vr(T1)))
            a.I("v_add_u32 %s, %d, %s" % (vr(vX[i]), i * 8192, vr(T1)))
        a.I("v_lshlrev_b32 %s, 2, v2" % vr(T2))
        a.I("v_xor_b32 %s, %s, v3" % (vr(T2), vr(T2)))
        a.I("v_lshlrev_b32 %s, 4, %s" % (vr(T2), vr(T2)))
        a.I("v_lshl_add_u32 %s, v2, 13, %s" % (vr(T1), vr(T2)))
        for i in range(4):
            a.I("v_add_u32 %s, %d, %s" % (vr(vW[i]), i * 31744, vr(T1)))
        a.I("v_lshlrev_b32 %s, 4, v1" % vr(vLn))
        a.I("s_lshl_b32 %s, %s, 7" % (sr(sT0), sr(sB)))
        a.I("v_mov_b32 v26, %s" % sr(sT0))
        for i in range(9): order += ["X%d" % i, "W%d" % i]
        order += ["OI1", "OI2", "OI3"]
        a.I("s_mul_i32 %s, %s, 36864" % (sr(sA0), sr(sLW)))
        a.I("s_lshl_b32 %s, %s, 18" % (sr(sA1), sr(sLW)))
    else:
        vK = [4, 5, 6, 7]; vV = 8; vWO = [9, 10, 11, 12]; vWOR = [13, 14, 15, 16]
        for i in range(4):
            a.I("v_add_u32 %s, %d, v2" % (vr(T1), 4 * i))
            a.I("v_xor_b32 %s, %s, v3" % (vr(T1), vr(T1)))
            a.I("v_lshlrev_b32 %s, 4, %s" % (vr(T1), vr(T1)))
            a.I("v_lshl_add_u32 %s, v2, 8, %s" % (vr(vK[i]), vr(T1)))
        a.I("v_lshlrev_b32 %s, 2, v2" % vr(T2))
        a.I("v_xor_b32 %s, %s, v3" % (vr(T2), vr(T2)))
        a.I("v_lshlrev_b32 %s, 4, %s" % (vr(T2), vr(T2)))
        a.I("v_lshl_add_u32 %s, v2, 8, %s" % (vr(vV), vr(T2)))
        a.I("v_mul_u32_u24 %s, 1152, v2" % vr(T1))
        a.I("v_add_u32 %s, %s, %s" % (vr(T1), vr(T1), vr(T2)))
        for i in range(4):
            a.I("v_add_u32 %s, %d, %s" % (vr(vWO[i]), i * 3584, vr(T1)))
        a.I("v_lshrrev_b32 %s, 1, v1" % vr(T1))
        a.I("v_mul_u32_u24 %s, 1152, %s" % (vr(T1), vr(T1)))
        a.I("v_and_b32 %s, 1, v1" % vr(T2))
        a.I("v_lshl_add_u32 %s, %s, 4, %s" % (vr(T1), vr(T2), vr(T1)))
        for i in range(4):
            a.I("v_add_u32 %s, %d, %s" % (vr(vWOR[i]), i * 35840, vr(T1)))
        for t in range(8): order.append("K%d" % t)
        for t in range(8): order.append("V%d" % t)
        order += ["WO0", "WO1", "WO2", "WO3", "WO4", "WOR", "WO5", "WO6", "WO7"]
        a.I("s_and_b32 %s, %s, 1" % (sr(sT0), sr(sJQ)))
        a.I("s_lshl_b32 %s, %s, 16" % (sr(sT0), sr(sT0)))
        a.I("s_add_u32 %s, %s, %s" % (sr(sA0), sr(sT0), sr(sLW8K)))
        a.I("s_xor_b32 %s, %s, 0x10000" % (sr(sA1), sr(sA0)))
        a.I("s_mul_i32 %s, %s, 36864" % (sr(sA2), sr(sLW)))
        a.I("s_lshl_b32 %s, %s, 8" % (sr(sT0), sr(sJQ)))
        a.I("s_add_u32 %s, %s, %s" % (sr(sA2), sr(sA2), sr(sT0)))
    issued = []
    def dma(voff, srd, soff, imm, flags=""):
        a.I("buffer_load_dwordx4 %s, %s, %s offen offset:%d%s lds" % (vr(voff), sr(srd, 4), sr(soff), imm, flags))
    def issue(tile):
        addr = tiles[tile][0]
        a.C("issue " + tile)
        if tile[0] == "X":
            i = int(tile[1:])
            a.I("s_add_u32 %s, %s, %d" % (sr(sT0), sr(sB), i))
            a.I("s_cmp_ge_u32 %s, 9" % sr(sT0))
            a.I("s_cselect_b32 %s, 9, 0" % sr(sT1))
            a.I("s_sub_u32 %s, %s, %s" % (sr(sA2), sr(sT0), sr(sT1)))
            a.I("s_lshl_b32 %s, %s, 7" % (sr(sT0), sr(sA2)))
            a.I("s_add_u32 %s, %s, %s" % (sr(sT0), sr(sT0), sr(sA0)))
            a.I("s_lshr_b32 %s, %s, 1" % (sr(sT1), sr(sLW8K)))
            a.I("s_add_u32 m0, %s, %d" % (sr(sT1), addr))
            a.I("s_nop 0")
            for j in range(4):
                dma(vX[j], SX, sT0, j * 1024); issued.append(tile)
        elif tile[0:2] == "WO" and tile != "WOR":
            u = int(tile[2:])
            a.I("s_lshl_b32 %s, %s, 1" % (sr(sT0), sr(sJQ)))
            a.I("s_add_u32 %s, %s, %d" % (sr(sT0), sr(sT0), u))
            a.I("s_and_b32 %s, %s, 7" % (sr(sT0), sr(sT0)))
            a.I("s_mul_i32 %s, %s, 73728" % (sr(sT0), sr(sT0)))
            a.I("s_add_u32 %s, %s, %s" % (sr(sT0), sr(sT0), sr(sA2)))
            for g in range(2):
                a.I("s_add_u32 m0, %s, %d" % (sr(sLW8K), addr + g * 4096))
                if g == 1: a.I("s_add_u32 %s, %s, %d" % (sr(sT0), sr(sT0), 16 * 1152))
                else: a.I("s_nop 0")
                for j in range(4):
                    dma(vWO[j], SWO, sT0, j * 1024); issued.append(tile)
        elif tile == "WOR":
            for g in range(2):
                a.I("s_lshl_b32 %s, %s, 1" % (sr(sT0), sr(sLW)))
                a.I("s_add_u32 %s, %s, %s" % (sr(sT0), sr(sT0), sr(sJQ)))
                a.I("s_add_u32 %s, %s, %d" % (sr(sT0), sr(sT0), g))
                a.I("s_and_b32 %s, %s, 3" % (sr(sT0), sr(sT0)))
                a.I("s_mul_i32 %s, %s, %d" % (sr(sT0), sr(sT0), 128 * 1152))
                a.I("s_lshl_b32 %s, %s, 5" % (sr(sT1), sr(sJQ)))
                a.I("s_add_u32 %s, %s, %s" % (sr(sT0), sr(sT0), sr(sT1)))
                a.I("s_add_u32 m0, %s, %d" % (sr(sLW8K), addr + g * 4096))
                a.I("s_add_u32 %s, %s, 1024" % (sr(sT0), sr(sT0)))
                for j in range(4):
                    dma(vWOR[j], SWO, sT0, j * 1024); issued.append(tile)
        elif tile[0] == "W":
            i = int(tile[1:])
            a.I("s_lshl_b32 %s, %s, 19" % (sr(sT0), sr(sA2)))
            a.I("s_add_u32 %s, %s, %s" % (sr(sT0), sr(sT0), sr(sA1)))
            for g in range(2):
                a.I("s_add_u32 m0, %s, %d" % (sr(sLW8K), addr + g * 4096))
                if g == 1: a.I("s_add_u32 %s, %s, %d" % (sr(sT0), sr(sT0), 16 * 8192))
                else: a.I("s_nop 0")
                for j in range(4):
                    dma(vW[j], SW, sT0, j * 1024); issued.append(tile)
        elif tile[0] in "KV":
            t = int(tile[1:])
            base = sA0 if t < 4 else sA1
            for g in range(2):
                a.I("s_add_u32 m0, %s, %d" % (sr(sLW8K), addr + g * 4096))
                a.I("s_add_u32 %s, %s, %d" % (sr(sT0), sr(base), (t & 3) * 16384 + g * 4096))
                for j in range(4):
                    if tile[0] == "K": dma(vK[j], SK, sT0, j * 1024)
                    else: dma(vV, SV, sT0, j * 1024)
                    issued.append(tile)
        elif tile[0:2] == "OI":
            n = int(tile[2:])
            a.I("s_add_u32 %s, %s, %d" % (sr(sT0), sr(sJQ), n))
            a.I("s_and_b32 %s, %s, 3" % (sr(sT0), sr(sT0)))
            a.I("s_lshl_b32 %s, %s, 3" % (sr(sT0), sr(sT0)))
            a.I("s_andn2_b32 %s, %s, 0x18" % (sr(sT1), sr(sID)))
            a.I("s_or_b32 %s, %s, %s" % (sr(sT0), sr(sT0), sr(sT1)))
            a.I("s_lshl_b32 %s, %s, 14" % (sr(sT0), sr(sT0)))
            a.I("s_add_u32 %s, %s, %s" % (sr(sT0), sr(sT0), sr(sLW8K)))
            a.I("s_add_u32 %s, %s, 0x%x" % (sr(sT0), sr(sT0), WS_IMG))
            for g in range(2):
                a.I("s_add_u32 m0, %s, %d" % (sr(sLW8K), addr + g * 4096))
                if g == 1: a.I("s_add_u32 %s, %s, 4096" % (sr(sT0), sr(sT0)))
                else: a.I("s_nop 0")
                for j in range(4):
                    dma(vLn, SWS, sT0, j * 1024, " sc0 sc1"); issued.append(tile)
        else:
            raise Exception(tile)
    pending = list(order)
    def issue_ready(after):
        while pending:
            t = pending[0]
            if t.startswith("OI"): break
            ra = ready_after(t)
            if ra is None or (after is not None and bidx(ra) <= after):
                issue(pending.pop(0))
            else:
                break
    issue_ready(None)
    if kind == "A":
        a.I("buffer_load_dword v27, v26, %s, 0 offen sc1" % sr(SWS, 4)); issued.append("EPOCH")
    for bi, name in enumerate(barriers):
        if kind == "A" and name == "P2":
            a.I("s_waitcnt vmcnt(0)")
            a.I("v_readfirstlane_b32 %s, v27" % sr(sTAG))
            a.I("s_add_u32 %s, %s, 1" % (sr(sTAG), sr(sTAG)))
            a.I("v_lshrrev_b32 v22, 2, v1")
            a.I("v_add_u32 v22, %s, v22" % sr(sJQ))
            a.I("v_add_u32 v22, 1, v22")
            a.I("v_and_b32 v22, 3, v22")
            a.I("v_lshlrev_b32 v22, 3, v22")
            a.I("s_andn2_b32 %s, %s, 0x18" % (sr(sT1), sr(sID)))
            a.I("v_or_b32 v22, %s, v22" % sr(sT1))
            a.I("v_lshlrev_b32 v22, 7, v22")
            a.I("v_and_b32 v23, 3, v1")
            a.I("v_lshl_add_u32 v22, v23, 2, v22")
            a.I("v_add_u32 v22, 0x%x, v22" % WS_FLAG1)
            poll(a, 22, 12, "L_POLL1", 1)
            for ti in ("OI1", "OI2", "OI3"):
                assert bidx(ready_after(ti)) < bi
                assert pending[0] == ti
                issue(pending.pop(0))
        if kind == "A" and name == "E2":
            a.I("s_cmp_eq_u32 %s, 0" % sr(sLW))
            a.I("s_cbranch_scc0 L_POLL2_SKIP")
            a.I("v_lshrrev_b32 v22, 2, v1")
            a.I("s_andn2_b32 %s, %s, 7" % (sr(sT1), sr(sID)))
            a.I("v_or_b32 v22, %s, v22" % sr(sT1))
            a.I("v_lshlrev_b32 v22, 7, v22")
            a.I("v_and_b32 v23, 3, v1")
            a.I("v_lshl_add_u32 v22, v23, 2, v22")
            a.I("v_add_u32 v22, 0x%x, v22" % WS_FLAG2)
            poll(a, 22, 32, "L_POLL2", 2)
            a.L("L_POLL2_SKIP")
        mine = [t for t in need_at[name] if t in tiles and tiles[t][2] == kind]
        if mine:
            last = max(i for i, t in enumerate(issued) if t in mine)
            for t in mine: assert t in issued, (t, name)
            n = len(issued) - 1 - last
            a.I("s_waitcnt vmcnt(%d)" % min(n, 63))
        a.I("s_barrier")
        issue_ready(bi)
    assert not pending, pending
    a.I("s_branch L_FINAL")
    return a.lines

loadA = gen_loader("A")
loadB = gen_loader("B")

a = Asm()
a.L("L_FINAL")
a.I("s_and_b32 %s, %s, 31" % (sr(sT0), sr(sID)))
a.I("s_cmp_eq_u32 %s, 0" % sr(sT0))
a.I("s_cbranch_scc0 L_NOEP")
a.I("s_cmp_eq_u32 %s, 5" % sr(sWAVE))
a.I("s_cbranch_scc0 L_NOEP")
a.I("s_lshl_b32 %s, %s, 7" % (sr(sT0), sr(sB)))
a.I("v_mov_b32 v4, %s" % sr(sTAG))
a.I("v_mov_b32 v5, 0")
a.I("s_mov_b64 exec, 1")
a.I("buffer_store_dword v4, v5, %s, %s offen sc0 sc1" % (sr(SWS, 4), sr(sT0)))
a.I("s_mov_b64 exec, -1")
a.L("L_NOEP")
a.I("v_cmp_gt_u32 vcc, 288, v0")
a.I("s_and_saveexec_b64 s[4:5], vcc")
a.I("s_cbranch_execz L_FIN_SKIP")
a.I("s_mul_i32 %s, %s, 288" % (sr(sT0), sr(sKS)))
a.I("v_add_u32 v4, %s, v0" % sr(sT0))
a.I("v_lshlrev_b32 v5, 4, v4")
a.I("s_andn2_b32 %s, %s, 7" % (sr(sT1), sr(sID)))
a.I("s_mul_i32 %s, %s, %d" % (sr(sT1), sr(sT1), SLAB_BYTES))
a.I("s_add_u32 %s, %s, 0x%x" % (sr(sT1), sr(sT1), WS_SLAB))
for k in range(8):
    a.I("buffer_load_dwordx4 %s, v5, %s, %s offen sc0 sc1" % (vr(32 + 4 * k, 4), sr(SWS, 4), sr(sT1)))
    if k < 7: a.I("s_add_u32 %s, %s, %d" % (sr(sT1), sr(sT1), SLAB_BYTES))
a.I("v_lshrrev_b32 v6, 6, v4")
a.I("v_and_b32 v7, 63, v4")
a.I("v_mul_u32_u24 v8, 57, v6")
a.I("v_lshrrev_b32 v8, 9, v8")
a.I("v_mul_u32_u24 v9, 9, v8")
a.I("v_sub_u32 v9, v6, v9")
a.I("v_and_b32 v10, 1, v8")
a.I("v_lshlrev_b32 v10, 6, v10")
a.I("v_lshrrev_b32 v11, 2, v9")
a.I("v_lshl_add_u32 v10, v11, 5, v10")
a.I("v_and_b32 v11, 3, v9")
a.I("v_lshl_add_u32 v10, v11, 3, v10")
a.I("v_lshrrev_b32 v11, 5, v7")
a.I("v_lshl_add_u32 v10, v11, 2, v10")
a.I("s_lshl_b32 %s, %s, 7" % (sr(sT0), sr(sJQ)))
a.I("v_add_u32 v10, %s, v10" % sr(sT0))
a.I("v_lshrrev_b32 v11, 1, v8")
a.I("v_lshlrev_b32 v11, 5, v11")
a.I("v_and_b32 v12, 31, v7")
a.I("v_add_u32 v11, v11, v12")
a.I("v_lshrrev_b32 v12, 4, v7")
a.I("v_lshlrev_b32 v12, 2, v12")
a.I("s_lshl_b32 %s, %s, 4" % (sr(sT0), sr(sJQ)))
a.I("s_add_u32 %s, %s, 512" % (sr(sT0), sr(sT0)))
a.I("v_add_u32 v12, %s, v12" % sr(sT0))
a.I("v_and_b32 v13, 15, v7")
a.I("v_lshl_add_u32 v13, v8, 4, v13")
a.I("v_cmp_eq_u32 vcc, 8, v9")
a.I("s_nop 1")
a.I("v_cndmask_b32 v10, v10, v12, vcc")
a.I("v_cndmask_b32 v11, v11, v13, vcc")
a.I("s_lshl_b32 %s, %s, 6" % (sr(sT0), sr(sB)))
a.I("v_add_u32 v11, %s, v11" % sr(sT0))
a.I("v_mul_u32_u24 v11, 1152, v11")
a.I("v_lshl_add_u32 v11, v10, 1, v11")
for k in range(1, 8):
    a.I("s_waitcnt vmcnt(%d)" % (7 - k))
    a.I("v_pk_add_f32 v[32:33], v[32:33], %s" % vr(32 + 4 * k, 2))
    a.I("v_pk_add_f32 v[34:35], v[34:35], %s" % vr(34 + 4 * k, 2))
a.I("v_cvt_pk_bf16_f32 v32, v32, v33")
a.I("v_cvt_pk_bf16_f32 v33, v34, v35")
a.I("buffer_store_dwordx2 v[32:33], v11, %s, 0 offen" % sr(SOUT, 4))
a.L("L_FIN_SKIP")
a.I("s_mov_b64 exec, s[4:5]")
if OPT["stamps"]:
    a.I("s_memrealtime %s" % sr(sSTAMP + 2 * 9, 2))
    a.I("s_waitcnt lgkmcnt(0) vmcnt(0)")
    a.I("s_lshl_b32 %s, %s, 3" % (sr(sT0), sr(sID)))
    a.I("s_add_u32 %s, %s, %s" % (sr(sT0), sr(sT0), sr(sWAVE)))
    a.I("s_lshl_b32 %s, %s, 6" % (sr(sT0), sr(sT0)))
    a.I("s_add_u32 %s, %s, 0x%x" % (sr(sT0), sr(sT0), WS_STAMP))
    a.I("v_mov_b32 v5, 0")
    a.I("s_mov_b64 exec, 1")
    for i in range(10):
        a.I("v_mov_b32 v4, %s" % sr(sSTAMP + 2 * i))
        a.I("buffer_store_dword v4, v5, %s, %s offen offset:%d" % (sr(SWS, 4), sr(sT0), i * 4))
    a.I("s_waitcnt vmcnt(0)")
a.L("L_END")
a.I("s_endpgm")
final_lines = a.lines

tail = """
.section .rodata,"a"
.p2align 6
.amdhsa_kernel %s
  .amdhsa_next_free_vgpr 256
  .amdhsa_next_free_sgpr 96
  .amdhsa_accum_offset 256
  .amdhsa_group_segment_fixed_size 0
  .amdhsa_kernarg_size 64
  .amdhsa_user_sgpr_count 2
  .amdhsa_user_sgpr_kernarg_segment_ptr 1
  .amdhsa_system_sgpr_workgroup_id_x 1
.end_amdhsa_kernel
""" % KNAME

probs = []
for nm, ls in (("compute", entry_lines + compute_lines + final_lines), ("loadA", entry_lines + loadA + final_lines), ("loadB", entry_lines + loadB + final_lines)):
    probs += check_hazards(ls, nm)
for p in sorted(set(probs)): print("HAZARD", p)
print("barriers:", barriers)
print("free_after:", free_after)
out = "\n".join(hdr + entry_lines + loadA + loadB + compute_lines + final_lines) + "\n" + tail
open(sys.argv[1], "w").write(out)
print("lines", out.count("\n"))
```

```python
import sys, struct
from asmlib import *

KNAME = "standalone__gqa_block_cached__near_ridge_kernel"
OPT = dict(dump=0, stamps=0, ntkv=0, ntw=0, ntx=0, ntwo=0)
for a in sys.argv[2:]:
    k, v = a.split("="); OPT[k] = int(v)

WS_EPOCH = 0x0
WS_FLAG1 = 0x1000
WS_FLAG2 = 0x10000
WS_IMG   = 0x100000
WS_SLAB  = 0x800000
SLAB_BYTES = 36864
WS_DUMP  = 0x2000000
WS_STAMP = 0x1800000
WS_SIZE  = 0x10000000

SX, SW, SK, SV, SWO, SWS, SOUT = 8, 12, 16, 20, 24, 28, 32
KARG = 36
sKS, sJQ, sB, sH, sWAVE, sLW, sTAG, sID = 52, 53, 54, 55, 56, 57, 58, 59
sT0, sT1, sT2, sT3 = 60, 61, 62, 63
sC = 64
sLW8K = 66
sA0, sA1, sA2, sA3 = 67, 68, 69, 70
sSTAMP = 72

SLOT = lambda i: i * 16384
LDS_BYTES = 163840

def f32bits(x): return struct.unpack("<I", struct.pack("<f", x))[0]
SCALE = (128 ** -0.5) * 1.4426950408889634

a = Asm()

tiles = {}
for i in range(9):
    tiles["W%d" % i] = (SLOT(i % 4), "W%d" % (i - 4) if i >= 4 else None, "A")
    tiles["X%d" % i] = (SLOT(4) + (i % 4) * 8192, "X%d" % (i - 4) if i >= 4 else None, "A")
kslot = [6, 7, 8, 9, 1, 2, 3, 0]
kpred = [None, None, None, None, "W5", "W6", "W7", "W8"]
for t in range(8): tiles["K%d" % t] = (SLOT(kslot[t]), kpred[t], "B")
QS_ADDR = SLOT(4) + 8192
vslot = [4, 5, 6, 7, 8, 9, 1, 3]
vpred = [["QS", "X8"], ["QS", "X7"], "K0", "K1", "K2", "K3", "K4", "K6"]
for t in range(8): tiles["V%d" % t] = (SLOT(vslot[t]), vpred[t], "B")
MX_ADDR = SLOT(2)
woslot = [0, 2, 4, 5, 6, 0, 2, 4]
wopred = ["K7", "MXS", "V0", "V1", "V2", "WO0", "WO1", "WO2"]
for u in range(8): tiles["WO%d" % u] = (SLOT(woslot[u]), wopred[u], "B")
tiles["WOR"] = (SLOT(7), "V3", "B")
OR_ADDR = SLOT(8)
oislot = [1, 8, 9, 3]
IMG_ADDR = [SLOT(s) for s in oislot]
tiles["OI1"] = (IMG_ADDR[1], "ORS", "A")
tiles["OI2"] = (IMG_ADDR[2], "ORS", "A")
tiles["OI3"] = (IMG_ADDR[3], "V7", "A")

barriers = []
need_at = {}
last_ticket = {}
free_after = {}

hdr = []
hdr.append("; @launch grid=(256,1,1) block=(512,1,1) lds=%d" % LDS_BYTES)
hdr.append('.amdgcn_target "amdgcn-amd-amdhsa--gfx950"')
hdr.append(".text")
hdr.append(".globl %s" % KNAME)
hdr.append(".p2align 8")
hdr.append(".type %s,@function" % KNAME)
hdr.append("%s:" % KNAME)

def stamp(idx):
    if OPT["stamps"]:
        a.I("s_memrealtime %s" % sr(sSTAMP + 2 * idx, 2))
        a.I("s_waitcnt lgkmcnt(0)")

a.I("s_cmp_ge_u32 s2, 256")
a.I("s_cbranch_scc1 L_END")
a.I("s_load_dwordx16 %s, s[0:1], 0" % sr(KARG, 16))
if OPT["stamps"]:
    a.I("s_memrealtime %s" % sr(sSTAMP, 2))
a.I("v_lshrrev_b32 v2, 6, v0")
a.I("v_and_b32 v1, 63, v0")
a.I("s_mov_b32 %s, s2" % sr(sID))
a.I("v_readfirstlane_b32 %s, v2" % sr(sWAVE))
a.I("s_and_b32 %s, s2, 7" % sr(sKS))
a.I("s_lshr_b32 %s, s2, 3" % sr(sJQ))
a.I("s_and_b32 %s, %s, 3" % (sr(sJQ), sr(sJQ)))
a.I("s_lshr_b32 %s, s2, 5" % sr(sB))
a.I("s_lshl_b32 %s, %s, 2" % (sr(sH), sr(sKS)))
a.I("s_add_u32 %s, %s, %s" % (sr(sH), sr(sH), sr(sJQ)))
a.I("s_and_b32 %s, %s, 1" % (sr(sLW), sr(sWAVE)))
a.I("s_lshl_b32 %s, %s, 13" % (sr(sLW8K), sr(sLW)))
a.I("s_mov_b32 %s, 0x%x" % (sr(sC), f32bits(SCALE)))
a.I("s_mov_b32 %s, 0x%x" % (sr(sC + 1), f32bits(SCALE)))
a.I("v_lshrrev_b32 v2, 4, v1")
a.I("v_and_b32 v3, 15, v1")
a.I("s_waitcnt lgkmcnt(0)")
pX, pK, pV, pWQ, pWO, pOUT, pDBG, pWS = [KARG + 2 * i for i in range(8)]
def mk_srd(d, p, off_sgpr, size):
    if off_sgpr is None:
        a.I("s_mov_b32 %s, %s" % (sr(d), sr(p)))
        a.I("s_mov_b32 %s, %s" % (sr(d + 1), sr(p + 1)))
    else:
        a.I("s_add_u32 %s, %s, %s" % (sr(d), sr(p), sr(off_sgpr)))
        a.I("s_addc_u32 %s, %s, 0" % (sr(d + 1), sr(p + 1)))
    a.I("s_mov_b32 %s, 0x%x" % (sr(d + 2), size))
    a.I("s_mov_b32 %s, 0x00020000" % sr(d + 3))
a.I("s_mul_i32 %s, %s, 73728" % (sr(sT0), sr(sB)))
mk_srd(SX, pX, sT0, 73728)
a.I("s_lshl_b32 %s, %s, 8" % (sr(sT0), sr(sH)))
mk_srd(SW, pWQ, sT0, 575 * 8192 + 256)
a.I("s_lshr_b32 %s, %s, 1" % (sr(sT0), sr(sH)))
a.I("s_lshl_b32 %s, %s, 4" % (sr(sT1), sr(sB)))
a.I("s_add_u32 %s, %s, %s" % (sr(sT0), sr(sT0), sr(sT1)))
a.I("s_lshl_b32 %s, %s, 17" % (sr(sT0), sr(sT0)))
mk_srd(SK, pK, sT0, 131072)
mk_srd(SV, pV, sT0, 131072)
a.I("s_mul_i32 %s, %s, 589824" % (sr(sT0), sr(sKS)))
mk_srd(SWO, pWO, sT0, 589824)
mk_srd(SWS, pWS, None, WS_SIZE)
mk_srd(SOUT, pOUT, None, 589824)
a.I("s_cmp_lt_u32 %s, 4" % sr(sWAVE))
a.I("s_cbranch_scc1 L_COMPUTE")
a.I("s_cmp_lt_u32 %s, 6" % sr(sWAVE))
a.I("s_cbranch_scc1 L_LOADA")
a.I("s_branch L_LOADB")
entry_lines = a.lines
a = Asm()

q = LdsQ(a)
def barrier(name, need=()):
    for t, tk in last_ticket.items():
        if t not in free_after and tk < q.done:
            free_after[t] = name
    barriers.append(name)
    need_at[name] = list(need)
    a.I("s_barrier")

def ds_read(kind, dst, n, addr, off, tile):
    assert 0 <= off < 65536, off
    a.I("%s %s, %s offset:%d" % (kind, vr(dst, n), vr(addr), off))
    t = q.issue()
    if tile:
        last_ticket[tile] = t
        free_after.pop(tile, None)
    return t
def rd128(dst, addr, off, tile): return ds_read("ds_read_b128", dst, 4, addr, off, tile)
def rdtr(dst, addr, off, tile): return ds_read("ds_read_b64_tr_b16", dst, 2, addr, off, tile)
def ds_write(kind, addr, src, n, off):
    assert 0 <= off < 65536
    a.I("%s %s, %s offset:%d" % (kind, vr(addr), vr(src, n), off))
    return q.issue()
def mfma32(d, A, B, c0=False):
    a.I("v_mfma_f32_32x32x16_bf16 %s, %s, %s, %s" % (vr(d, 16), vr(A, 4), vr(B, 4), "0" if c0 else vr(d, 16)))
def mfma16(d, A, B, c0=False):
    a.I("v_mfma_f32_16x16x32_bf16 %s, %s, %s, %s" % (vr(d, 4), vr(A, 4), vr(B, 4), "0" if c0 else vr(d, 4)))

vLANE = 1
aX = [2, 3, 4, 5]; aW = [6, 7]; aK = 8; aV = [11, 12, 13, 14]; aWO = [15, 16]; aOI = 17; aRA = 18; aRB = 19
tA, tB, tC, tD, tE, tF = 20, 21, 22, 23, 24, 25
vM, vL = 28, 29
vP0, vP1 = 30, 31
RING = 32
QF = 64
KR = 96
OACC = 64
S = 128

a.L("L_COMPUTE")
sQH = sA0
a.I("s_lshr_b32 %s, %s, 1" % (sr(sQH), sr(sWAVE)))
a.I("s_lshl_b32 %s, %s, 7" % (sr(sT0), sr(sB)))
a.I("v_mov_b32 v26, %s" % sr(sT0))
a.I("buffer_load_dword v27, v26, %s, 0 offen sc1" % sr(SWS, 4))
hf, r_, c4, mh, l31 = 32, 33, 34, 35, 36
L4, L15 = 43, 44
a.I("v_mov_b32 v43, v2")
a.I("v_mov_b32 v44, v3")
a.I("v_lshrrev_b32 %s, 5, v1" % vr(hf))
a.I("v_lshrrev_b32 %s, 2, v3" % vr(r_))
a.I("v_and_b32 %s, 3, v1" % vr(c4))
a.I("v_and_b32 %s, 1, v2" % vr(mh))
a.I("v_and_b32 %s, 31, v1" % vr(l31))
T1, T2, T3 = 37, 38, 39
a.I("s_lshl_b32 %s, %s, 12" % (sr(sT0), sr(sQH)))
a.I("s_add_u32 %s, %s, %d" % (sr(sT0), sr(sT0), SLOT(4)))
a.I("v_lshlrev_b32 %s, 7, %s" % (vr(T1), vr(l31)))
a.I("v_add_u32 %s, %s, %s" % (vr(T1), sr(sT0), vr(T1)))
a.I("v_bfe_u32 %s, %s, 1, 3" % (vr(T2), vr(l31)))
a.I("v_xor_b32 %s, %s, %s" % (vr(T2), vr(hf), vr(T2)))
a.I("v_lshlrev_b32 %s, 4, %s" % (vr(T2), vr(T2)))
a.I("v_add_u32 %s, %s, %s" % (vr(aX[0]), vr(T1), vr(T2)))
for s in range(1, 4):
    a.I("v_xor_b32 %s, %d, %s" % (vr(aX[s]), 32 * s, vr(aX[0])))
swp = 40
a.I("v_and_b32 %s, 1, %s" % (vr(T1), vr(c4)))
a.I("v_lshlrev_b32 %s, 1, %s" % (vr(T1), vr(T1)))
a.I("v_lshrrev_b32 %s, 1, %s" % (vr(T2), vr(c4)))
a.I("v_or_b32 %s, %s, %s" % (vr(swp), vr(T1), vr(T2)))
def tr_addr(dst, rowlane, cq, blk_sgpr_or_const, extra_sgpr=None):
    a.I("v_xor_b32 %s, %s, %s" % (vr(T1), blk_sgpr_or_const, vr(r_)))
    a.I("v_lshlrev_b32 %s, 6, %s" % (vr(T1), vr(T1)))
    a.I("v_lshrrev_b32 %s, 1, %s" % (vr(T2), vr(cq)))
    a.I("v_lshl_add_u32 %s, %s, 1, %s" % (vr(T2), vr(mh), vr(T2)))
    a.I("v_lshl_add_u32 %s, %s, 4, %s" % (vr(T1), vr(T2), vr(T1)))
    a.I("v_and_b32 %s, 1, %s" % (vr(T2), vr(cq)))
    a.I("v_lshl_add_u32 %s, %s, 3, %s" % (vr(T1), vr(T2), vr(T1)))
    a.I("v_lshl_add_u32 %s, %s, 8, %s" % (vr(dst), vr(rowlane), vr(T1)))
    if extra_sgpr is not None:
        a.I("v_add_u32 %s, %s, %s" % (vr(dst), sr(extra_sgpr), vr(dst)))
rowA = 41
a.I("v_lshl_add_u32 %s, %s, 3, %s" % (vr(rowA), vr(hf), vr(r_)))
for i in range(2):
    a.I("s_lshl_b32 %s, %s, 1" % (sr(sT0), sr(sLW)))
    a.I("s_add_u32 %s, %s, %d" % (sr(sT0), sr(sT0), i))
    tr_addr(aW[i], rowA, swp, sr(sT0))
a.I("v_xor_b32 %s, %s, v44" % (vr(T1), vr(hf)))
a.I("s_lshl_b32 %s, %s, 3" % (sr(sT0), sr(sLW)))
a.I("v_xor_b32 %s, %s, %s" % (vr(T1), sr(sT0), vr(T1)))
a.I("v_lshlrev_b32 %s, 4, %s" % (vr(T1), vr(T1)))
a.I("v_lshl_add_u32 %s, %s, 8, %s" % (vr(aK), vr(l31), vr(T1)))
a.I("v_add_u32 %s, %s, %s" % (vr(aK), sr(sLW8K), vr(aK)))
rowB = 42
a.I("v_lshl_add_u32 %s, %s, 2, %s" % (vr(rowB), vr(hf), vr(r_)))
for i in range(4):
    a.I("s_lshl_b32 %s, %s, 1" % (sr(sT0), sr(sLW)))
    a.I("s_xor_b32 %s, %s, %d" % (sr(sT0), sr(sT0), i))
    tr_addr(aV[i], rowB, c4, sr(sT0), sLW8K)
for i in range(2):
    a.I("s_lshl_b32 %s, %s, 1" % (sr(sT0), sr(sLW)))
    a.I("s_add_u32 %s, %s, %d" % (sr(sT0), sr(sT0), i))
    tr_addr(aWO[i], rowB, c4, sr(sT0))
a.I("s_lshl_b32 %s, %s, 13" % (sr(sT0), sr(sQH)))
a.I("v_lshlrev_b32 %s, 4, v1" % vr(T1))
a.I("v_add_u32 %s, %s, %s" % (vr(aOI), sr(sT0), vr(T1)))
a.I("v_lshrrev_b32 %s, 1, v43" % vr(T1))
a.I("v_lshlrev_b32 %s, 4, %s" % (vr(T1), vr(T1)))
a.I("v_lshl_add_u32 %s, %s, 2, %s" % (vr(T1), vr(mh), vr(T1)))
a.I("v_add_u32 %s, %s, %s" % (vr(T1), vr(T1), vr(r_)))
a.I("v_lshlrev_b32 %s, 5, %s" % (vr(T1), vr(T1)))
a.I("v_lshl_add_u32 %s, %s, 3, %s" % (vr(T1), vr(c4), vr(T1)))
a.I("v_add_u32 %s, %d, %s" % (vr(aRA), tiles["WOR"][0], vr(T1)))
a.I("v_lshrrev_b32 %s, 1, v43" % vr(T1))
a.I("v_lshlrev_b32 %s, 10, %s" % (vr(T1), vr(T1)))
a.I("v_lshl_add_u32 %s, %s, 5, v44" % (vr(T2), vr(mh)))
a.I("v_lshl_add_u32 %s, %s, 4, %s" % (vr(T1), vr(T2), vr(T1)))
a.I("s_lshl_b32 %s, %s, 13" % (sr(sT0), sr(sQH)))
a.I("s_lshl_b32 %s, %s, 8" % (sr(sT1), sr(sLW)))
a.I("s_add_u32 %s, %s, %s" % (sr(sT0), sr(sT0), sr(sT1)))
a.I("v_add_u32 %s, %s, %s" % (vr(aRB), sr(sT0), vr(T1)))
a.I("s_waitcnt vmcnt(0)")
a.I("v_readfirstlane_b32 %s, v27" % sr(sTAG))
a.I("s_add_u32 %s, %s, 1" % (sr(sTAG), sr(sTAG)))
stamp(1)

def dump_regs(base, n, slot_index):
    a.I("s_lshl_b32 %s, %s, 2" % (sr(sT0), sr(sID)))
    a.I("s_add_u32 %s, %s, %s" % (sr(sT0), sr(sT0), sr(sWAVE)))
    a.I("s_mul_i32 %s, %s, %d" % (sr(sT0), sr(sT0), n * 256))
    a.I("s_add_u32 %s, %s, 0x%x" % (sr(sT0), sr(sT0), WS_DUMP + slot_index * 0x2000000))
    a.I("v_lshlrev_b32 v26, 4, v1")
    for j in range(0, n, 4):
        a.I("buffer_store_dwordx4 %s, v26, %s, %s offen" % (vr(base + j, 4), sr(SWS, 4), sr(sT0)))
        a.I("s_add_u32 %s, %s, 1024" % (sr(sT0), sr(sT0)))
    a.I("s_waitcnt vmcnt(0)")

a.C("==== phase A ====")
QACC = 128
BR = KR
NG = 36
tick = {}
def a_reads(n, part):
    i, s = divmod(n, 4)
    slot = i % 4
    if part == 0:
        if s == 0: barrier("A%d" % i, ["X%d" % i, "W%d" % i])
        t = rd128(BR + 4 * (n % 4), aX[s], slot * 8192, "X%d" % i)
        base = RING + 8 * (n % 4)
        o = SLOT(slot) + 4096 * s
        rdtr(base, aW[0], o, "W%d" % i)
        t = rdtr(base + 2, aW[0], o + 1024, "W%d" % i)
        tick[(n, 0)] = t
    else:
        base = RING + 8 * (n % 4) + 4
        o = SLOT(slot) + 4096 * s
        rdtr(base, aW[1], o, "W%d" % i)
        t = rdtr(base + 2, aW[1], o + 1024, "W%d" % i)
        tick[(n, 1)] = t
DG = 3
for n in range(DG):
    a_reads(n, 0); a_reads(n, 1)
for n in range(NG):
    q.wait(tick[(n, 0)])
    mfma32(QACC, RING + 8 * (n % 4), BR + 4 * (n % 4), c0=(n == 0))
    if n + DG < NG: a_reads(n + DG, 0)
    q.wait(tick[(n, 1)])
    mfma32(QACC + 16, RING + 8 * (n % 4) + 4, BR + 4 * (n % 4), c0=(n == 0))
    if n + DG < NG: a_reads(n + DG, 1)
stamp(2)
a.nop(12)
if OPT["dump"] == 1:
    dump_regs(QACC, 32, 0)
for t in range(2):
    for j in range(8):
        a.I("v_cvt_pk_bf16_f32 %s, %s, %s" % (vr(QF + 8 * t + j), vr(QACC + 16 * t + 2 * j), vr(QACC + 16 * t + 2 * j + 1)))
a.I("s_lshl_b32 %s, %s, 12" % (sr(sT0), sr(sWAVE)))
a.I("s_add_u32 %s, %s, %d" % (sr(sT0), sr(sT0), QS_ADDR))
a.I("v_lshlrev_b32 %s, 4, v1" % vr(tA))
a.I("v_add_u32 %s, %s, %s" % (vr(tA), sr(sT0), vr(tA)))
a.I("v_xor_b32 %s, 0x1000, %s" % (vr(tB), vr(tA)))
assert QS_ADDR % 8192 == 0
for sgm in range(4):
    ds_write("ds_write_b128", tA, QF + 4 * sgm, 4, sgm * 1024)
q.drain()
barrier("QX")
qt = []
for sgm in range(4):
    qt.append(rd128(QF + 16 + 4 * sgm, tB, sgm * 1024, "QS"))

a.C("==== phase K ====")
a.I("v_mov_b32 %s, 0xff800000" % vr(vM))
D = 7
tick = {}
def max_ops(t):
    return ["v_max3_f32 %s, %s, %s, %s" % (vr(vM), vr(S + 16 * t + 2 * j), vr(S + 16 * t + 2 * j + 1), vr(vM)) for j in range(8)]
pend = []
for n in range(64 + D):
    m = n - D
    if m >= 0:
        t, s = divmod(m, 8)
        if m == 0:
            pass
        if s >= 4 or True:
            if s == 4 and t == 0: pass
        if m == 4: q.wait(qt[3])
        q.wait(tick[m])
        mfma32(S + 16 * t, KR + 4 * (m % 8), QF + 4 * s, c0=(s == 0))
        if s == 2 and t >= 1: pend = max_ops(t - 1)
        if s >= 3 and pend:
            a.I(pend.pop(0)); a.I(pend.pop(0))
    if n < 64:
        t, s = divmod(n, 8)
        if s == 0:
            barrier("K%d" % t, ["K%d" % t])
            a.I("v_add_u32 %s, 0x%x, %s" % (vr(tC), tiles["K%d" % t][0], vr(aK)))
        tmp = tD if n % 2 == 0 else tE
        if s == 0:
            tick[n] = rd128(KR + 4 * (n % 8), tC, 0, "K%d" % t)
        else:
            a.I("v_xor_b32 %s, %d, %s" % (vr(tmp), 32 * s, vr(tC)))
            tick[n] = rd128(KR + 4 * (n % 8), tmp, 0, "K%d" % t)
assert not pend
stamp(3)
a.nop(12)
for s_ in max_ops(7): a.I(s_)
if OPT["dump"] == 2:
    dump_regs(S, 128, 0)

a.C("==== softmax ====")
a.I("v_mov_b32 %s, %s" % (vr(tA), vr(vM)))
a.nop(2)
a.I("v_permlane32_swap_b32 %s, %s" % (vr(tA), vr(vM)))
a.I("v_max_f32 %s, %s, %s" % (vr(vM), vr(tA), vr(vM)))
a.I("s_lshl_b32 %s, %s, 8" % (sr(sT0), sr(sWAVE)))
a.I("s_add_u32 %s, %s, %d" % (sr(sT0), sr(sT0), MX_ADDR))
a.I("v_lshlrev_b32 %s, 2, v1" % vr(tA))
a.I("v_add_u32 %s, %s, %s" % (vr(tA), sr(sT0), vr(tA)))
a.I("v_xor_b32 %s, 0x100, %s" % (vr(tB), vr(tA)))
ds_write("ds_write_b32", tA, vM, 1, 0)
q.drain()
barrier("MX")
tk = ds_read("ds_read_b32", tC, 1, tB, 0, "MXS")
q.wait(tk)
a.I("v_max_f32 %s, %s, %s" % (vr(vM), vr(tC), vr(vM)))
a.I("v_mul_f32 %s, %s, %s" % (vr(vP0), sr(sC), vr(vM)))
a.I("v_sub_f32 %s, 0, %s" % (vr(vP0), vr(vP0)))
a.I("v_mov_b32 %s, %s" % (vr(vP1), vr(vP0)))
LS = 26
a.I("v_mov_b32 v26, 0")
a.I("v_mov_b32 v27, 0")
for t in range(8):
    b0 = S + 16 * t
    for j in range(8):
        a.I("v_pk_fma_f32 %s, %s, %s, %s" % (vr(b0 + 2 * j, 2), vr(b0 + 2 * j, 2), sr(sC, 2), vr(vP0, 2)))
    for j in range(16):
        a.I("v_exp_f32 %s, %s" % (vr(b0 + j), vr(b0 + j)))
    a.I("s_nop 0")
    for j in range(8):
        a.I("v_pk_add_f32 %s, %s, %s" % (vr(LS, 2), vr(LS, 2), vr(b0 + 2 * j, 2)))
    for j in range(8):
        a.I("v_cvt_pk_bf16_f32 %s, %s, %s" % (vr(b0 + j), vr(b0 + 2 * j), vr(b0 + 2 * j + 1)))
a.I("v_add_f32 %s, v26, v27" % vr(vL))
a.I("v_mov_b32 %s, %s" % (vr(tC), vr(vL)))
a.nop(2)
a.I("v_permlane32_swap_b32 %s, %s" % (vr(tC), vr(vL)))
a.I("v_add_f32 %s, %s, %s" % (vr(vL), vr(tC), vr(vL)))
ds_write("ds_write_b32", tA, vL, 1, 1024)
q.drain()
stamp(4)

a.C("==== phase V ====")
tick = {}
ltk = None
tV = [tC, tD, tE, tF]
for n in range(64 + D):
    m = n - D
    if m >= 0:
        t, rem = divmod(m, 8); u, ai = divmod(rem, 4)
        q.wait(tick[m])
        mfma32(OACC + 16 * ai, RING + 4 * (m % 8), S + 16 * t + 4 * u, c0=(m < 4))
    if n < 64:
        t, rem = divmod(n, 8); u, ai = divmod(rem, 4)
        if rem == 0:
            barrier("V%d" % t, ["V%d" % t])
            if t == 0:
                ltk = ds_read("ds_read_b32", vP0, 1, tB, 1024, "MXS")
            for i in range(4):
                a.I("v_add_u32 %s, 0x%x, %s" % (vr(tV[i]), tiles["V%d" % t][0], vr(aV[i])))
        o = 4096 * u
        rdtr(RING + 4 * (n % 8), tV[ai], o, "V%d" % t)
        tick[n] = rdtr(RING + 4 * (n % 8) + 2, tV[ai], o + 2048, "V%d" % t)
stamp(5)
a.I("v_add_f32 %s, %s, %s" % (vr(vL), vr(vP0), vr(vL)))
a.I("v_rcp_f32 %s, %s" % (vr(vL), vr(vL)))
a.C("==== O reduce ====")
a.I("s_lshl_b32 %s, %s, 13" % (sr(sT0), sr(sWAVE)))
a.I("s_add_u32 %s, %s, %d" % (sr(sT0), sr(sT0), OR_ADDR))
a.I("v_lshlrev_b32 %s, 4, v1" % vr(tA))
a.I("v_add_u32 %s, %s, %s" % (vr(tA), sr(sT0), vr(tA)))
a.I("v_xor_b32 %s, 0x2000, %s" % (vr(tB), vr(tA)))
assert OR_ADDR % 16384 == 0
a.nop(8)
for j in range(8):
    ds_write("ds_write_b128", tA, OACC + 32 + 4 * j, 4, j * 1024)
q.drain()
barrier("OR")
tk = []
for j in range(8):
    tk.append(rd128(RING + 4 * j, tB, j * 1024, "ORS"))
a.I("v_mov_b32 %s, %s" % (vr(vP0), vr(vL)))
a.I("v_mov_b32 %s, %s" % (vr(vP1), vr(vL)))
for j in range(8):
    q.wait(tk[j])
    for h2 in range(2):
        d = OACC + 4 * j + 2 * h2
        a.I("v_pk_add_f32 %s, %s, %s" % (vr(d, 2), vr(d, 2), vr(RING + 4 * j + 2 * h2, 2)))
        a.I("v_pk_mul_f32 %s, %s, %s" % (vr(d, 2), vr(d, 2), vr(vP0, 2)))
if OPT["dump"] == 3:
    dump_regs(OACC, 32, 0)
PK = 96
for j in range(16):
    a.I("v_cvt_pk_bf16_f32 %s, %s, %s" % (vr(PK + j), vr(OACC + 2 * j), vr(OACC + 2 * j + 1)))
a.I("s_lshl_b32 %s, %s, 12" % (sr(sT0), sr(sLW)))
a.I("v_add_u32 %s, %s, %s" % (vr(tA), sr(sT0), vr(aOI)))
a.I("s_lshl_b32 %s, %s, 14" % (sr(sT1), sr(sID)))
a.I("s_add_u32 %s, %s, 0x%x" % (sr(sT1), sr(sT1), WS_IMG))
for j in range(4):
    a.I("buffer_store_dwordx4 %s, %s, %s, %s offen offset:%d sc0 sc1" % (vr(PK + 4 * j, 4), vr(tA), sr(SWS, 4), sr(sT1), j * 1024))
a.I("v_add_u32 %s, 0x%x, %s" % (vr(tB), IMG_ADDR[0], vr(tA)))
for j in range(4):
    last_ticket_dummy = ds_write("ds_write_b128", tB, PK + 4 * j, 4, j * 1024)
q.drain()
stamp(6)

a.C("==== phase P ====")
PACC = 128; RACC = 160; RA = [164, 168]; RB = [172, 176]
tick = {}
tWO = [tC, tD]; tOI = tE; tRB = tF
def flag1():
    a.I("s_waitcnt vmcnt(0)")
    a.I("s_lshl_b32 %s, %s, 7" % (sr(sT0), sr(sID)))
    a.I("s_lshl_b32 %s, %s, 2" % (sr(sT1), sr(sWAVE)))
    a.I("s_add_u32 %s, %s, %s" % (sr(sT0), sr(sT0), sr(sT1)))
    a.I("s_add_u32 %s, %s, 0x%x" % (sr(sT0), sr(sT0), WS_FLAG1))
    a.I("v_mov_b32 %s, %s" % (vr(tA), sr(sTAG)))
    a.I("v_mov_b32 %s, 0" % vr(tB))
    a.I("s_mov_b64 exec, 1")
    a.I("buffer_store_dword %s, %s, %s, %s offen sc0 sc1" % (vr(tA), vr(tB), sr(SWS, 4), sr(sT0)))
    a.I("s_mov_b64 exec, -1")
def p_reads(n, part):
    step, kk = divmod(n, 4)
    hn, hh = divmod(step, 2)
    blk = 2 * hh + (kk >> 1); u = kk & 1
    wt = "WO%d" % step
    it = "OI%d" % hn
    if part == 0:
        if kk == 0:
            if step == 2: flag1()
            need = [wt]
            if step == 0: need.append("WOR")
            if hh == 0 and hn > 0: need.append(it)
            barrier("P%d" % step, need)
            for i in range(2):
                a.I("v_add_u32 %s, 0x%x, %s" % (vr(tWO[i]), tiles[wt][0], vr(aWO[i])))
            if hh == 0:
                a.I("v_add_u32 %s, 0x%x, %s" % (vr(tOI), IMG_ADDR[hn], vr(aOI)))
                a.I("v_add_u32 %s, 0x%x, %s" % (vr(tRB), IMG_ADDR[hn], vr(aRB)))
        rd128(BR + 4 * (n % 4), tOI, (blk * 2 + u) * 1024, it)
        base = RING + 8 * (n % 4)
        o = 8192 * (kk >> 1) + 4096 * u
        rdtr(base, tWO[0], o, wt)
        tick[(n, 0)] = rdtr(base + 2, tWO[0], o + 2048, wt)
    else:
        base = RING + 8 * (n % 4) + 4
        o = 8192 * (kk >> 1) + 4096 * u
        rdtr(base, tWO[1], o, wt)
        tick[(n, 1)] = rdtr(base + 2, tWO[1], o + 2048, wt)
        if u == 0:
            ri = (n // 2) % 2
            o = hn * 4096 + blk * 1024
            rdtr(RA[ri], aRA, o, "WOR")
            rdtr(RA[ri] + 2, aRA, o + 256, "WOR")
            tick[(n, 2)] = rd128(RB[ri], tRB, blk * 2048, it)
DG = 2
NG = 32
for n in range(DG):
    p_reads(n, 0); p_reads(n, 1)
for n in range(NG):
    q.wait(tick[(n, 0)])
    mfma32(PACC, RING + 8 * (n % 4), BR + 4 * (n % 4), c0=(n == 0))
    if n + DG < NG: p_reads(n + DG, 0)
    q.wait(tick[(n, 1)])
    mfma32(PACC + 16, RING + 8 * (n % 4) + 4, BR + 4 * (n % 4), c0=(n == 0))
    if n % 2 == 0:
        q.wait(tick[(n, 2)])
        ri = (n // 2) % 2
        mfma16(RACC, RA[ri], RB[ri], c0=(n == 0))
    if n + DG < NG: p_reads(n + DG, 1)
stamp(7)
a.nop(12)
a.I("s_mul_i32 %s, %s, %d" % (sr(sT1), sr(sID), SLAB_BYTES))
a.I("s_mul_i32 %s, %s, 9216" % (sr(sT0), sr(sWAVE)))
a.I("s_add_u32 %s, %s, %s" % (sr(sT1), sr(sT1), sr(sT0)))
a.I("s_add_u32 %s, %s, 0x%x" % (sr(sT1), sr(sT1), WS_SLAB))
a.I("v_lshlrev_b32 %s, 4, v1" % vr(tA))
for j in range(9):
    if j == 4 or j == 8:
        a.I("s_add_u32 %s, %s, 4096" % (sr(sT1), sr(sT1)))
    a.I("buffer_store_dwordx4 %s, %s, %s, %s offen offset:%d sc0 sc1" % (vr(PACC + 4 * j, 4), vr(tA), sr(SWS, 4), sr(sT1), (j % 4) * 1024))
a.I("s_waitcnt vmcnt(0)")
a.I("s_lshl_b32 %s, %s, 7" % (sr(sT0), sr(sID)))
a.I("s_lshl_b32 %s, %s, 2" % (sr(sT1), sr(sWAVE)))
a.I("s_add_u32 %s, %s, %s" % (sr(sT0), sr(sT0), sr(sT1)))
a.I("s_add_u32 %s, %s, 0x%x" % (sr(sT0), sr(sT0), WS_FLAG2))
a.I("v_mov_b32 %s, %s" % (vr(tA), sr(sTAG)))
a.I("v_mov_b32 %s, 0" % vr(tB))
a.I("s_mov_b64 exec, 1")
a.I("buffer_store_dword %s, %s, %s, %s offen sc0 sc1" % (vr(tA), vr(tB), sr(SWS, 4), sr(sT0)))
a.I("s_mov_b64 exec, -1")
stamp(8)
barrier("E2")
a.I("s_branch L_FINAL")
compute_lines = a.lines

def bidx(name): return barriers.index(name)
def ready_after(tile):
    pred = tiles[tile][1]
    if pred is None: return None
    preds = pred if isinstance(pred, list) else [pred]
    idx = max(bidx(free_after[p]) for p in preds)
    return barriers[idx]

def poll(a, voff, nlanes, label, errcode):
    a.I("s_mov_b32 %s, 0" % sr(sT3))
    a.I("s_mov_b64 exec, 0x%x" % ((1 << nlanes) - 1))
    a.L(label)
    a.I("buffer_load_dword v31, %s, %s, 0 offen sc1" % (vr(voff), sr(SWS, 4)))
    a.I("s_waitcnt vmcnt(0)")
    a.I("v_cmp_ne_u32 vcc, %s, v31" % sr(sTAG))
    a.I("s_add_u32 %s, %s, 1" % (sr(sT3), sr(sT3)))
    a.I("s_cmp_gt_u32 %s, 40000" % sr(sT3))
    a.I("s_cbranch_scc1 %s_X" % label)
    a.I("s_cbranch_vccz %s_X" % label)
    a.I("s_sleep 1")
    a.I("s_branch %s" % label)
    a.L(label + "_X")
    a.I("s_mov_b64 exec, -1")

def gen_loader(kind):
    global a
    a = Asm()
    a.L("L_LOAD" + kind)
    l4, l15 = 2, 3
    T1, T2 = 20, 21
    order = []
    if kind == "A":
        vX = [4, 5, 6, 7]; vW = [8, 9, 10, 11]; vLn = 12
        for i in range(4):
            a.I("v_lshrrev_b32 %s, 3, v1" % vr(T1))
            a.I("v_mul_u32_u24 %s, 1152, %s" % (vr(T1), vr(T1)))
            a.I("v_and_b32 %s, 7, v1" % vr(T2))
            a.I("v_xor_b32 %s, %s, v2" % (vr(T2), vr(T2)))
            if i & 1: a.I("v_xor_b32 %s, 4, %s" % (vr(T2), vr(T2)))
            a.I("v_lshl_add_u32 %s, %s, 4, %s" % (vr(T1), vr(T2), vr(T1)))
            a.I("v_add_u32 %s, %d, %s" % (vr(vX[i]), i * 8192, vr(T1)))
        a.I("v_lshlrev_b32 %s, 2, v2" % vr(T2))
        a.I("v_xor_b32 %s, %s, v3" % (vr(T2), vr(T2)))
        a.I("v_lshlrev_b32 %s, 4, %s" % (vr(T2), vr(T2)))
        a.I("v_lshl_add_u32 %s, v2, 13, %s" % (vr(T1), vr(T2)))
        for i in range(4):
            a.I("v_add_u32 %s, %d, %s" % (vr(vW[i]), i * 31744, vr(T1)))
        a.I("v_lshlrev_b32 %s, 4, v1" % vr(vLn))
        a.I("s_lshl_b32 %s, %s, 7" % (sr(sT0), sr(sB)))
        a.I("v_mov_b32 v26, %s" % sr(sT0))
        for i in range(9): order += ["X%d" % i, "W%d" % i]
        order += ["OI1", "OI2", "OI3"]
        a.I("s_mul_i32 %s, %s, 36864" % (sr(sA0), sr(sLW)))
        a.I("s_lshl_b32 %s, %s, 18" % (sr(sA1), sr(sLW)))
    else:
        vK = [4, 5, 6, 7]; vV = 8; vWO = [9, 10, 11, 12]; vWOR = [13, 14, 15, 16]
        for i in range(4):
            a.I("v_add_u32 %s, %d, v2" % (vr(T1), 4 * i))
            a.I("v_xor_b32 %s, %s, v3" % (vr(T1), vr(T1)))
            a.I("v_lshlrev_b32 %s, 4, %s" % (vr(T1), vr(T1)))
            a.I("v_lshl_add_u32 %s, v2, 8, %s" % (vr(vK[i]), vr(T1)))
        a.I("v_lshlrev_b32 %s, 2, v2" % vr(T2))
        a.I("v_xor_b32 %s, %s, v3" % (vr(T2), vr(T2)))
        a.I("v_lshlrev_b32 %s, 4, %s" % (vr(T2), vr(T2)))
        a.I("v_lshl_add_u32 %s, v2, 8, %s" % (vr(vV), vr(T2)))
        a.I("v_mul_u32_u24 %s, 1152, v2" % vr(T1))
        a.I("v_add_u32 %s, %s, %s" % (vr(T1), vr(T1), vr(T2)))
        for i in range(4):
            a.I("v_add_u32 %s, %d, %s" % (vr(vWO[i]), i * 3584, vr(T1)))
        a.I("v_lshrrev_b32 %s, 1, v1" % vr(T1))
        a.I("v_mul_u32_u24 %s, 1152, %s" % (vr(T1), vr(T1)))
        a.I("v_and_b32 %s, 1, v1" % vr(T2))
        a.I("v_lshl_add_u32 %s, %s, 4, %s" % (vr(T1), vr(T2), vr(T1)))
        for i in range(4):
            a.I("v_add_u32 %s, %d, %s" % (vr(vWOR[i]), i * 35840, vr(T1)))
        for t in range(8): order.append("K%d" % t)
        for t in range(8): order.append("V%d" % t)
        order += ["WO0", "WO1", "WO2", "WO3", "WO4", "WOR", "WO5", "WO6", "WO7"]
        a.I("s_and_b32 %s, %s, 1" % (sr(sT0), sr(sJQ)))
        a.I("s_lshl_b32 %s, %s, 16" % (sr(sT0), sr(sT0)))
        a.I("s_add_u32 %s, %s, %s" % (sr(sA0), sr(sT0), sr(sLW8K)))
        a.I("s_xor_b32 %s, %s, 0x10000" % (sr(sA1), sr(sA0)))
        a.I("s_mul_i32 %s, %s, 36864" % (sr(sA2), sr(sLW)))
        a.I("s_lshl_b32 %s, %s, 8" % (sr(sT0), sr(sJQ)))
        a.I("s_add_u32 %s, %s, %s" % (sr(sA2), sr(sA2), sr(sT0)))
    issued = []
    def dma(voff, srd, soff, imm, flags=""):
        a.I("buffer_load_dwordx4 %s, %s, %s offen offset:%d%s lds" % (vr(voff), sr(srd, 4), sr(soff), imm, flags))
    def issue(tile):
        addr = tiles[tile][0]
        a.C("issue " + tile)
        if tile[0] == "X":
            i = int(tile[1:])
            a.I("s_add_u32 %s, %s, %d" % (sr(sT0), sr(sB), i))
            a.I("s_cmp_ge_u32 %s, 9" % sr(sT0))
            a.I("s_cselect_b32 %s, 9, 0" % sr(sT1))
            a.I("s_sub_u32 %s, %s, %s" % (sr(sA2), sr(sT0), sr(sT1)))
            a.I("s_lshl_b32 %s, %s, 7" % (sr(sT0), sr(sA2)))
            a.I("s_add_u32 %s, %s, %s" % (sr(sT0), sr(sT0), sr(sA0)))
            a.I("s_lshr_b32 %s, %s, 1" % (sr(sT1), sr(sLW8K)))
            a.I("s_add_u32 m0, %s, %d" % (sr(sT1), addr))
            a.I("s_nop 0")
            for j in range(4):
                dma(vX[j], SX, sT0, j * 1024, " nt" if OPT["ntx"] else ""); issued.append(tile)
        elif tile[0:2] == "WO" and tile != "WOR":
            u = int(tile[2:])
            a.I("s_lshl_b32 %s, %s, 1" % (sr(sT0), sr(sJQ)))
            a.I("s_add_u32 %s, %s, %d" % (sr(sT0), sr(sT0), u))
            a.I("s_and_b32 %s, %s, 7" % (sr(sT0), sr(sT0)))
            a.I("s_mul_i32 %s, %s, 73728" % (sr(sT0), sr(sT0)))
            a.I("s_add_u32 %s, %s, %s" % (sr(sT0), sr(sT0), sr(sA2)))
            for g in range(2):
                a.I("s_add_u32 m0, %s, %d" % (sr(sLW8K), addr + g * 4096))
                if g == 1: a.I("s_add_u32 %s, %s, %d" % (sr(sT0), sr(sT0), 16 * 1152))
                else: a.I("s_nop 0")
                for j in range(4):
                    dma(vWO[j], SWO, sT0, j * 1024, " nt" if OPT["ntwo"] else ""); issued.append(tile)
        elif tile == "WOR":
            for g in range(2):
                a.I("s_lshl_b32 %s, %s, 1" % (sr(sT0), sr(sLW)))
                a.I("s_add_u32 %s, %s, %s" % (sr(sT0), sr(sT0), sr(sJQ)))
                a.I("s_add_u32 %s, %s, %d" % (sr(sT0), sr(sT0), g))
                a.I("s_and_b32 %s, %s, 3" % (sr(sT0), sr(sT0)))
                a.I("s_mul_i32 %s, %s, %d" % (sr(sT0), sr(sT0), 128 * 1152))
                a.I("s_lshl_b32 %s, %s, 5" % (sr(sT1), sr(sJQ)))
                a.I("s_add_u32 %s, %s, %s" % (sr(sT0), sr(sT0), sr(sT1)))
                a.I("s_add_u32 m0, %s, %d" % (sr(sLW8K), addr + g * 4096))
                a.I("s_add_u32 %s, %s, 1024" % (sr(sT0), sr(sT0)))
                for j in range(4):
                    dma(vWOR[j], SWO, sT0, j * 1024, " nt" if OPT["ntwo"] else ""); issued.append(tile)
        elif tile[0] == "W":
            i = int(tile[1:])
            a.I("s_lshl_b32 %s, %s, 19" % (sr(sT0), sr(sA2)))
            a.I("s_add_u32 %s, %s, %s" % (sr(sT0), sr(sT0), sr(sA1)))
            for g in range(2):
                a.I("s_add_u32 m0, %s, %d" % (sr(sLW8K), addr + g * 4096))
                if g == 1: a.I("s_add_u32 %s, %s, %d" % (sr(sT0), sr(sT0), 16 * 8192))
                else: a.I("s_nop 0")
                for j in range(4):
                    dma(vW[j], SW, sT0, j * 1024, " nt" if OPT["ntw"] else ""); issued.append(tile)
        elif tile[0] in "KV":
            t = int(tile[1:])
            base = sA0 if t < 4 else sA1
            for g in range(2):
                a.I("s_add_u32 m0, %s, %d" % (sr(sLW8K), addr + g * 4096))
                a.I("s_add_u32 %s, %s, %d" % (sr(sT0), sr(base), (t & 3) * 16384 + g * 4096))
                for j in range(4):
                    if tile[0] == "K": dma(vK[j], SK, sT0, j * 1024, " nt" if OPT["ntkv"] else "")
                    else: dma(vV, SV, sT0, j * 1024, " nt" if OPT["ntkv"] else "")
                    issued.append(tile)
        elif tile[0:2] == "OI":
            n = int(tile[2:])
            a.I("s_add_u32 %s, %s, %d" % (sr(sT0), sr(sJQ), n))
            a.I("s_and_b32 %s, %s, 3" % (sr(sT0), sr(sT0)))
            a.I("s_lshl_b32 %s, %s, 3" % (sr(sT0), sr(sT0)))
            a.I("s_andn2_b32 %s, %s, 0x18" % (sr(sT1), sr(sID)))
            a.I("s_or_b32 %s, %s, %s" % (sr(sT0), sr(sT0), sr(sT1)))
            a.I("s_lshl_b32 %s, %s, 14" % (sr(sT0), sr(sT0)))
            a.I("s_add_u32 %s, %s, %s" % (sr(sT0), sr(sT0), sr(sLW8K)))
            a.I("s_add_u32 %s, %s, 0x%x" % (sr(sT0), sr(sT0), WS_IMG))
            for g in range(2):
                a.I("s_add_u32 m0, %s, %d" % (sr(sLW8K), addr + g * 4096))
                if g == 1: a.I("s_add_u32 %s, %s, 4096" % (sr(sT0), sr(sT0)))
                else: a.I("s_nop 0")
                for j in range(4):
                    dma(vLn, SWS, sT0, j * 1024, " sc0 sc1"); issued.append(tile)
        else:
            raise Exception(tile)
    pending = list(order)
    def issue_ready(after):
        while pending:
            t = pending[0]
            if t.startswith("OI"): break
            ra = ready_after(t)
            if ra is None or (after is not None and bidx(ra) <= after):
                issue(pending.pop(0))
            else:
                break
    issue_ready(None)
    if kind == "A":
        a.I("buffer_load_dword v27, v26, %s, 0 offen sc1" % sr(SWS, 4)); issued.append("EPOCH")
    for bi, name in enumerate(barriers):
        if kind == "A" and name == "P2":
            a.I("s_waitcnt vmcnt(0)")
            a.I("v_readfirstlane_b32 %s, v27" % sr(sTAG))
            a.I("s_add_u32 %s, %s, 1" % (sr(sTAG), sr(sTAG)))
            a.I("v_lshrrev_b32 v22, 2, v1")
            a.I("v_add_u32 v22, %s, v22" % sr(sJQ))
            a.I("v_add_u32 v22, 1, v22")
            a.I("v_and_b32 v22, 3, v22")
            a.I("v_lshlrev_b32 v22, 3, v22")
            a.I("s_andn2_b32 %s, %s, 0x18" % (sr(sT1), sr(sID)))
            a.I("v_or_b32 v22, %s, v22" % sr(sT1))
            a.I("v_lshlrev_b32 v22, 7, v22")
            a.I("v_and_b32 v23, 3, v1")
            a.I("v_lshl_add_u32 v22, v23, 2, v22")
            a.I("v_add_u32 v22, 0x%x, v22" % WS_FLAG1)
            poll(a, 22, 12, "L_POLL1", 1)
            for ti in ("OI1", "OI2", "OI3"):
                assert bidx(ready_after(ti)) < bi
                assert pending[0] == ti
                issue(pending.pop(0))
        if kind == "A" and name == "E2":
            a.I("s_cmp_eq_u32 %s, 0" % sr(sLW))
            a.I("s_cbranch_scc0 L_POLL2_SKIP")
            a.I("v_lshrrev_b32 v22, 2, v1")
            a.I("s_andn2_b32 %s, %s, 7" % (sr(sT1), sr(sID)))
            a.I("v_or_b32 v22, %s, v22" % sr(sT1))
            a.I("v_lshlrev_b32 v22, 7, v22")
            a.I("v_and_b32 v23, 3, v1")
            a.I("v_lshl_add_u32 v22, v23, 2, v22")
            a.I("v_add_u32 v22, 0x%x, v22" % WS_FLAG2)
            poll(a, 22, 32, "L_POLL2", 2)
            a.L("L_POLL2_SKIP")
        mine = [t for t in need_at[name] if t in tiles and tiles[t][2] == kind]
        if mine:
            last = max(i for i, t in enumerate(issued) if t in mine)
            for t in mine: assert t in issued, (t, name)
            n = len(issued) - 1 - last
            a.I("s_waitcnt vmcnt(%d)" % min(n, 63))
        a.I("s_barrier")
        issue_ready(bi)
    assert not pending, pending
    a.I("s_branch L_FINAL")
    return a.lines

loadA = gen_loader("A")
loadB = gen_loader("B")

a = Asm()
a.L("L_FINAL")
a.I("s_and_b32 %s, %s, 31" % (sr(sT0), sr(sID)))
a.I("s_cmp_eq_u32 %s, 0" % sr(sT0))
a.I("s_cbranch_scc0 L_NOEP")
a.I("s_cmp_eq_u32 %s, 5" % sr(sWAVE))
a.I("s_cbranch_scc0 L_NOEP")
a.I("s_lshl_b32 %s, %s, 7" % (sr(sT0), sr(sB)))
a.I("v_mov_b32 v4, %s" % sr(sTAG))
a.I("v_mov_b32 v5, 0")
a.I("s_mov_b64 exec, 1")
a.I("buffer_store_dword v4, v5, %s, %s offen sc0 sc1" % (sr(SWS, 4), sr(sT0)))
a.I("s_mov_b64 exec, -1")
a.L("L_NOEP")
a.I("v_cmp_gt_u32 vcc, 288, v0")
a.I("s_and_saveexec_b64 s[4:5], vcc")
a.I("s_cbranch_execz L_FIN_SKIP")
a.I("s_mul_i32 %s, %s, 288" % (sr(sT0), sr(sKS)))
a.I("v_add_u32 v4, %s, v0" % sr(sT0))
a.I("v_lshlrev_b32 v5, 4, v4")
a.I("s_andn2_b32 %s, %s, 7" % (sr(sT1), sr(sID)))
a.I("s_mul_i32 %s, %s, %d" % (sr(sT1), sr(sT1), SLAB_BYTES))
a.I("s_add_u32 %s, %s, 0x%x" % (sr(sT1), sr(sT1), WS_SLAB))
for k in range(8):
    a.I("buffer_load_dwordx4 %s, v5, %s, %s offen sc0 sc1" % (vr(32 + 4 * k, 4), sr(SWS, 4), sr(sT1)))
    if k < 7: a.I("s_add_u32 %s, %s, %d" % (sr(sT1), sr(sT1), SLAB_BYTES))
a.I("v_lshrrev_b32 v6, 6, v4")
a.I("v_and_b32 v7, 63, v4")
a.I("v_mul_u32_u24 v8, 57, v6")
a.I("v_lshrrev_b32 v8, 9, v8")
a.I("v_mul_u32_u24 v9, 9, v8")
a.I("v_sub_u32 v9, v6, v9")
a.I("v_and_b32 v10, 1, v8")
a.I("v_lshlrev_b32 v10, 6, v10")
a.I("v_lshrrev_b32 v11, 2, v9")
a.I("v_lshl_add_u32 v10, v11, 5, v10")
a.I("v_and_b32 v11, 3, v9")
a.I("v_lshl_add_u32 v10, v11, 3, v10")
a.I("v_lshrrev_b32 v11, 5, v7")
a.I("v_lshl_add_u32 v10, v11, 2, v10")
a.I("s_lshl_b32 %s, %s, 7" % (sr(sT0), sr(sJQ)))
a.I("v_add_u32 v10, %s, v10" % sr(sT0))
a.I("v_lshrrev_b32 v11, 1, v8")
a.I("v_lshlrev_b32 v11, 5, v11")
a.I("v_and_b32 v12, 31, v7")
a.I("v_add_u32 v11, v11, v12")
a.I("v_lshrrev_b32 v12, 4, v7")
a.I("v_lshlrev_b32 v12, 2, v12")
a.I("s_lshl_b32 %s, %s, 4" % (sr(sT0), sr(sJQ)))
a.I("s_add_u32 %s, %s, 512" % (sr(sT0), sr(sT0)))
a.I("v_add_u32 v12, %s, v12" % sr(sT0))
a.I("v_and_b32 v13, 15, v7")
a.I("v_lshl_add_u32 v13, v8, 4, v13")
a.I("v_cmp_eq_u32 vcc, 8, v9")
a.I("s_nop 1")
a.I("v_cndmask_b32 v10, v10, v12, vcc")
a.I("v_cndmask_b32 v11, v11, v13, vcc")
a.I("s_lshl_b32 %s, %s, 6" % (sr(sT0), sr(sB)))
a.I("v_add_u32 v11, %s, v11" % sr(sT0))
a.I("v_mul_u32_u24 v11, 1152, v11")
a.I("v_lshl_add_u32 v11, v10, 1, v11")
for k in range(1, 8):
    a.I("s_waitcnt vmcnt(%d)" % (7 - k))
    a.I("v_pk_add_f32 v[32:33], v[32:33], %s" % vr(32 + 4 * k, 2))
    a.I("v_pk_add_f32 v[34:35], v[34:35], %s" % vr(34 + 4 * k, 2))
a.I("v_cvt_pk_bf16_f32 v32, v32, v33")
a.I("v_cvt_pk_bf16_f32 v33, v34, v35")
a.I("buffer_store_dwordx2 v[32:33], v11, %s, 0 offen" % sr(SOUT, 4))
a.L("L_FIN_SKIP")
a.I("s_mov_b64 exec, s[4:5]")
if OPT["stamps"]:
    a.I("s_memrealtime %s" % sr(sSTAMP + 2 * 9, 2))
    a.I("s_waitcnt lgkmcnt(0) vmcnt(0)")
    a.I("s_lshl_b32 %s, %s, 3" % (sr(sT0), sr(sID)))
    a.I("s_add_u32 %s, %s, %s" % (sr(sT0), sr(sT0), sr(sWAVE)))
    a.I("s_lshl_b32 %s, %s, 6" % (sr(sT0), sr(sT0)))
    a.I("s_add_u32 %s, %s, 0x%x" % (sr(sT0), sr(sT0), WS_STAMP))
    a.I("v_mov_b32 v5, 0")
    a.I("s_mov_b64 exec, 1")
    for i in range(10):
        a.I("v_mov_b32 v4, %s" % sr(sSTAMP + 2 * i))
        a.I("buffer_store_dword v4, v5, %s, %s offen offset:%d" % (sr(SWS, 4), sr(sT0), i * 4))
    a.I("s_waitcnt vmcnt(0)")
a.L("L_END")
a.I("s_endpgm")
final_lines = a.lines

tail = """
.section .rodata,"a"
.p2align 6
.amdhsa_kernel %s
  .amdhsa_next_free_vgpr 256
  .amdhsa_next_free_sgpr 96
  .amdhsa_accum_offset 256
  .amdhsa_group_segment_fixed_size 0
  .amdhsa_kernarg_size 64
  .amdhsa_user_sgpr_count 2
  .amdhsa_user_sgpr_kernarg_segment_ptr 1
  .amdhsa_system_sgpr_workgroup_id_x 1
.end_amdhsa_kernel
""" % KNAME

probs = []
for nm, ls in (("compute", entry_lines + compute_lines + final_lines), ("loadA", entry_lines + loadA + final_lines), ("loadB", entry_lines + loadB + final_lines)):
    probs += check_hazards(ls, nm)
for p in sorted(set(probs)): print("HAZARD", p)
print("barriers:", barriers)
print("free_after:", free_after)
out = "\n".join(hdr + entry_lines + loadA + loadB + compute_lines + final_lines) + "\n" + tail
open(sys.argv[1], "w").write(out)
print("lines", out.count("\n"))
```

```python
import sys, struct
from asmlib import *

KNAME = "standalone__gqa_block_cached__near_ridge_kernel"
OPT = dict(dump=0, stamps=0, dbgst=0, ntkv=0, ntw=0, ntx=0, ntwo=0)
for a in sys.argv[2:]:
    k, v = a.split("="); OPT[k] = int(v)

WS_EPOCH = 0x0
WS_FLAG1 = 0x1000
WS_FLAG2 = 0x10000
WS_IMG   = 0x100000
WS_SLAB  = 0x800000
SLAB_BYTES = 36864
WS_DUMP  = 0x2000000
WS_STAMP = 0x1800000
WS_SIZE  = 0x10000000

SX, SW, SK, SV, SWO, SWS, SOUT = 8, 12, 16, 20, 24, 28, 32
KARG = 36
sKS, sJQ, sB, sH, sWAVE, sLW, sTAG, sID = 52, 53, 54, 55, 56, 57, 58, 59
sT0, sT1, sT2, sT3 = 60, 61, 62, 63
sC = 64
sLW8K = 66
sA0, sA1, sA2, sA3 = 67, 68, 69, 70
sSTAMP = 72

SLOT = lambda i: i * 16384
LDS_BYTES = 163840

def f32bits(x): return struct.unpack("<I", struct.pack("<f", x))[0]
SCALE = (128 ** -0.5) * 1.4426950408889634

a = Asm()

tiles = {}
for i in range(9):
    tiles["W%d" % i] = (SLOT(i % 4), "W%d" % (i - 4) if i >= 4 else None, "A")
    tiles["X%d" % i] = (SLOT(4) + (i % 4) * 8192, "X%d" % (i - 4) if i >= 4 else None, "A")
kslot = [6, 7, 8, 9, 1, 2, 3, 0]
kpred = [None, None, None, None, "W5", "W6", "W7", "W8"]
for t in range(8): tiles["K%d" % t] = (SLOT(kslot[t]), kpred[t], "B")
QS_ADDR = SLOT(4) + 8192
vslot = [4, 5, 6, 7, 8, 9, 1, 3]
vpred = [["QS", "X8"], ["QS", "X7"], "K0", "K1", "K2", "K3", "K4", "K6"]
for t in range(8): tiles["V%d" % t] = (SLOT(vslot[t]), vpred[t], "B")
MX_ADDR = SLOT(2)
woslot = [0, 2, 4, 5, 6, 0, 2, 4]
wopred = ["K7", "MXS", "V0", "V1", "V2", "WO0", "WO1", "WO2"]
for u in range(8): tiles["WO%d" % u] = (SLOT(woslot[u]), wopred[u], "B")
tiles["WOR"] = (SLOT(7), "V3", "B")
OR_ADDR = SLOT(8)
oislot = [1, 8, 9, 3]
IMG_ADDR = [SLOT(s) for s in oislot]
tiles["OI1"] = (IMG_ADDR[1], "ORS", "A")
tiles["OI2"] = (IMG_ADDR[2], "ORS", "A")
tiles["OI3"] = (IMG_ADDR[3], "V7", "A")

barriers = []
need_at = {}
last_ticket = {}
free_after = {}

hdr = []
hdr.append("; @launch grid=(256,1,1) block=(512,1,1) lds=%d" % LDS_BYTES)
hdr.append('.amdgcn_target "amdgcn-amd-amdhsa--gfx950"')
hdr.append(".text")
hdr.append(".globl %s" % KNAME)
hdr.append(".p2align 8")
hdr.append(".type %s,@function" % KNAME)
hdr.append("%s:" % KNAME)

def stamp(idx):
    if OPT["stamps"]:
        a.I("s_memrealtime %s" % sr(sSTAMP + 2 * idx, 2))
        a.I("s_waitcnt lgkmcnt(0)")

a.I("s_cmp_ge_u32 s2, 256")
a.I("s_cbranch_scc1 L_END")
a.I("s_load_dwordx16 %s, s[0:1], 0" % sr(KARG, 16))
if OPT["stamps"]:
    a.I("s_memrealtime %s" % sr(sSTAMP, 2))
a.I("v_lshrrev_b32 v2, 6, v0")
a.I("v_and_b32 v1, 63, v0")
a.I("s_mov_b32 %s, s2" % sr(sID))
a.I("v_readfirstlane_b32 %s, v2" % sr(sWAVE))
a.I("s_and_b32 %s, s2, 7" % sr(sKS))
a.I("s_lshr_b32 %s, s2, 3" % sr(sJQ))
a.I("s_and_b32 %s, %s, 3" % (sr(sJQ), sr(sJQ)))
a.I("s_lshr_b32 %s, s2, 5" % sr(sB))
a.I("s_lshl_b32 %s, %s, 2" % (sr(sH), sr(sKS)))
a.I("s_add_u32 %s, %s, %s" % (sr(sH), sr(sH), sr(sJQ)))
a.I("s_and_b32 %s, %s, 1" % (sr(sLW), sr(sWAVE)))
a.I("s_lshl_b32 %s, %s, 13" % (sr(sLW8K), sr(sLW)))
a.I("s_mov_b32 %s, 0x%x" % (sr(sC), f32bits(SCALE)))
a.I("s_mov_b32 %s, 0x%x" % (sr(sC + 1), f32bits(SCALE)))
a.I("v_lshrrev_b32 v2, 4, v1")
a.I("v_and_b32 v3, 15, v1")
a.I("s_waitcnt lgkmcnt(0)")
pX, pK, pV, pWQ, pWO, pOUT, pDBG, pWS = [KARG + 2 * i for i in range(8)]
def mk_srd(d, p, off_sgpr, size):
    if off_sgpr is None:
        a.I("s_mov_b32 %s, %s" % (sr(d), sr(p)))
        a.I("s_mov_b32 %s, %s" % (sr(d + 1), sr(p + 1)))
    else:
        a.I("s_add_u32 %s, %s, %s" % (sr(d), sr(p), sr(off_sgpr)))
        a.I("s_addc_u32 %s, %s, 0" % (sr(d + 1), sr(p + 1)))
    a.I("s_mov_b32 %s, 0x%x" % (sr(d + 2), size))
    a.I("s_mov_b32 %s, 0x00020000" % sr(d + 3))
a.I("s_mul_i32 %s, %s, 73728" % (sr(sT0), sr(sB)))
mk_srd(SX, pX, sT0, 73728)
a.I("s_lshl_b32 %s, %s, 8" % (sr(sT0), sr(sH)))
mk_srd(SW, pWQ, sT0, 575 * 8192 + 256)
a.I("s_lshr_b32 %s, %s, 1" % (sr(sT0), sr(sH)))
a.I("s_lshl_b32 %s, %s, 4" % (sr(sT1), sr(sB)))
a.I("s_add_u32 %s, %s, %s" % (sr(sT0), sr(sT0), sr(sT1)))
a.I("s_lshl_b32 %s, %s, 17" % (sr(sT0), sr(sT0)))
mk_srd(SK, pK, sT0, 131072)
mk_srd(SV, pV, sT0, 131072)
a.I("s_mul_i32 %s, %s, 589824" % (sr(sT0), sr(sKS)))
mk_srd(SWO, pWO, sT0, 589824)
mk_srd(SWS, pWS, None, WS_SIZE)
mk_srd(SOUT, pOUT, None, 589824)
a.I("s_cmp_lt_u32 %s, 4" % sr(sWAVE))
a.I("s_cbranch_scc1 L_COMPUTE")
a.I("s_cmp_lt_u32 %s, 6" % sr(sWAVE))
a.I("s_cbranch_scc1 L_LOADA")
a.I("s_branch L_LOADB")
entry_lines = a.lines
a = Asm()

q = LdsQ(a)
def barrier(name, need=()):
    for t, tk in last_ticket.items():
        if t not in free_after and tk < q.done:
            free_after[t] = name
    barriers.append(name)
    need_at[name] = list(need)
    a.I("s_barrier")

def ds_read(kind, dst, n, addr, off, tile):
    assert 0 <= off < 65536, off
    a.I("%s %s, %s offset:%d" % (kind, vr(dst, n), vr(addr), off))
    t = q.issue()
    if tile:
        last_ticket[tile] = t
        free_after.pop(tile, None)
    return t
def rd128(dst, addr, off, tile): return ds_read("ds_read_b128", dst, 4, addr, off, tile)
def rdtr(dst, addr, off, tile): return ds_read("ds_read_b64_tr_b16", dst, 2, addr, off, tile)
def ds_write(kind, addr, src, n, off):
    assert 0 <= off < 65536
    a.I("%s %s, %s offset:%d" % (kind, vr(addr), vr(src, n), off))
    return q.issue()
def mfma32(d, A, B, c0=False):
    a.I("v_mfma_f32_32x32x16_bf16 %s, %s, %s, %s" % (vr(d, 16), vr(A, 4), vr(B, 4), "0" if c0 else vr(d, 16)))
def mfma16(d, A, B, c0=False):
    a.I("v_mfma_f32_16x16x32_bf16 %s, %s, %s, %s" % (vr(d, 4), vr(A, 4), vr(B, 4), "0" if c0 else vr(d, 4)))

vLANE = 1
aX = [2, 3, 4, 5]; aW = [6, 7]; aK = 8; aV = [11, 12, 13, 14]; aWO = [15, 16]; aOI = 17; aRA = 18; aRB = 19
tA, tB, tC, tD, tE, tF = 20, 21, 22, 23, 24, 25
vM, vL = 28, 29
vP0, vP1 = 30, 31
RING = 32
QF = 64
KR = 96
OACC = 64
S = 128

a.L("L_COMPUTE")
sQH = sA0
a.I("s_lshr_b32 %s, %s, 1" % (sr(sQH), sr(sWAVE)))
a.I("s_lshl_b32 %s, %s, 7" % (sr(sT0), sr(sB)))
a.I("v_mov_b32 v26, %s" % sr(sT0))
a.I("buffer_load_dword v27, v26, %s, 0 offen sc1" % sr(SWS, 4))
hf, r_, c4, mh, l31 = 32, 33, 34, 35, 36
L4, L15 = 43, 44
a.I("v_mov_b32 v43, v2")
a.I("v_mov_b32 v44, v3")
a.I("v_lshrrev_b32 %s, 5, v1" % vr(hf))
a.I("v_lshrrev_b32 %s, 2, v3" % vr(r_))
a.I("v_and_b32 %s, 3, v1" % vr(c4))
a.I("v_and_b32 %s, 1, v2" % vr(mh))
a.I("v_and_b32 %s, 31, v1" % vr(l31))
T1, T2, T3 = 37, 38, 39
a.I("s_lshl_b32 %s, %s, 12" % (sr(sT0), sr(sQH)))
a.I("s_add_u32 %s, %s, %d" % (sr(sT0), sr(sT0), SLOT(4)))
a.I("v_lshlrev_b32 %s, 7, %s" % (vr(T1), vr(l31)))
a.I("v_add_u32 %s, %s, %s" % (vr(T1), sr(sT0), vr(T1)))
a.I("v_bfe_u32 %s, %s, 1, 3" % (vr(T2), vr(l31)))
a.I("v_xor_b32 %s, %s, %s" % (vr(T2), vr(hf), vr(T2)))
a.I("v_lshlrev_b32 %s, 4, %s" % (vr(T2), vr(T2)))
a.I("v_add_u32 %s, %s, %s" % (vr(aX[0]), vr(T1), vr(T2)))
for s in range(1, 4):
    a.I("v_xor_b32 %s, %d, %s" % (vr(aX[s]), 32 * s, vr(aX[0])))
swp = 40
a.I("v_and_b32 %s, 1, %s" % (vr(T1), vr(c4)))
a.I("v_lshlrev_b32 %s, 1, %s" % (vr(T1), vr(T1)))
a.I("v_lshrrev_b32 %s, 1, %s" % (vr(T2), vr(c4)))
a.I("v_or_b32 %s, %s, %s" % (vr(swp), vr(T1), vr(T2)))
def tr_addr(dst, rowlane, cq, blk_sgpr_or_const, extra_sgpr=None):
    a.I("v_xor_b32 %s, %s, %s" % (vr(T1), blk_sgpr_or_const, vr(r_)))
    a.I("v_lshlrev_b32 %s, 6, %s" % (vr(T1), vr(T1)))
    a.I("v_lshrrev_b32 %s, 1, %s" % (vr(T2), vr(cq)))
    a.I("v_lshl_add_u32 %s, %s, 1, %s" % (vr(T2), vr(mh), vr(T2)))
    a.I("v_lshl_add_u32 %s, %s, 4, %s" % (vr(T1), vr(T2), vr(T1)))
    a.I("v_and_b32 %s, 1, %s" % (vr(T2), vr(cq)))
    a.I("v_lshl_add_u32 %s, %s, 3, %s" % (vr(T1), vr(T2), vr(T1)))
    a.I("v_lshl_add_u32 %s, %s, 8, %s" % (vr(dst), vr(rowlane), vr(T1)))
    if extra_sgpr is not None:
        a.I("v_add_u32 %s, %s, %s" % (vr(dst), sr(extra_sgpr), vr(dst)))
rowA = 41
a.I("v_lshl_add_u32 %s, %s, 3, %s" % (vr(rowA), vr(hf), vr(r_)))
for i in range(2):
    a.I("s_lshl_b32 %s, %s, 1" % (sr(sT0), sr(sLW)))
    a.I("s_add_u32 %s, %s, %d" % (sr(sT0), sr(sT0), i))
    tr_addr(aW[i], rowA, swp, sr(sT0))
a.I("v_xor_b32 %s, %s, v44" % (vr(T1), vr(hf)))
a.I("s_lshl_b32 %s, %s, 3" % (sr(sT0), sr(sLW)))
a.I("v_xor_b32 %s, %s, %s" % (vr(T1), sr(sT0), vr(T1)))
a.I("v_lshlrev_b32 %s, 4, %s" % (vr(T1), vr(T1)))
a.I("v_lshl_add_u32 %s, %s, 8, %s" % (vr(aK), vr(l31), vr(T1)))
a.I("v_add_u32 %s, %s, %s" % (vr(aK), sr(sLW8K), vr(aK)))
rowB = 42
a.I("v_lshl_add_u32 %s, %s, 2, %s" % (vr(rowB), vr(hf), vr(r_)))
for i in range(4):
    a.I("s_lshl_b32 %s, %s, 1" % (sr(sT0), sr(sLW)))
    a.I("s_xor_b32 %s, %s, %d" % (sr(sT0), sr(sT0), i))
    tr_addr(aV[i], rowB, c4, sr(sT0), sLW8K)
for i in range(2):
    a.I("s_lshl_b32 %s, %s, 1" % (sr(sT0), sr(sLW)))
    a.I("s_add_u32 %s, %s, %d" % (sr(sT0), sr(sT0), i))
    tr_addr(aWO[i], rowB, c4, sr(sT0))
a.I("s_lshl_b32 %s, %s, 13" % (sr(sT0), sr(sQH)))
a.I("v_lshlrev_b32 %s, 4, v1" % vr(T1))
a.I("v_add_u32 %s, %s, %s" % (vr(aOI), sr(sT0), vr(T1)))
a.I("v_lshrrev_b32 %s, 1, v43" % vr(T1))
a.I("v_lshlrev_b32 %s, 4, %s" % (vr(T1), vr(T1)))
a.I("v_lshl_add_u32 %s, %s, 2, %s" % (vr(T1), vr(mh), vr(T1)))
a.I("v_add_u32 %s, %s, %s" % (vr(T1), vr(T1), vr(r_)))
a.I("v_lshlrev_b32 %s, 5, %s" % (vr(T1), vr(T1)))
a.I("v_lshl_add_u32 %s, %s, 3, %s" % (vr(T1), vr(c4), vr(T1)))
a.I("v_add_u32 %s, %d, %s" % (vr(aRA), tiles["WOR"][0], vr(T1)))
a.I("v_lshrrev_b32 %s, 1, v43" % vr(T1))
a.I("v_lshlrev_b32 %s, 10, %s" % (vr(T1), vr(T1)))
a.I("v_lshl_add_u32 %s, %s, 5, v44" % (vr(T2), vr(mh)))
a.I("v_lshl_add_u32 %s, %s, 4, %s" % (vr(T1), vr(T2), vr(T1)))
a.I("s_lshl_b32 %s, %s, 13" % (sr(sT0), sr(sQH)))
a.I("s_lshl_b32 %s, %s, 8" % (sr(sT1), sr(sLW)))
a.I("s_add_u32 %s, %s, %s" % (sr(sT0), sr(sT0), sr(sT1)))
a.I("v_add_u32 %s, %s, %s" % (vr(aRB), sr(sT0), vr(T1)))
a.I("s_waitcnt vmcnt(0)")
a.I("v_readfirstlane_b32 %s, v27" % sr(sTAG))
a.I("s_add_u32 %s, %s, 1" % (sr(sTAG), sr(sTAG)))
stamp(1)

def dump_regs(base, n, slot_index):
    a.I("s_lshl_b32 %s, %s, 2" % (sr(sT0), sr(sID)))
    a.I("s_add_u32 %s, %s, %s" % (sr(sT0), sr(sT0), sr(sWAVE)))
    a.I("s_mul_i32 %s, %s, %d" % (sr(sT0), sr(sT0), n * 256))
    a.I("s_add_u32 %s, %s, 0x%x" % (sr(sT0), sr(sT0), WS_DUMP + slot_index * 0x2000000))
    a.I("v_lshlrev_b32 v26, 4, v1")
    for j in range(0, n, 4):
        a.I("buffer_store_dwordx4 %s, v26, %s, %s offen" % (vr(base + j, 4), sr(SWS, 4), sr(sT0)))
        a.I("s_add_u32 %s, %s, 1024" % (sr(sT0), sr(sT0)))
    a.I("s_waitcnt vmcnt(0)")

a.C("==== phase A ====")
QACC = 128
BR = KR
NG = 36
tick = {}
def a_reads(n, part):
    i, s = divmod(n, 4)
    slot = i % 4
    if part == 0:
        if s == 0: barrier("A%d" % i, ["X%d" % i, "W%d" % i])
        t = rd128(BR + 4 * (n % 4), aX[s], slot * 8192, "X%d" % i)
        base = RING + 8 * (n % 4)
        o = SLOT(slot) + 4096 * s
        rdtr(base, aW[0], o, "W%d" % i)
        t = rdtr(base + 2, aW[0], o + 1024, "W%d" % i)
        tick[(n, 0)] = t
    else:
        base = RING + 8 * (n % 4) + 4
        o = SLOT(slot) + 4096 * s
        rdtr(base, aW[1], o, "W%d" % i)
        t = rdtr(base + 2, aW[1], o + 1024, "W%d" % i)
        tick[(n, 1)] = t
DG = 3
for n in range(DG):
    a_reads(n, 0); a_reads(n, 1)
for n in range(NG):
    q.wait(tick[(n, 0)])
    mfma32(QACC, RING + 8 * (n % 4), BR + 4 * (n % 4), c0=(n == 0))
    if n + DG < NG: a_reads(n + DG, 0)
    q.wait(tick[(n, 1)])
    mfma32(QACC + 16, RING + 8 * (n % 4) + 4, BR + 4 * (n % 4), c0=(n == 0))
    if n + DG < NG: a_reads(n + DG, 1)
stamp(2)
a.nop(12)
if OPT["dump"] == 1:
    dump_regs(QACC, 32, 0)
for t in range(2):
    for j in range(8):
        a.I("v_cvt_pk_bf16_f32 %s, %s, %s" % (vr(QF + 8 * t + j), vr(QACC + 16 * t + 2 * j), vr(QACC + 16 * t + 2 * j + 1)))
a.I("s_lshl_b32 %s, %s, 12" % (sr(sT0), sr(sWAVE)))
a.I("s_add_u32 %s, %s, %d" % (sr(sT0), sr(sT0), QS_ADDR))
a.I("v_lshlrev_b32 %s, 4, v1" % vr(tA))
a.I("v_add_u32 %s, %s, %s" % (vr(tA), sr(sT0), vr(tA)))
a.I("v_xor_b32 %s, 0x1000, %s" % (vr(tB), vr(tA)))
assert QS_ADDR % 8192 == 0
for sgm in range(4):
    ds_write("ds_write_b128", tA, QF + 4 * sgm, 4, sgm * 1024)
q.drain()
barrier("QX")
qt = []
for sgm in range(4):
    qt.append(rd128(QF + 16 + 4 * sgm, tB, sgm * 1024, "QS"))

a.C("==== phase K ====")
a.I("v_mov_b32 %s, 0xff800000" % vr(vM))
D = 7
tick = {}
def max_ops(t):
    return ["v_max3_f32 %s, %s, %s, %s" % (vr(vM), vr(S + 16 * t + 2 * j), vr(S + 16 * t + 2 * j + 1), vr(vM)) for j in range(8)]
pend = []
for n in range(64 + D):
    m = n - D
    if m >= 0:
        t, s = divmod(m, 8)
        if m == 0:
            pass
        if s >= 4 or True:
            if s == 4 and t == 0: pass
        if m == 4: q.wait(qt[3])
        q.wait(tick[m])
        mfma32(S + 16 * t, KR + 4 * (m % 8), QF + 4 * s, c0=(s == 0))
        if s == 2 and t >= 1: pend = max_ops(t - 1)
        if s >= 3 and pend:
            a.I(pend.pop(0)); a.I(pend.pop(0))
    if n < 64:
        t, s = divmod(n, 8)
        if s == 0:
            barrier("K%d" % t, ["K%d" % t])
            a.I("v_add_u32 %s, 0x%x, %s" % (vr(tC), tiles["K%d" % t][0], vr(aK)))
        tmp = tD if n % 2 == 0 else tE
        if s == 0:
            tick[n] = rd128(KR + 4 * (n % 8), tC, 0, "K%d" % t)
        else:
            a.I("v_xor_b32 %s, %d, %s" % (vr(tmp), 32 * s, vr(tC)))
            tick[n] = rd128(KR + 4 * (n % 8), tmp, 0, "K%d" % t)
assert not pend
stamp(3)
a.nop(12)
for s_ in max_ops(7): a.I(s_)
if OPT["dump"] == 2:
    dump_regs(S, 128, 0)

a.C("==== softmax ====")
a.I("v_mov_b32 %s, %s" % (vr(tA), vr(vM)))
a.nop(2)
a.I("v_permlane32_swap_b32 %s, %s" % (vr(tA), vr(vM)))
a.I("v_max_f32 %s, %s, %s" % (vr(vM), vr(tA), vr(vM)))
a.I("s_lshl_b32 %s, %s, 8" % (sr(sT0), sr(sWAVE)))
a.I("s_add_u32 %s, %s, %d" % (sr(sT0), sr(sT0), MX_ADDR))
a.I("v_lshlrev_b32 %s, 2, v1" % vr(tA))
a.I("v_add_u32 %s, %s, %s" % (vr(tA), sr(sT0), vr(tA)))
a.I("v_xor_b32 %s, 0x100, %s" % (vr(tB), vr(tA)))
ds_write("ds_write_b32", tA, vM, 1, 0)
q.drain()
barrier("MX")
tk = ds_read("ds_read_b32", tC, 1, tB, 0, "MXS")
q.wait(tk)
a.I("v_max_f32 %s, %s, %s" % (vr(vM), vr(tC), vr(vM)))
a.I("v_mul_f32 %s, %s, %s" % (vr(vP0), sr(sC), vr(vM)))
a.I("v_sub_f32 %s, 0, %s" % (vr(vP0), vr(vP0)))
a.I("v_mov_b32 %s, %s" % (vr(vP1), vr(vP0)))
LS = 26
a.I("v_mov_b32 v26, 0")
a.I("v_mov_b32 v27, 0")
for t in range(8):
    b0 = S + 16 * t
    for j in range(8):
        a.I("v_pk_fma_f32 %s, %s, %s, %s" % (vr(b0 + 2 * j, 2), vr(b0 + 2 * j, 2), sr(sC, 2), vr(vP0, 2)))
    for j in range(16):
        a.I("v_exp_f32 %s, %s" % (vr(b0 + j), vr(b0 + j)))
    a.I("s_nop 0")
    for j in range(8):
        a.I("v_pk_add_f32 %s, %s, %s" % (vr(LS, 2), vr(LS, 2), vr(b0 + 2 * j, 2)))
    for j in range(8):
        a.I("v_cvt_pk_bf16_f32 %s, %s, %s" % (vr(b0 + j), vr(b0 + 2 * j), vr(b0 + 2 * j + 1)))
a.I("v_add_f32 %s, v26, v27" % vr(vL))
a.I("v_mov_b32 %s, %s" % (vr(tC), vr(vL)))
a.nop(2)
a.I("v_permlane32_swap_b32 %s, %s" % (vr(tC), vr(vL)))
a.I("v_add_f32 %s, %s, %s" % (vr(vL), vr(tC), vr(vL)))
ds_write("ds_write_b32", tA, vL, 1, 1024)
q.drain()
stamp(4)

a.C("==== phase V ====")
tick = {}
ltk = None
tV = [tC, tD, tE, tF]
for n in range(64 + D):
    m = n - D
    if m >= 0:
        t, rem = divmod(m, 8); u, ai = divmod(rem, 4)
        q.wait(tick[m])
        mfma32(OACC + 16 * ai, RING + 4 * (m % 8), S + 16 * t + 4 * u, c0=(m < 4))
    if n < 64:
        t, rem = divmod(n, 8); u, ai = divmod(rem, 4)
        if rem == 0:
            barrier("V%d" % t, ["V%d" % t])
            if t == 0:
                ltk = ds_read("ds_read_b32", vP0, 1, tB, 1024, "MXS")
            for i in range(4):
                a.I("v_add_u32 %s, 0x%x, %s" % (vr(tV[i]), tiles["V%d" % t][0], vr(aV[i])))
        o = 4096 * u
        rdtr(RING + 4 * (n % 8), tV[ai], o, "V%d" % t)
        tick[n] = rdtr(RING + 4 * (n % 8) + 2, tV[ai], o + 2048, "V%d" % t)
stamp(5)
a.I("v_add_f32 %s, %s, %s" % (vr(vL), vr(vP0), vr(vL)))
a.I("v_rcp_f32 %s, %s" % (vr(vL), vr(vL)))
a.C("==== O reduce ====")
a.I("s_lshl_b32 %s, %s, 13" % (sr(sT0), sr(sWAVE)))
a.I("s_add_u32 %s, %s, %d" % (sr(sT0), sr(sT0), OR_ADDR))
a.I("v_lshlrev_b32 %s, 4, v1" % vr(tA))
a.I("v_add_u32 %s, %s, %s" % (vr(tA), sr(sT0), vr(tA)))
a.I("v_xor_b32 %s, 0x2000, %s" % (vr(tB), vr(tA)))
assert OR_ADDR % 16384 == 0
a.nop(8)
for j in range(8):
    ds_write("ds_write_b128", tA, OACC + 32 + 4 * j, 4, j * 1024)
q.drain()
barrier("OR")
tk = []
for j in range(8):
    tk.append(rd128(RING + 4 * j, tB, j * 1024, "ORS"))
a.I("v_mov_b32 %s, %s" % (vr(vP0), vr(vL)))
a.I("v_mov_b32 %s, %s" % (vr(vP1), vr(vL)))
for j in range(8):
    q.wait(tk[j])
    for h2 in range(2):
        d = OACC + 4 * j + 2 * h2
        a.I("v_pk_add_f32 %s, %s, %s" % (vr(d, 2), vr(d, 2), vr(RING + 4 * j + 2 * h2, 2)))
        a.I("v_pk_mul_f32 %s, %s, %s" % (vr(d, 2), vr(d, 2), vr(vP0, 2)))
if OPT["dump"] == 3:
    dump_regs(OACC, 32, 0)
PK = 96
for j in range(16):
    a.I("v_cvt_pk_bf16_f32 %s, %s, %s" % (vr(PK + j), vr(OACC + 2 * j), vr(OACC + 2 * j + 1)))
a.I("s_lshl_b32 %s, %s, 12" % (sr(sT0), sr(sLW)))
a.I("v_add_u32 %s, %s, %s" % (vr(tA), sr(sT0), vr(aOI)))
a.I("s_lshl_b32 %s, %s, 14" % (sr(sT1), sr(sID)))
a.I("s_add_u32 %s, %s, 0x%x" % (sr(sT1), sr(sT1), WS_IMG))
for j in range(4):
    a.I("buffer_store_dwordx4 %s, %s, %s, %s offen offset:%d sc0 sc1" % (vr(PK + 4 * j, 4), vr(tA), sr(SWS, 4), sr(sT1), j * 1024))
a.I("v_add_u32 %s, 0x%x, %s" % (vr(tB), IMG_ADDR[0], vr(tA)))
for j in range(4):
    last_ticket_dummy = ds_write("ds_write_b128", tB, PK + 4 * j, 4, j * 1024)
q.drain()
stamp(6)

a.C("==== phase P ====")
PACC = 128; RACC = 160; RA = [164, 168]; RB = [172, 176]
tick = {}
tWO = [tC, tD]; tOI = tE; tRB = tF
def flag1():
    a.I("s_waitcnt vmcnt(0)")
    a.I("s_lshl_b32 %s, %s, 7" % (sr(sT0), sr(sID)))
    a.I("s_lshl_b32 %s, %s, 2" % (sr(sT1), sr(sWAVE)))
    a.I("s_add_u32 %s, %s, %s" % (sr(sT0), sr(sT0), sr(sT1)))
    a.I("s_add_u32 %s, %s, 0x%x" % (sr(sT0), sr(sT0), WS_FLAG1))
    a.I("v_mov_b32 %s, %s" % (vr(tA), sr(sTAG)))
    a.I("v_mov_b32 %s, 0" % vr(tB))
    a.I("s_mov_b64 exec, 1")
    a.I("buffer_store_dword %s, %s, %s, %s offen sc0 sc1" % (vr(tA), vr(tB), sr(SWS, 4), sr(sT0)))
    a.I("s_mov_b64 exec, -1")
def p_reads(n, part):
    step, kk = divmod(n, 4)
    hn, hh = divmod(step, 2)
    blk = 2 * hh + (kk >> 1); u = kk & 1
    wt = "WO%d" % step
    it = "OI%d" % hn
    if part == 0:
        if kk == 0:
            if step == 2: flag1()
            need = [wt]
            if step == 0: need.append("WOR")
            if hh == 0 and hn > 0: need.append(it)
            barrier("P%d" % step, need)
            for i in range(2):
                a.I("v_add_u32 %s, 0x%x, %s" % (vr(tWO[i]), tiles[wt][0], vr(aWO[i])))
            if hh == 0:
                a.I("v_add_u32 %s, 0x%x, %s" % (vr(tOI), IMG_ADDR[hn], vr(aOI)))
                a.I("v_add_u32 %s, 0x%x, %s" % (vr(tRB), IMG_ADDR[hn], vr(aRB)))
        rd128(BR + 4 * (n % 4), tOI, (blk * 2 + u) * 1024, it)
        base = RING + 8 * (n % 4)
        o = 8192 * (kk >> 1) + 4096 * u
        rdtr(base, tWO[0], o, wt)
        tick[(n, 0)] = rdtr(base + 2, tWO[0], o + 2048, wt)
    else:
        base = RING + 8 * (n % 4) + 4
        o = 8192 * (kk >> 1) + 4096 * u
        rdtr(base, tWO[1], o, wt)
        tick[(n, 1)] = rdtr(base + 2, tWO[1], o + 2048, wt)
        if u == 0:
            ri = (n // 2) % 2
            o = hn * 4096 + blk * 1024
            rdtr(RA[ri], aRA, o, "WOR")
            rdtr(RA[ri] + 2, aRA, o + 256, "WOR")
            tick[(n, 2)] = rd128(RB[ri], tRB, blk * 2048, it)
DG = 2
NG = 32
for n in range(DG):
    p_reads(n, 0); p_reads(n, 1)
for n in range(NG):
    q.wait(tick[(n, 0)])
    mfma32(PACC, RING + 8 * (n % 4), BR + 4 * (n % 4), c0=(n == 0))
    if n + DG < NG: p_reads(n + DG, 0)
    q.wait(tick[(n, 1)])
    mfma32(PACC + 16, RING + 8 * (n % 4) + 4, BR + 4 * (n % 4), c0=(n == 0))
    if n % 2 == 0:
        q.wait(tick[(n, 2)])
        ri = (n // 2) % 2
        mfma16(RACC, RA[ri], RB[ri], c0=(n == 0))
    if n + DG < NG: p_reads(n + DG, 1)
stamp(7)
a.nop(12)
a.I("s_mul_i32 %s, %s, %d" % (sr(sT1), sr(sID), SLAB_BYTES))
a.I("s_mul_i32 %s, %s, 9216" % (sr(sT0), sr(sWAVE)))
a.I("s_add_u32 %s, %s, %s" % (sr(sT1), sr(sT1), sr(sT0)))
a.I("s_add_u32 %s, %s, 0x%x" % (sr(sT1), sr(sT1), WS_SLAB))
a.I("v_lshlrev_b32 %s, 4, v1" % vr(tA))
for j in range(9):
    if j == 4 or j == 8:
        a.I("s_add_u32 %s, %s, 4096" % (sr(sT1), sr(sT1)))
    a.I("buffer_store_dwordx4 %s, %s, %s, %s offen offset:%d sc0 sc1" % (vr(PACC + 4 * j, 4), vr(tA), sr(SWS, 4), sr(sT1), (j % 4) * 1024))
a.I("s_waitcnt vmcnt(0)")
a.I("s_lshl_b32 %s, %s, 7" % (sr(sT0), sr(sID)))
a.I("s_lshl_b32 %s, %s, 2" % (sr(sT1), sr(sWAVE)))
a.I("s_add_u32 %s, %s, %s" % (sr(sT0), sr(sT0), sr(sT1)))
a.I("s_add_u32 %s, %s, 0x%x" % (sr(sT0), sr(sT0), WS_FLAG2))
a.I("v_mov_b32 %s, %s" % (vr(tA), sr(sTAG)))
a.I("v_mov_b32 %s, 0" % vr(tB))
a.I("s_mov_b64 exec, 1")
a.I("buffer_store_dword %s, %s, %s, %s offen sc0 sc1" % (vr(tA), vr(tB), sr(SWS, 4), sr(sT0)))
a.I("s_mov_b64 exec, -1")
stamp(8)
barrier("E2")
a.I("s_branch L_FINAL")
compute_lines = a.lines

def bidx(name): return barriers.index(name)
def ready_after(tile):
    pred = tiles[tile][1]
    if pred is None: return None
    preds = pred if isinstance(pred, list) else [pred]
    idx = max(bidx(free_after[p]) for p in preds)
    return barriers[idx]

def poll(a, voff, nlanes, label, errcode):
    a.I("s_mov_b32 %s, 0" % sr(sT3))
    a.I("s_mov_b64 exec, 0x%x" % ((1 << nlanes) - 1))
    a.L(label)
    a.I("buffer_load_dword v31, %s, %s, 0 offen sc1" % (vr(voff), sr(SWS, 4)))
    a.I("s_waitcnt vmcnt(0)")
    a.I("v_cmp_ne_u32 vcc, %s, v31" % sr(sTAG))
    a.I("s_add_u32 %s, %s, 1" % (sr(sT3), sr(sT3)))
    a.I("s_cmp_gt_u32 %s, 40000" % sr(sT3))
    a.I("s_cbranch_scc1 %s_X" % label)
    a.I("s_cbranch_vccz %s_X" % label)
    a.I("s_sleep 1")
    a.I("s_branch %s" % label)
    a.L(label + "_X")
    a.I("s_mov_b64 exec, -1")

def gen_loader(kind):
    global a
    a = Asm()
    a.L("L_LOAD" + kind)
    l4, l15 = 2, 3
    T1, T2 = 20, 21
    order = []
    if kind == "A":
        vX = [4, 5, 6, 7]; vW = [8, 9, 10, 11]; vLn = 12
        for i in range(4):
            a.I("v_lshrrev_b32 %s, 3, v1" % vr(T1))
            a.I("v_mul_u32_u24 %s, 1152, %s" % (vr(T1), vr(T1)))
            a.I("v_and_b32 %s, 7, v1" % vr(T2))
            a.I("v_xor_b32 %s, %s, v2" % (vr(T2), vr(T2)))
            if i & 1: a.I("v_xor_b32 %s, 4, %s" % (vr(T2), vr(T2)))
            a.I("v_lshl_add_u32 %s, %s, 4, %s" % (vr(T1), vr(T2), vr(T1)))
            a.I("v_add_u32 %s, %d, %s" % (vr(vX[i]), i * 8192, vr(T1)))
        a.I("v_lshlrev_b32 %s, 2, v2" % vr(T2))
        a.I("v_xor_b32 %s, %s, v3" % (vr(T2), vr(T2)))
        a.I("v_lshlrev_b32 %s, 4, %s" % (vr(T2), vr(T2)))
        a.I("v_lshl_add_u32 %s, v2, 13, %s" % (vr(T1), vr(T2)))
        for i in range(4):
            a.I("v_add_u32 %s, %d, %s" % (vr(vW[i]), i * 31744, vr(T1)))
        a.I("v_lshlrev_b32 %s, 4, v1" % vr(vLn))
        a.I("s_lshl_b32 %s, %s, 7" % (sr(sT0), sr(sB)))
        a.I("v_mov_b32 v26, %s" % sr(sT0))
        for i in range(9): order += ["X%d" % i, "W%d" % i]
        order += ["OI1", "OI2", "OI3"]
        a.I("s_mul_i32 %s, %s, 36864" % (sr(sA0), sr(sLW)))
        a.I("s_lshl_b32 %s, %s, 18" % (sr(sA1), sr(sLW)))
    else:
        vK = [4, 5, 6, 7]; vV = 8; vWO = [9, 10, 11, 12]; vWOR = [13, 14, 15, 16]
        for i in range(4):
            a.I("v_add_u32 %s, %d, v2" % (vr(T1), 4 * i))
            a.I("v_xor_b32 %s, %s, v3" % (vr(T1), vr(T1)))
            a.I("v_lshlrev_b32 %s, 4, %s" % (vr(T1), vr(T1)))
            a.I("v_lshl_add_u32 %s, v2, 8, %s" % (vr(vK[i]), vr(T1)))
        a.I("v_lshlrev_b32 %s, 2, v2" % vr(T2))
        a.I("v_xor_b32 %s, %s, v3" % (vr(T2), vr(T2)))
        a.I("v_lshlrev_b32 %s, 4, %s" % (vr(T2), vr(T2)))
        a.I("v_lshl_add_u32 %s, v2, 8, %s" % (vr(vV), vr(T2)))
        a.I("v_mul_u32_u24 %s, 1152, v2" % vr(T1))
        a.I("v_add_u32 %s, %s, %s" % (vr(T1), vr(T1), vr(T2)))
        for i in range(4):
            a.I("v_add_u32 %s, %d, %s" % (vr(vWO[i]), i * 3584, vr(T1)))
        a.I("v_lshrrev_b32 %s, 1, v1" % vr(T1))
        a.I("v_mul_u32_u24 %s, 1152, %s" % (vr(T1), vr(T1)))
        a.I("v_and_b32 %s, 1, v1" % vr(T2))
        a.I("v_lshl_add_u32 %s, %s, 4, %s" % (vr(T1), vr(T2), vr(T1)))
        for i in range(4):
            a.I("v_add_u32 %s, %d, %s" % (vr(vWOR[i]), i * 35840, vr(T1)))
        for t in range(8): order.append("K%d" % t)
        for t in range(8): order.append("V%d" % t)
        order += ["WO0", "WO1", "WO2", "WO3", "WO4", "WOR", "WO5", "WO6", "WO7"]
        a.I("s_and_b32 %s, %s, 1" % (sr(sT0), sr(sJQ)))
        a.I("s_lshl_b32 %s, %s, 16" % (sr(sT0), sr(sT0)))
        a.I("s_add_u32 %s, %s, %s" % (sr(sA0), sr(sT0), sr(sLW8K)))
        a.I("s_xor_b32 %s, %s, 0x10000" % (sr(sA1), sr(sA0)))
        a.I("s_mul_i32 %s, %s, 36864" % (sr(sA2), sr(sLW)))
        a.I("s_lshl_b32 %s, %s, 8" % (sr(sT0), sr(sJQ)))
        a.I("s_add_u32 %s, %s, %s" % (sr(sA2), sr(sA2), sr(sT0)))
    issued = []
    def dma(voff, srd, soff, imm, flags=""):
        a.I("buffer_load_dwordx4 %s, %s, %s offen offset:%d%s lds" % (vr(voff), sr(srd, 4), sr(soff), imm, flags))
    def issue(tile):
        addr = tiles[tile][0]
        a.C("issue " + tile)
        if tile[0] == "X":
            i = int(tile[1:])
            a.I("s_add_u32 %s, %s, %d" % (sr(sT0), sr(sB), i))
            a.I("s_cmp_ge_u32 %s, 9" % sr(sT0))
            a.I("s_cselect_b32 %s, 9, 0" % sr(sT1))
            a.I("s_sub_u32 %s, %s, %s" % (sr(sA2), sr(sT0), sr(sT1)))
            a.I("s_lshl_b32 %s, %s, 7" % (sr(sT0), sr(sA2)))
            a.I("s_add_u32 %s, %s, %s" % (sr(sT0), sr(sT0), sr(sA0)))
            a.I("s_lshr_b32 %s, %s, 1" % (sr(sT1), sr(sLW8K)))
            a.I("s_add_u32 m0, %s, %d" % (sr(sT1), addr))
            a.I("s_nop 0")
            for j in range(4):
                dma(vX[j], SX, sT0, j * 1024, " nt" if OPT["ntx"] else ""); issued.append(tile)
        elif tile[0:2] == "WO" and tile != "WOR":
            u = int(tile[2:])
            a.I("s_lshl_b32 %s, %s, 1" % (sr(sT0), sr(sJQ)))
            a.I("s_add_u32 %s, %s, %d" % (sr(sT0), sr(sT0), u))
            a.I("s_and_b32 %s, %s, 7" % (sr(sT0), sr(sT0)))
            a.I("s_mul_i32 %s, %s, 73728" % (sr(sT0), sr(sT0)))
            a.I("s_add_u32 %s, %s, %s" % (sr(sT0), sr(sT0), sr(sA2)))
            for g in range(2):
                a.I("s_add_u32 m0, %s, %d" % (sr(sLW8K), addr + g * 4096))
                if g == 1: a.I("s_add_u32 %s, %s, %d" % (sr(sT0), sr(sT0), 16 * 1152))
                else: a.I("s_nop 0")
                for j in range(4):
                    dma(vWO[j], SWO, sT0, j * 1024, " nt" if OPT["ntwo"] else ""); issued.append(tile)
        elif tile == "WOR":
            for g in range(2):
                a.I("s_lshl_b32 %s, %s, 1" % (sr(sT0), sr(sLW)))
                a.I("s_add_u32 %s, %s, %s" % (sr(sT0), sr(sT0), sr(sJQ)))
                a.I("s_add_u32 %s, %s, %d" % (sr(sT0), sr(sT0), g))
                a.I("s_and_b32 %s, %s, 3" % (sr(sT0), sr(sT0)))
                a.I("s_mul_i32 %s, %s, %d" % (sr(sT0), sr(sT0), 128 * 1152))
                a.I("s_lshl_b32 %s, %s, 5" % (sr(sT1), sr(sJQ)))
                a.I("s_add_u32 %s, %s, %s" % (sr(sT0), sr(sT0), sr(sT1)))
                a.I("s_add_u32 m0, %s, %d" % (sr(sLW8K), addr + g * 4096))
                a.I("s_add_u32 %s, %s, 1024" % (sr(sT0), sr(sT0)))
                for j in range(4):
                    dma(vWOR[j], SWO, sT0, j * 1024, " nt" if OPT["ntwo"] else ""); issued.append(tile)
        elif tile[0] == "W":
            i = int(tile[1:])
            a.I("s_lshl_b32 %s, %s, 19" % (sr(sT0), sr(sA2)))
            a.I("s_add_u32 %s, %s, %s" % (sr(sT0), sr(sT0), sr(sA1)))
            for g in range(2):
                a.I("s_add_u32 m0, %s, %d" % (sr(sLW8K), addr + g * 4096))
                if g == 1: a.I("s_add_u32 %s, %s, %d" % (sr(sT0), sr(sT0), 16 * 8192))
                else: a.I("s_nop 0")
                for j in range(4):
                    dma(vW[j], SW, sT0, j * 1024, " nt" if OPT["ntw"] else ""); issued.append(tile)
        elif tile[0] in "KV":
            t = int(tile[1:])
            base = sA0 if t < 4 else sA1
            for g in range(2):
                a.I("s_add_u32 m0, %s, %d" % (sr(sLW8K), addr + g * 4096))
                a.I("s_add_u32 %s, %s, %d" % (sr(sT0), sr(base), (t & 3) * 16384 + g * 4096))
                for j in range(4):
                    if tile[0] == "K": dma(vK[j], SK, sT0, j * 1024, " nt" if OPT["ntkv"] else "")
                    else: dma(vV, SV, sT0, j * 1024, " nt" if OPT["ntkv"] else "")
                    issued.append(tile)
        elif tile[0:2] == "OI":
            n = int(tile[2:])
            a.I("s_add_u32 %s, %s, %d" % (sr(sT0), sr(sJQ), n))
            a.I("s_and_b32 %s, %s, 3" % (sr(sT0), sr(sT0)))
            a.I("s_lshl_b32 %s, %s, 3" % (sr(sT0), sr(sT0)))
            a.I("s_andn2_b32 %s, %s, 0x18" % (sr(sT1), sr(sID)))
            a.I("s_or_b32 %s, %s, %s" % (sr(sT0), sr(sT0), sr(sT1)))
            a.I("s_lshl_b32 %s, %s, 14" % (sr(sT0), sr(sT0)))
            a.I("s_add_u32 %s, %s, %s" % (sr(sT0), sr(sT0), sr(sLW8K)))
            a.I("s_add_u32 %s, %s, 0x%x" % (sr(sT0), sr(sT0), WS_IMG))
            for g in range(2):
                a.I("s_add_u32 m0, %s, %d" % (sr(sLW8K), addr + g * 4096))
                if g == 1: a.I("s_add_u32 %s, %s, 4096" % (sr(sT0), sr(sT0)))
                else: a.I("s_nop 0")
                for j in range(4):
                    dma(vLn, SWS, sT0, j * 1024, " sc0 sc1"); issued.append(tile)
        else:
            raise Exception(tile)
    pending = list(order)
    def issue_ready(after):
        while pending:
            t = pending[0]
            if t.startswith("OI"): break
            ra = ready_after(t)
            if ra is None or (after is not None and bidx(ra) <= after):
                issue(pending.pop(0))
            else:
                break
    issue_ready(None)
    if kind == "A":
        a.I("buffer_load_dword v27, v26, %s, 0 offen sc1" % sr(SWS, 4)); issued.append("EPOCH")
    for bi, name in enumerate(barriers):
        if kind == "A" and name == "P2":
            a.I("s_waitcnt vmcnt(0)")
            a.I("v_readfirstlane_b32 %s, v27" % sr(sTAG))
            a.I("s_add_u32 %s, %s, 1" % (sr(sTAG), sr(sTAG)))
            a.I("v_lshrrev_b32 v22, 2, v1")
            a.I("v_add_u32 v22, %s, v22" % sr(sJQ))
            a.I("v_add_u32 v22, 1, v22")
            a.I("v_and_b32 v22, 3, v22")
            a.I("v_lshlrev_b32 v22, 3, v22")
            a.I("s_andn2_b32 %s, %s, 0x18" % (sr(sT1), sr(sID)))
            a.I("v_or_b32 v22, %s, v22" % sr(sT1))
            a.I("v_lshlrev_b32 v22, 7, v22")
            a.I("v_and_b32 v23, 3, v1")
            a.I("v_lshl_add_u32 v22, v23, 2, v22")
            a.I("v_add_u32 v22, 0x%x, v22" % WS_FLAG1)
            poll(a, 22, 12, "L_POLL1", 1)
            for ti in ("OI1", "OI2", "OI3"):
                assert bidx(ready_after(ti)) < bi
                assert pending[0] == ti
                issue(pending.pop(0))
        if kind == "A" and name == "E2":
            a.I("s_cmp_eq_u32 %s, 0" % sr(sLW))
            a.I("s_cbranch_scc0 L_POLL2_SKIP")
            a.I("v_lshrrev_b32 v22, 2, v1")
            a.I("s_andn2_b32 %s, %s, 7" % (sr(sT1), sr(sID)))
            a.I("v_or_b32 v22, %s, v22" % sr(sT1))
            a.I("v_lshlrev_b32 v22, 7, v22")
            a.I("v_and_b32 v23, 3, v1")
            a.I("v_lshl_add_u32 v22, v23, 2, v22")
            a.I("v_add_u32 v22, 0x%x, v22" % WS_FLAG2)
            poll(a, 22, 32, "L_POLL2", 2)
            a.L("L_POLL2_SKIP")
        mine = [t for t in need_at[name] if t in tiles and tiles[t][2] == kind]
        if mine:
            last = max(i for i, t in enumerate(issued) if t in mine)
            for t in mine: assert t in issued, (t, name)
            n = len(issued) - 1 - last
            a.I("s_waitcnt vmcnt(%d)" % min(n, 63))
        a.I("s_barrier")
        issue_ready(bi)
    assert not pending, pending
    a.I("s_branch L_FINAL")
    return a.lines

loadA = gen_loader("A")
loadB = gen_loader("B")

a = Asm()
a.L("L_FINAL")
a.I("s_and_b32 %s, %s, 31" % (sr(sT0), sr(sID)))
a.I("s_cmp_eq_u32 %s, 0" % sr(sT0))
a.I("s_cbranch_scc0 L_NOEP")
a.I("s_cmp_eq_u32 %s, 5" % sr(sWAVE))
a.I("s_cbranch_scc0 L_NOEP")
a.I("s_lshl_b32 %s, %s, 7" % (sr(sT0), sr(sB)))
a.I("v_mov_b32 v4, %s" % sr(sTAG))
a.I("v_mov_b32 v5, 0")
a.I("s_mov_b64 exec, 1")
a.I("buffer_store_dword v4, v5, %s, %s offen sc0 sc1" % (sr(SWS, 4), sr(sT0)))
a.I("s_mov_b64 exec, -1")
a.L("L_NOEP")
a.I("v_cmp_gt_u32 vcc, 288, v0")
a.I("s_and_saveexec_b64 s[4:5], vcc")
a.I("s_cbranch_execz L_FIN_SKIP")
a.I("s_mul_i32 %s, %s, 288" % (sr(sT0), sr(sKS)))
a.I("v_add_u32 v4, %s, v0" % sr(sT0))
a.I("v_lshlrev_b32 v5, 4, v4")
a.I("s_andn2_b32 %s, %s, 7" % (sr(sT1), sr(sID)))
a.I("s_mul_i32 %s, %s, %d" % (sr(sT1), sr(sT1), SLAB_BYTES))
a.I("s_add_u32 %s, %s, 0x%x" % (sr(sT1), sr(sT1), WS_SLAB))
for k in range(8):
    a.I("buffer_load_dwordx4 %s, v5, %s, %s offen sc0 sc1" % (vr(32 + 4 * k, 4), sr(SWS, 4), sr(sT1)))
    if k < 7: a.I("s_add_u32 %s, %s, %d" % (sr(sT1), sr(sT1), SLAB_BYTES))
a.I("v_lshrrev_b32 v6, 6, v4")
a.I("v_and_b32 v7, 63, v4")
a.I("v_mul_u32_u24 v8, 57, v6")
a.I("v_lshrrev_b32 v8, 9, v8")
a.I("v_mul_u32_u24 v9, 9, v8")
a.I("v_sub_u32 v9, v6, v9")
a.I("v_and_b32 v10, 1, v8")
a.I("v_lshlrev_b32 v10, 6, v10")
a.I("v_lshrrev_b32 v11, 2, v9")
a.I("v_lshl_add_u32 v10, v11, 5, v10")
a.I("v_and_b32 v11, 3, v9")
a.I("v_lshl_add_u32 v10, v11, 3, v10")
a.I("v_lshrrev_b32 v11, 5, v7")
a.I("v_lshl_add_u32 v10, v11, 2, v10")
a.I("s_lshl_b32 %s, %s, 7" % (sr(sT0), sr(sJQ)))
a.I("v_add_u32 v10, %s, v10" % sr(sT0))
a.I("v_lshrrev_b32 v11, 1, v8")
a.I("v_lshlrev_b32 v11, 5, v11")
a.I("v_and_b32 v12, 31, v7")
a.I("v_add_u32 v11, v11, v12")
a.I("v_lshrrev_b32 v12, 4, v7")
a.I("v_lshlrev_b32 v12, 2, v12")
a.I("s_lshl_b32 %s, %s, 4" % (sr(sT0), sr(sJQ)))
a.I("s_add_u32 %s, %s, 512" % (sr(sT0), sr(sT0)))
a.I("v_add_u32 v12, %s, v12" % sr(sT0))
a.I("v_and_b32 v13, 15, v7")
a.I("v_lshl_add_u32 v13, v8, 4, v13")
a.I("v_cmp_eq_u32 vcc, 8, v9")
a.I("s_nop 1")
a.I("v_cndmask_b32 v10, v10, v12, vcc")
a.I("v_cndmask_b32 v11, v11, v13, vcc")
a.I("s_lshl_b32 %s, %s, 6" % (sr(sT0), sr(sB)))
a.I("v_add_u32 v11, %s, v11" % sr(sT0))
a.I("v_mul_u32_u24 v11, 1152, v11")
a.I("v_lshl_add_u32 v11, v10, 1, v11")
for k in range(1, 8):
    a.I("s_waitcnt vmcnt(%d)" % (7 - k))
    a.I("v_pk_add_f32 v[32:33], v[32:33], %s" % vr(32 + 4 * k, 2))
    a.I("v_pk_add_f32 v[34:35], v[34:35], %s" % vr(34 + 4 * k, 2))
a.I("v_cvt_pk_bf16_f32 v32, v32, v33")
a.I("v_cvt_pk_bf16_f32 v33, v34, v35")
a.I("buffer_store_dwordx2 v[32:33], v11, %s, 0 offen" % sr(SOUT, 4))
a.L("L_FIN_SKIP")
a.I("s_mov_b64 exec, s[4:5]")
if OPT["stamps"]:
    a.I("s_memrealtime %s" % sr(sSTAMP + 2 * 9, 2))
    a.I("s_waitcnt lgkmcnt(0) vmcnt(0)")
    a.I("s_lshl_b32 %s, %s, 3" % (sr(sT0), sr(sID)))
    a.I("s_add_u32 %s, %s, %s" % (sr(sT0), sr(sT0), sr(sWAVE)))
    a.I("s_lshl_b32 %s, %s, 6" % (sr(sT0), sr(sT0)))
    a.I("s_add_u32 %s, %s, 0x%x" % (sr(sT0), sr(sT0), WS_STAMP))
    a.I("v_mov_b32 v5, 0")
    a.I("s_mov_b64 exec, 1")
    for i in range(10):
        a.I("v_mov_b32 v4, %s" % sr(sSTAMP + 2 * i))
        a.I("buffer_store_dword v4, v5, %s, %s offen offset:%d" % (sr(SWS, 4), sr(sT0), i * 4))
    a.I("s_waitcnt vmcnt(0)")
    if OPT["dbgst"]:
        a.I("s_cmp_eq_u32 %s, 0" % sr(sWAVE))
        a.I("s_cbranch_scc0 L_END")
        a.I("s_mov_b32 s8, %s" % sr(pDBG)); a.I("s_mov_b32 s9, %s" % sr(pDBG + 1)); a.I("s_mov_b32 s10, 256"); a.I("s_mov_b32 s11, 0x20000")
        for i in range(10):
            a.I("v_mov_b32 v4, %s" % sr(sSTAMP + 2 * i))
            a.I("buffer_atomic_umax v4, v5, s[8:11], 0 offen offset:%d" % (i * 4))
        a.I("s_not_b32 %s, %s" % (sr(sT0), sr(sSTAMP)))
        a.I("v_mov_b32 v4, %s" % sr(sT0))
        a.I("buffer_atomic_umax v4, v5, s[8:11], 0 offen offset:60")
        a.I("s_waitcnt vmcnt(0)")
a.L("L_END")
a.I("s_endpgm")
final_lines = a.lines

tail = """
.section .rodata,"a"
.p2align 6
.amdhsa_kernel %s
  .amdhsa_next_free_vgpr 256
  .amdhsa_next_free_sgpr 96
  .amdhsa_accum_offset 256
  .amdhsa_group_segment_fixed_size 0
  .amdhsa_kernarg_size 64
  .amdhsa_user_sgpr_count 2
  .amdhsa_user_sgpr_kernarg_segment_ptr 1
  .amdhsa_system_sgpr_workgroup_id_x 1
.end_amdhsa_kernel
""" % KNAME

probs = []
for nm, ls in (("compute", entry_lines + compute_lines + final_lines), ("loadA", entry_lines + loadA + final_lines), ("loadB", entry_lines + loadB + final_lines)):
    probs += check_hazards(ls, nm)
for p in sorted(set(probs)): print("HAZARD", p)
print("barriers:", barriers)
print("free_after:", free_after)
out = "\n".join(hdr + entry_lines + loadA + loadB + compute_lines + final_lines) + "\n" + tail
open(sys.argv[1], "w").write(out)
print("lines", out.count("\n"))
```

```python
import sys, struct
from asmlib import *

KNAME = "standalone__gqa_block_cached__near_ridge_kernel"
OPT = dict(dump=0, stamps=0, ntkv=1, ntw=0, ntx=0, ntwo=0, rot=1, tlb=1, pfwo=1, prio=1, lsleep=1, look=2, pk=1, pfa=0, dga=3, initat=4, nowait=0, noload=0, lonly=0, sel=0, spread=1, ntpf=1, pfat=0, nox=0, now=0)
for a_ in sys.argv[2:]:
    k, v = a_.split("="); OPT[k] = int(v)

WS_EPOCH = 0x0
WS_FLAG0 = 0x1000
WS_IMG   = 0x100000
WS_SLAB  = 0x800000
SLAB_BYTES = 18432
WS_DUMP  = 0x2000000
WS_STAMP = 0x1800000
WS_SIZE  = 0x10000000

SX, SW, SK, SV, SWO, SWS, SOUT = 8, 12, 16, 20, 24, 28, 32
KARG = 36
sKS, sJQ, sB, sH, sWAVE, sLW, sTAG, sID = 52, 53, 54, 55, 56, 57, 58, 59
sT0, sT1, sT2, sT3 = 60, 61, 62, 63
sC = 64
sLW8K = 66
sA0, sA1, sA2, sA3, sA4 = 67, 68, 69, 70, 71
sSTAMP = 72
sKNOW = 92
sBUD = 93
sKNOW2 = 94
sI0, sI1, sI2 = 4, 5, 6

SLOT = lambda i: i * 16384
XB = 131072
MISC = 155648
F_LAND, F_PROG, F_QX, F_MX, F_OR, F_IMG = 0, 16, 32, 48, 64, 80
MXD = 1024; LD = 2048
LDS_BYTES = 163840
def f32bits(x): return struct.unpack("<I", struct.pack("<f", x))[0]
SCALE = (128 ** -0.5) * 1.4426950408889634

STEP = {}
for i in range(9): STEP["A%d" % i] = i
STEP["QS"] = 9
for t in range(8): STEP["K%d" % t] = 10 + t
for t in range(8): STEP["V%d" % t] = 18 + t
STEP["ORS"] = 26
for u in range(8): STEP["P%d" % u] = 27 + u
ADDR = {}; SIZE = {}
XG = [XB, XB + 8192, XB + 16384, SLOT(7), SLOT(7) + 8192, SLOT(6)]
for i in range(9):
    ADDR["W%d" % i] = SLOT(i % 6); ADDR["X%d" % i] = XG[i % 6]
for t, s_ in enumerate([3, 4, 7, 5, 6, 0, 2]): ADDR["K%d" % t] = SLOT(s_)
ADDR["K7"] = XB
ADDR["QS"] = SLOT(1)
for t, s_ in enumerate([1, 3, 4, 7, 5, 6, 0, 2]): ADDR["V%d" % t] = SLOT(s_)
for u, s_ in enumerate([1, 3, 4, 0, 1, 3, 7, 4]): ADDR["WO%d" % u] = SLOT(s_)
ADDR["WOR"] = XB
ADDR["ORS"] = SLOT(5)
IMG_ADDR = [SLOT(7), SLOT(2), SLOT(5), SLOT(6)]
alloc = []
def A_(name, addr, size, step): alloc.append((name, addr, size, step))
def need_of(addr, size, upto):
    n = 0
    for (nm, a0, s0, st) in alloc[:upto]:
        if a0 < addr + size and addr < a0 + s0: n = max(n, st + 1)
    return n
NEED = {}
def place(name, addr, size, step):
    NEED[name] = need_of(addr, size, len(alloc)); A_(name, addr, size, step)
for i in range(9):
    place("X%d" % i, ADDR["X%d" % i], 8192, STEP["A%d" % i]); place("W%d" % i, ADDR["W%d" % i], 16384, STEP["A%d" % i])
place("QS", ADDR["QS"], 16384, STEP["QS"])
for t in range(8): place("K%d" % t, ADDR["K%d" % t], 16384, STEP["K%d" % t])
for t in range(8): place("V%d" % t, ADDR["V%d" % t], 16384, STEP["V%d" % t])
place("WOR", ADDR["WOR"], 16384, STEP["P7"])
for u in range(4): place("WO%d" % u, ADDR["WO%d" % u], 16384, STEP["P%d" % u])
place("ORS", ADDR["ORS"], 32768, STEP["ORS"])
place("OI0", IMG_ADDR[0], 16384, STEP["P1"])
for n in range(1, 4): place("OI%d" % n, IMG_ADDR[n], 16384, STEP["P%d" % (2 * n + 1)])
for u in range(4, 8): place("WO%d" % u, ADDR["WO%d" % u], 16384, STEP["P%d" % u])
STEPNAME = {v: k for k, v in STEP.items()}
units = []
for i in range(9): units.append(("A%d" % i, max(NEED["X%d" % i], NEED["W%d" % i])))
for t in range(8): units.append(("K%d" % t, NEED["K%d" % t]))
for t in range(8): units.append(("V%d" % t, NEED["V%d" % t]))
if OPT["pfat"] == 0: units.append(("PF", 0))
else: units.insert(9, ("PF", 0))
units.append(("WOR", NEED["WOR"]))
for u in range(7): units.append(("WO%d" % u, NEED["WO%d" % u]))
units.append(("OI", max(NEED["OI1"], NEED["OI2"], NEED["OI3"])))
units.append(("WO7", NEED["WO7"]))
UIDX = {n: i for i, (n, _) in enumerate(units)}

hdr = ["; fused GQA kernel: Q-proj + attention + out-proj; 256 WGs x 512 threads (4 compute + 4 loader waves)",
       "; @launch grid=(256,1,1) block=(512,1,1) lds=%d" % LDS_BYTES,
       '.amdgcn_target "amdgcn-amd-amdhsa--gfx950"', ".text", ".globl %s" % KNAME, ".p2align 8",
       ".type %s,@function" % KNAME, "%s:" % KNAME]

a = Asm()
lbl = [0]
def newlbl(p):
    lbl[0] += 1; return "L_%s%d" % (p, lbl[0])
def stamp(idx):
    if OPT["stamps"] == 4 and idx >= 1: return
    if OPT["stamps"] == 3 and 1 <= idx <= 8:
        a.I("s_mov_b32 %s, %s" % (sr(sSTAMP + 2 * idx), sr(sBUD)))
    elif OPT["stamps"]:
        a.I("s_memrealtime %s" % sr(sSTAMP + 2 * idx, 2))
        a.I("s_waitcnt lgkmcnt(0)")

CST = []
CPAIRS = list(range(8, 28, 2)) + list(range(36, 52, 2)) + list(range(74, 92, 2))
def cst(name):
    if OPT["stamps"] == 4 and len(CST) < len(CPAIRS):
        a.I("s_memtime %s" % sr(CPAIRS[len(CST)], 2)); CST.append(name)
def spin(known, need, rd, nvals, vt, pre=None):
    ok = newlbl("OK"); sp = newlbl("SP")
    a.I("s_cmp_ge_u32 %s, %d" % (sr(known), need))
    a.I("s_cbranch_scc1 %s" % ok)
    if pre: pre()
    a.L(sp)
    a.I(rd)
    a.I("s_waitcnt lgkmcnt(0)")
    if nvals == 4:
        a.I("v_min3_u32 %s, %s, %s, %s" % (vr(vt), vr(vt), vr(vt + 1), vr(vt + 2)))
        a.I("v_min_u32 %s, %s, %s" % (vr(vt), vr(vt), vr(vt + 3)))
        a.I("s_nop 0")
    a.I("v_readfirstlane_b32 %s, %s" % (sr(known), vr(vt)))
    a.I("s_add_i32 %s, %s, -1" % (sr(sBUD), sr(sBUD)))
    a.I("s_cmp_lt_i32 %s, 0" % sr(sBUD))
    a.I("s_cbranch_scc1 %s" % ok)
    a.I("s_cmp_ge_u32 %s, %d" % (sr(known), need))
    a.I("s_cbranch_scc0 %s" % sp)
    a.L(ok)

a.I("s_cmp_ge_u32 s2, 256")
a.I("s_cbranch_scc1 L_END")
a.I("s_load_dwordx16 %s, s[0:1], 0" % sr(KARG, 16))
if OPT["stamps"]:
    a.I("s_memrealtime %s" % sr(sSTAMP, 2))
a.I("v_lshrrev_b32 v2, 6, v0")
a.I("v_and_b32 v1, 63, v0")
a.I("s_mov_b32 %s, s2" % sr(sID))
a.I("v_readfirstlane_b32 %s, v2" % sr(sWAVE))
a.I("s_and_b32 %s, s2, 7" % sr(sKS))
a.I("s_lshr_b32 %s, s2, 3" % sr(sJQ))
a.I("s_and_b32 %s, %s, 3" % (sr(sJQ), sr(sJQ)))
a.I("s_lshr_b32 %s, s2, 5" % sr(sB))
a.I("s_lshl_b32 %s, %s, 2" % (sr(sH), sr(sKS)))
a.I("s_add_u32 %s, %s, %s" % (sr(sH), sr(sH), sr(sJQ)))
a.I("v_lshrrev_b32 v2, 4, v1")
a.I("v_and_b32 v3, 15, v1")
a.I("s_mov_b32 %s, 0" % sr(sKNOW))
a.I("s_mov_b32 %s, 0" % sr(sKNOW2))
a.I("s_mov_b32 %s, 0x80000" % sr(sBUD))
a.I("s_cmp_lt_u32 %s, 4" % sr(sWAVE))
a.I("s_cbranch_scc1 L_COMPUTE")
entry_lines = a.lines

pX, pK, pV, pWQ, pWO, pOUT, pDBG, pWS = [KARG + 2 * i for i in range(8)]
def mk_srd(d, p, off_sgpr, size):
    if off_sgpr is None:
        a.I("s_mov_b32 %s, %s" % (sr(d), sr(p)))
        a.I("s_mov_b32 %s, %s" % (sr(d + 1), sr(p + 1)))
    else:
        a.I("s_add_u32 %s, %s, %s" % (sr(d), sr(p), sr(off_sgpr)))
        a.I("s_addc_u32 %s, %s, 0" % (sr(d + 1), sr(p + 1)))
    a.I("s_mov_b32 %s, 0x%x" % (sr(d + 2), size))
    a.I("s_mov_b32 %s, 0x00020000" % sr(d + 3))
def kv_srds():
    a.I("s_lshr_b32 %s, %s, 1" % (sr(sT0), sr(sH)))
    a.I("s_lshl_b32 %s, %s, 4" % (sr(sT1), sr(sB)))
    a.I("s_add_u32 %s, %s, %s" % (sr(sT0), sr(sT0), sr(sT1)))
    a.I("s_lshl_b32 %s, %s, 17" % (sr(sT0), sr(sT0)))
    mk_srd(SK, pK, sT0, 131072)
    mk_srd(SV, pV, sT0, 131072)
    a.I("s_mul_i32 %s, %s, 589824" % (sr(sT0), sr(sKS)))
    mk_srd(SWO, pWO, sT0, 589824)

a = Asm()
q = LdsQ(a)
def ds_read(kind, dst, n, addr, off):
    assert 0 <= off < 65536, off
    a.I("%s %s, %s offset:%d" % (kind, vr(dst, n), vr(addr), off))
    return q.issue()
def rd128(dst, addr, off): return ds_read("ds_read_b128", dst, 4, addr, off)
def rdtr(dst, addr, off): return ds_read("ds_read_b64_tr_b16", dst, 2, addr, off)
def ds_write(kind, addr, src, n, off):
    assert 0 <= off < 65536
    a.I("%s %s, %s offset:%d" % (kind, vr(addr), vr(src, n), off))
    return q.issue()
def mfma32(d, A, B, c0=False):
    a.I("v_mfma_f32_32x32x16_bf16 %s, %s, %s, %s" % (vr(d, 16), vr(A, 4), vr(B, 4), "0" if c0 else vr(d, 16)))
def mfma16(d, A, B, c0=False):
    a.I("v_mfma_f32_16x16x32_bf16 %s, %s, %s, %s" % (vr(d, 4), vr(A, 4), vr(B, 4), "0" if c0 else vr(d, 4)))

vFLP = 0; vFL = 2; vFLO = 3
aX = [4, 5, 6, 7]; aW = [8, 9]; aK = 10; aV = [11, 12, 13, 14]; aWO = [15, 16]; aOI = 17; aRA = 18; aRB = 19
tA, tB, tC, tD, tE, tF = 20, 21, 22, 23, 24, 25
vIMG, vL16 = 26, 27
vFT = 28
vM, vL, vP0, vP1 = 4, 5, 6, 7
LS = 8
RING = 32; QF = 64; KR = 96; OACC = 64; S = 128

def wait_land(unit):
    if OPT["nowait"] and unit != "OI": return
    spin(sKNOW, UIDX[unit] + 1, "ds_read_b128 %s, %s offset:%d" % (vr(vFT, 4), vr(vFL), F_LAND), 4, vFT)
def wait_prog(step):
    spin(sKNOW2, STEP[step] + 1, "ds_read_b128 %s, %s offset:%d" % (vr(vFT, 4), vr(vFL), F_PROG), 4, vFT)
def set_prog(step):
    a.I("v_mov_b32 %s, %d" % (vr(vFT), STEP[step] + 1))
    a.I("s_mov_b64 exec, 1")
    ds_write("ds_write_b32", vFLO, vFT, 1, F_PROG)
    a.I("s_mov_b64 exec, -1")
def set_flag(off):
    a.I("v_mov_b32 %s, 1" % vr(vFT))
    a.I("s_mov_b64 exec, 1")
    ds_write("ds_write_b32", vFLO, vFT, 1, off)
    a.I("s_mov_b64 exec, -1")
def wait_partner(off):
    a.I("s_mov_b32 %s, 0" % sr(sT3))
    spin(sT3, 1, "ds_read_b32 %s, %s offset:%d" % (vr(vFT), vr(vFLP), off), 1, vFT)
def wait_all(off):
    a.I("s_mov_b32 %s, 0" % sr(sT3))
    spin(sT3, 1, "ds_read_b128 %s, %s offset:%d" % (vr(vFT, 4), vr(vFL), off), 4, vFT)

a.L("L_COMPUTE")
if OPT["prio"]: a.I("s_setprio 1")
sQH = sA0
a.I("s_and_b32 %s, %s, 1" % (sr(sLW), sr(sWAVE)))
a.I("s_lshl_b32 %s, %s, 13" % (sr(sLW8K), sr(sLW)))
a.I("s_lshr_b32 %s, %s, 1" % (sr(sQH), sr(sWAVE)))
a.I("s_mov_b32 %s, 0x%x" % (sr(sC), f32bits(SCALE)))
a.I("s_mov_b32 %s, 0x%x" % (sr(sC + 1), f32bits(SCALE)))
hf, r_, c4, mh, l31, L4, L15 = 32, 33, 34, 35, 36, 43, 44
T1, T2, T3 = 37, 38, 39
a.I("v_mov_b32 %s, v2" % vr(L4))
a.I("v_mov_b32 %s, v3" % vr(L15))
a.I("v_lshrrev_b32 %s, 5, v1" % vr(hf))
a.I("v_lshrrev_b32 %s, 2, v3" % vr(r_))
a.I("v_and_b32 %s, 3, v1" % vr(c4))
a.I("v_and_b32 %s, 1, v2" % vr(mh))
a.I("v_and_b32 %s, 31, v1" % vr(l31))
a.I("s_waitcnt lgkmcnt(0)")
mk_srd(SWS, pWS, None, WS_SIZE)
mk_srd(SOUT, pOUT, None, 589824)
a.I("s_lshl_b32 %s, %s, 14" % (sr(sA1), sr(sID)))
a.I("s_add_u32 %s, %s, 0x%x" % (sr(sA1), sr(sA1), WS_IMG))
a.I("s_mul_i32 %s, %s, %d" % (sr(sA2), sr(sID), SLAB_BYTES))
a.I("s_mul_i32 %s, %s, 4608" % (sr(sT0), sr(sWAVE)))
a.I("s_add_u32 %s, %s, %s" % (sr(sA2), sr(sA2), sr(sT0)))
a.I("s_add_u32 %s, %s, 0x%x" % (sr(sA2), sr(sA2), WS_SLAB))
if OPT["tlb"]:
    kv_srds()
    a.I("v_mov_b32 v254, 0")
    a.I("s_mov_b64 exec, 1")
    l0 = newlbl("TW"); l1 = newlbl("TW"); l2 = newlbl("TW"); le = newlbl("TW")
    a.I("s_cmp_eq_u32 %s, 0" % sr(sWAVE)); a.I("s_cbranch_scc0 %s" % l0)
    a.I("buffer_load_dword v255, v254, %s, 0 offen nt" % sr(SK, 4))
    a.I("buffer_load_dword v255, v254, %s, 0 offen" % sr(SOUT, 4))
    a.I("s_branch %s" % le)
    a.L(l0)
    a.I("s_cmp_eq_u32 %s, 1" % sr(sWAVE)); a.I("s_cbranch_scc0 %s" % l1)
    a.I("buffer_load_dword v255, v254, %s, 0 offen nt" % sr(SV, 4))
    a.I("buffer_load_dword v255, v254, %s, %s offen sc1" % (sr(SWS, 4), sr(sA1)))
    a.I("buffer_load_dword v255, v254, %s, 0 offen sc1" % sr(SWS, 4))
    a.I("s_branch %s" % le)
    a.L(l1)
    a.I("s_cmp_eq_u32 %s, 2" % sr(sWAVE)); a.I("s_cbranch_scc0 %s" % l2)
    a.I("buffer_load_dword v255, v254, %s, 0 offen" % sr(SWO, 4))
    a.I("s_mov_b32 %s, 589820" % sr(sT0))
    a.I("buffer_load_dword v255, v254, %s, %s offen" % (sr(SWO, 4), sr(sT0)))
    a.I("s_branch %s" % le)
    a.L(l2)
    a.I("s_andn2_b32 %s, %s, 7" % (sr(sT1), sr(sID)))
    a.I("s_mul_i32 %s, %s, %d" % (sr(sT1), sr(sT1), SLAB_BYTES))
    a.I("s_add_u32 %s, %s, 0x%x" % (sr(sT1), sr(sT1), WS_SLAB))
    a.I("buffer_load_dword v255, v254, %s, %s offen sc1" % (sr(SWS, 4), sr(sT1)))
    a.I("s_add_u32 %s, %s, %d" % (sr(sT1), sr(sT1), SLAB_BYTES * 8 - 4))
    a.I("buffer_load_dword v255, v254, %s, %s offen sc1" % (sr(SWS, 4), sr(sT1)))
    a.L(le)
    a.I("s_mov_b64 exec, -1")
a.I("s_lshl_b32 %s, %s, 12" % (sr(sT0), sr(sQH)))
a.I("s_add_u32 %s, %s, %d" % (sr(sT0), sr(sT0), XB))
a.I("v_lshlrev_b32 %s, 7, %s" % (vr(T1), vr(l31)))
a.I("v_add_u32 %s, %s, %s" % (vr(T1), sr(sT0), vr(T1)))
a.I("v_bfe_u32 %s, %s, 1, 3" % (vr(T2), vr(l31)))
a.I("v_xor_b32 %s, %s, %s" % (vr(T2), vr(hf), vr(T2)))
a.I("v_lshlrev_b32 %s, 4, %s" % (vr(T2), vr(T2)))
a.I("v_add_u32 %s, %s, %s" % (vr(aX[0]), vr(T1), vr(T2)))
for s in range(1, 4):
    a.I("v_xor_b32 %s, %d, %s" % (vr(aX[s]), 32 * s, vr(aX[0])))
swp = 40
a.I("v_and_b32 %s, 1, %s" % (vr(T1), vr(c4)))
a.I("v_lshlrev_b32 %s, 1, %s" % (vr(T1), vr(T1)))
a.I("v_lshrrev_b32 %s, 1, %s" % (vr(T2), vr(c4)))
a.I("v_or_b32 %s, %s, %s" % (vr(swp), vr(T1), vr(T2)))
def tr_addr(dst, rowlane, cq, blk, extra_sgpr=None):
    a.I("v_xor_b32 %s, %s, %s" % (vr(T1), blk, vr(r_)))
    a.I("v_lshlrev_b32 %s, 6, %s" % (vr(T1), vr(T1)))
    a.I("v_lshrrev_b32 %s, 1, %s" % (vr(T2), vr(cq)))
    a.I("v_lshl_add_u32 %s, %s, 1, %s" % (vr(T2), vr(mh), vr(T2)))
    a.I("v_lshl_add_u32 %s, %s, 4, %s" % (vr(T1), vr(T2), vr(T1)))
    a.I("v_and_b32 %s, 1, %s" % (vr(T2), vr(cq)))
    a.I("v_lshl_add_u32 %s, %s, 3, %s" % (vr(T1), vr(T2), vr(T1)))
    a.I("v_lshl_add_u32 %s, %s, 8, %s" % (vr(dst), vr(rowlane), vr(T1)))
    if extra_sgpr is not None:
        a.I("v_add_u32 %s, %s, %s" % (vr(dst), sr(extra_sgpr), vr(dst)))
rowA = 41
a.I("v_lshl_add_u32 %s, %s, 3, %s" % (vr(rowA), vr(hf), vr(r_)))
for i in range(2):
    a.I("s_lshl_b32 %s, %s, 1" % (sr(sT0), sr(sLW)))
    a.I("s_add_u32 %s, %s, %d" % (sr(sT0), sr(sT0), i))
    tr_addr(aW[i], rowA, swp, sr(sT0))
a.I("v_xor_b32 %s, %s, %s" % (vr(T1), vr(hf), vr(L15)))
a.I("s_lshl_b32 %s, %s, 3" % (sr(sT0), sr(sLW)))
a.I("v_xor_b32 %s, %s, %s" % (vr(T1), sr(sT0), vr(T1)))
a.I("v_lshlrev_b32 %s, 4, %s" % (vr(T1), vr(T1)))
a.I("v_lshl_add_u32 %s, %s, 8, %s" % (vr(aK), vr(l31), vr(T1)))
a.I("v_add_u32 %s, %s, %s" % (vr(aK), sr(sLW8K), vr(aK)))
rowB = 42
a.I("v_lshl_add_u32 %s, %s, 2, %s" % (vr(rowB), vr(hf), vr(r_)))
for i in range(4):
    a.I("s_lshl_b32 %s, %s, 1" % (sr(sT0), sr(sLW)))
    a.I("s_xor_b32 %s, %s, %d" % (sr(sT0), sr(sT0), i))
    tr_addr(aV[i], rowB, c4, sr(sT0), sLW8K)
for i in range(2):
    a.I("s_lshl_b32 %s, %s, 1" % (sr(sT0), sr(sLW)))
    a.I("s_add_u32 %s, %s, %d" % (sr(sT0), sr(sT0), i))
    tr_addr(aWO[i], rowB, c4, sr(sT0))
a.I("v_lshlrev_b32 %s, 4, v1" % vr(vL16))
a.I("s_lshl_b32 %s, %s, 13" % (sr(sT0), sr(sQH)))
a.I("v_add_u32 %s, %s, %s" % (vr(aOI), sr(sT0), vr(vL16)))
a.I("v_lshrrev_b32 %s, 1, %s" % (vr(T1), vr(L4)))
a.I("v_lshlrev_b32 %s, 4, %s" % (vr(T1), vr(T1)))
a.I("v_lshl_add_u32 %s, %s, 2, %s" % (vr(T1), vr(mh), vr(T1)))
a.I("v_add_u32 %s, %s, %s" % (vr(T1), vr(T1), vr(r_)))
a.I("v_lshlrev_b32 %s, 5, %s" % (vr(T1), vr(T1)))
a.I("v_lshl_add_u32 %s, %s, 3, %s" % (vr(T1), vr(c4), vr(T1)))
a.I("v_add_u32 %s, 0x%x, %s" % (vr(aRA), ADDR["WOR"], vr(T1)))
a.I("v_lshrrev_b32 %s, 1, %s" % (vr(T1), vr(L4)))
a.I("v_lshlrev_b32 %s, 10, %s" % (vr(T1), vr(T1)))
a.I("v_lshl_add_u32 %s, %s, 5, %s" % (vr(T2), vr(mh), vr(L15)))
a.I("v_lshl_add_u32 %s, %s, 4, %s" % (vr(T1), vr(T2), vr(T1)))
a.I("s_lshl_b32 %s, %s, 13" % (sr(sT0), sr(sQH)))
a.I("s_lshl_b32 %s, %s, 8" % (sr(sT1), sr(sLW)))
a.I("s_add_u32 %s, %s, %s" % (sr(sT0), sr(sT0), sr(sT1)))
a.I("v_add_u32 %s, %s, %s" % (vr(aRB), sr(sT0), vr(T1)))
a.I("s_lshl_b32 %s, %s, 12" % (sr(sT0), sr(sLW)))
a.I("v_add_u32 %s, %s, %s" % (vr(vIMG), sr(sT0), vr(aOI)))
a.I("v_mov_b32 %s, 0x%x" % (vr(vFL), MISC))
a.I("s_lshl_b32 %s, %s, 2" % (sr(sT0), sr(sWAVE)))
a.I("s_add_u32 %s, %s, 0x%x" % (sr(sT0), sr(sT0), MISC))
a.I("v_mov_b32 %s, %s" % (vr(vFLO), sr(sT0)))
a.I("s_xor_b32 %s, %s, 4" % (sr(sT0), sr(sT0)))
a.I("v_mov_b32 %s, %s" % (vr(vFLP), sr(sT0)))
a.I("v_add_u32 %s, 0x%x, %s" % (vr(tA), SLOT(3), vr(aW[0])))
a.I("v_add_u32 %s, 0x%x, %s" % (vr(tB), SLOT(3), vr(aW[1])))
aX2 = [tC, tD, tE, tF]
for s_ in range(4):
    a.I("v_subrev_u32 %s, 0x%x, %s" % (vr(aX2[s_]), XB - SLOT(6), vr(aX[s_])))
a.I("s_barrier")
if OPT["lonly"]:
    a.I("v_mov_b32 %s, 1000" % vr(vFT))
    a.I("ds_write_b32 %s, %s offset:%d" % (vr(vFLO), vr(vFT), F_PROG))
    a.I("s_waitcnt lgkmcnt(0) vmcnt(0)")
    a.I("s_endpgm")
stamp(1)

def dump_regs(base, n, slot_index):
    a.I("s_lshl_b32 %s, %s, 2" % (sr(sT0), sr(sID)))
    a.I("s_add_u32 %s, %s, %s" % (sr(sT0), sr(sT0), sr(sWAVE)))
    a.I("s_mul_i32 %s, %s, %d" % (sr(sT0), sr(sT0), n * 256))
    a.I("s_add_u32 %s, %s, 0x%x" % (sr(sT0), sr(sT0), WS_DUMP + slot_index * 0x2000000))
    for j in range(0, n, 4):
        a.I("buffer_store_dwordx4 %s, %s, %s, %s offen" % (vr(base + j, 4), vr(vL16), sr(SWS, 4), sr(sT0)))
        a.I("s_add_u32 %s, %s, 1024" % (sr(sT0), sr(sT0)))
    a.I("s_waitcnt vmcnt(0)")

a.C("==== phase A ====")
QACC = 128; BR = KR; NG = 36
tick = {}
def a_reads(n, part):
    i, s = divmod(n, 4)
    xa = ADDR["X%d" % i]; wo_ = ADDR["W%d" % i]
    if xa >= XB: xo = xa - XB; ax = aX
    else: xo = xa - SLOT(6); ax = aX2
    hi = wo_ >= SLOT(3)
    aw = [tA, tB] if hi else aW
    if hi: wo_ -= SLOT(3)
    if part == 0:
        if s == 0:
            wait_land("A%d" % i)
            if i % 2 == 0: cst("A%d" % i)
        rd128(BR + 4 * (n % 4), ax[s], xo)
        base = RING + 8 * (n % 4); o = wo_ + 4096 * s
        rdtr(base, aw[0], o)
        tick[(n, 0)] = rdtr(base + 2, aw[0], o + 1024)
    else:
        base = RING + 8 * (n % 4) + 4; o = wo_ + 4096 * s
        rdtr(base, aw[1], o)
        tick[(n, 1)] = rdtr(base + 2, aw[1], o + 1024)
        if s == 3: set_prog("A%d" % i)
DG = OPT["dga"]
for n in range(DG):
    a_reads(n, 0); a_reads(n, 1)
for n in range(NG):
    q.wait(tick[(n, 0)])
    mfma32(QACC, RING + 8 * (n % 4), BR + 4 * (n % 4), c0=(n == 0))
    if n + DG < NG: a_reads(n + DG, 0)
    q.wait(tick[(n, 1)])
    mfma32(QACC + 16, RING + 8 * (n % 4) + 4, BR + 4 * (n % 4), c0=(n == 0))
    if n + DG < NG: a_reads(n + DG, 1)
stamp(2)
cst("Aend")
a.I("s_lshl_b32 %s, %s, 12" % (sr(sT0), sr(sWAVE)))
a.I("s_add_u32 %s, %s, %d" % (sr(sT0), sr(sT0), ADDR["QS"]))
a.I("v_add_u32 %s, %s, %s" % (vr(tA), sr(sT0), vr(vL16)))
a.I("v_xor_b32 %s, 0x1000, %s" % (vr(tB), vr(tA)))
wait_prog(STEPNAME[NEED["QS"] - 1])
a.I("s_waitcnt vmcnt(0)")
a.nop(6)
if OPT["dump"] == 1: dump_regs(QACC, 32, 0)
for t in range(2):
    for j in range(8):
        a.I("v_cvt_pk_bf16_f32 %s, %s, %s" % (vr(QF + 8 * t + j), vr(QACC + 16 * t + 2 * j), vr(QACC + 16 * t + 2 * j + 1)))
for sgm in range(4):
    ds_write("ds_write_b128", tA, QF + 4 * sgm, 4, sgm * 1024)
set_flag(F_QX)
a.I("v_mov_b32 %s, 0xff800000" % vr(vM))
wait_partner(F_QX)
for sgm in range(4):
    rd128(QF + 16 + 4 * sgm, tB, sgm * 1024)
set_prog("QS")

a.C("==== phase K ====")
D = 7
tick = {}
def max_ops(t):
    return ["v_max3_f32 %s, %s, %s, %s" % (vr(vM), vr(S + 16 * t + 2 * j), vr(S + 16 * t + 2 * j + 1), vr(vM)) for j in range(8)]
pend = []
for n in range(64 + D):
    m = n - D
    if m >= 0:
        t, s = divmod(m, 8)
        q.wait(tick[m])
        mfma32(S + 16 * t, KR + 4 * (m % 8), QF + 4 * s, c0=(s == 0))
        if s == 2 and t >= 1: pend = max_ops(t - 1)
        if s >= 3 and pend:
            a.I(pend.pop(0)); a.I(pend.pop(0))
    if n < 64:
        t, s = divmod(n, 8)
        if s == 0:
            wait_land("K%d" % t)
            if t % 4 == 0 or t == 7: cst("K%d" % t)
            a.I("v_add_u32 %s, 0x%x, %s" % (vr(tC), ADDR["K%d" % t], vr(aK)))
        tmp = tD if n % 2 == 0 else tE
        if s == 0:
            tick[n] = rd128(KR + 4 * (n % 8), tC, 0)
        else:
            a.I("v_xor_b32 %s, %d, %s" % (vr(tmp), 32 * s, vr(tC)))
            tick[n] = rd128(KR + 4 * (n % 8), tmp, 0)
        if s == 7: set_prog("K%d" % t)
assert not pend
stamp(3)
cst("Kend")
a.I("s_lshl_b32 %s, %s, 8" % (sr(sT0), sr(sWAVE)))
a.I("s_add_u32 %s, %s, %d" % (sr(sT0), sr(sT0), MISC + MXD))
a.I("v_lshlrev_b32 %s, 2, v1" % vr(tA))
a.I("v_add_u32 %s, %s, %s" % (vr(tA), sr(sT0), vr(tA)))
a.I("v_xor_b32 %s, 0x100, %s" % (vr(tB), vr(tA)))
a.nop(8)
for s_ in max_ops(7): a.I(s_)
if OPT["dump"] == 2: dump_regs(S, 128, 0)

a.C("==== softmax ====")
a.I("v_mov_b32 %s, %s" % (vr(tC), vr(vM)))
a.nop(2)
a.I("v_permlane32_swap_b32 %s, %s" % (vr(tC), vr(vM)))
a.I("v_max_f32 %s, %s, %s" % (vr(vM), vr(tC), vr(vM)))
ds_write("ds_write_b32", tA, vM, 1, 0)
set_flag(F_MX)
a.I("v_mov_b32 %s, 0" % vr(LS))
a.I("v_mov_b32 %s, 0" % vr(LS + 1))
wait_partner(F_MX)
tk = ds_read("ds_read_b32", tC, 1, tB, 0)
q.wait(tk)
a.I("v_max_f32 %s, %s, %s" % (vr(vM), vr(tC), vr(vM)))
a.I("v_mul_f32 %s, %s, %s" % (vr(vP0), sr(sC), vr(vM)))
a.I("v_sub_f32 %s, 0, %s" % (vr(vP0), vr(vP0)))
a.I("v_mov_b32 %s, %s" % (vr(vP1), vr(vP0)))
for t in range(8):
    b0 = S + 16 * t
    for j in range(8):
        a.I("v_pk_fma_f32 %s, %s, %s, %s" % (vr(b0 + 2 * j, 2), vr(b0 + 2 * j, 2), sr(sC, 2), vr(vP0, 2)))
    for j in range(16):
        a.I("v_exp_f32 %s, %s" % (vr(b0 + j), vr(b0 + j)))
    a.I("s_nop 0")
    for j in range(8):
        a.I("v_pk_add_f32 %s, %s, %s" % (vr(LS, 2), vr(LS, 2), vr(b0 + 2 * j, 2)))
    for j in range(8):
        a.I("v_cvt_pk_bf16_f32 %s, %s, %s" % (vr(b0 + j), vr(b0 + 2 * j), vr(b0 + 2 * j + 1)))
a.I("v_add_f32 %s, %s, %s" % (vr(vL), vr(LS), vr(LS + 1)))
a.I("v_mov_b32 %s, %s" % (vr(tC), vr(vL)))
a.nop(2)
a.I("v_permlane32_swap_b32 %s, %s" % (vr(tC), vr(vL)))
a.I("v_add_f32 %s, %s, %s" % (vr(vL), vr(tC), vr(vL)))
ds_write("ds_write_b32", tA, vL, 1, LD - MXD)
stamp(4)
cst("SMend")

a.C("==== phase V ====")
tick = {}
tV = [tC, tD, tE, tF]
for n in range(64 + D):
    m = n - D
    if m >= 0:
        t, rem = divmod(m, 8); u, ai = divmod(rem, 4)
        q.wait(tick[m])
        mfma32(OACC + 16 * ai, RING + 4 * (m % 8), S + 16 * t + 4 * u, c0=(m < 4))
    if n < 64:
        t, rem = divmod(n, 8); u, ai = divmod(rem, 4)
        if rem == 0:
            wait_land("V%d" % t)
            if t % 4 == 0 or t == 7: cst("V%d" % t)
            for i in range(4):
                a.I("v_add_u32 %s, 0x%x, %s" % (vr(tV[i]), ADDR["V%d" % t], vr(aV[i])))
        o = 4096 * u
        rdtr(RING + 4 * (n % 8), tV[ai], o)
        tick[n] = rdtr(RING + 4 * (n % 8) + 2, tV[ai], o + 2048)
        if rem == 7: set_prog("V%d" % t)
stamp(5)
cst("Vend")
a.C("==== O reduce ====")
a.I("s_lshl_b32 %s, %s, 13" % (sr(sT0), sr(sWAVE)))
a.I("s_add_u32 %s, %s, %d" % (sr(sT0), sr(sT0), ADDR["ORS"]))
a.I("v_add_u32 %s, %s, %s" % (vr(tA), sr(sT0), vr(vL16)))
a.I("v_xor_b32 %s, 0x2000, %s" % (vr(tA + 0 + 5 - 5 + 4), vr(tA)))
a.I("v_add_u32 %s, 0x%x, %s" % (vr(tC), IMG_ADDR[0], vr(vIMG)))
assert (ADDR["ORS"] // 8192) % 2 == 0
wait_prog(STEPNAME[max(NEED["ORS"], NEED["OI0"]) - 1])
a.nop(8)
for j in range(8):
    ds_write("ds_write_b128", tA, OACC + 32 + 4 * j, 4, j * 1024)
set_flag(F_OR)
wait_partner(F_OR)
cst("ORp")
tk = []
tkl = ds_read("ds_read_b32", vP0, 1, tB, LD - MXD)
for j in range(8):
    tk.append(rd128(RING + 4 * j, tE, j * 1024))
set_prog("ORS")
q.wait(tkl)
a.I("v_add_f32 %s, %s, %s" % (vr(vL), vr(vP0), vr(vL)))
a.I("v_rcp_f32 %s, %s" % (vr(vL), vr(vL)))
a.I("s_nop 0")
a.I("v_mov_b32 %s, %s" % (vr(vP0), vr(vL)))
a.I("v_mov_b32 %s, %s" % (vr(vP1), vr(vL)))
PK = 96
for j in range(8):
    q.wait(tk[j])
    for h2 in range(2):
        d = OACC + 4 * j + 2 * h2
        a.I("v_pk_add_f32 %s, %s, %s" % (vr(d, 2), vr(d, 2), vr(RING + 4 * j + 2 * h2, 2)))
        a.I("v_pk_mul_f32 %s, %s, %s" % (vr(d, 2), vr(d, 2), vr(vP0, 2)))
    for h2 in range(2):
        d = OACC + 4 * j + 2 * h2
        a.I("v_cvt_pk_bf16_f32 %s, %s, %s" % (vr(PK + 2 * j + h2), vr(d), vr(d + 1)))
    if j % 2 == 1:
        jj = j // 2
        a.I("buffer_store_dwordx4 %s, %s, %s, %s offen offset:%d sc0 sc1" % (vr(PK + 4 * jj, 4), vr(vIMG), sr(SWS, 4), sr(sA1), jj * 1024))
        ds_write("ds_write_b128", tC, PK + 4 * jj, 4, jj * 1024)
set_flag(F_IMG)
if OPT["dump"] == 3: dump_regs(OACC, 32, 0)
stamp(6)
cst("ORend")

a.C("==== phase P ====")
PACC = 128; RACC = 160; RA = [164, 168]; RB = [172, 176]
BR = 112
tick = {}
tWO = [tC, tD]; tOI = tE; tRB = tF
def p_reads(n, part):
    step, kk = divmod(n, 4)
    hn, hh = divmod(step, 2)
    blk = 2 * hh + (kk >> 1); u = kk & 1
    wt = "WO%d" % step
    if part == 0:
        if kk == 0:
            if step == 0:
                wait_all(F_IMG)
                wait_land("WO0")
            else:
                wait_land(wt)
            if hh == 0 and hn > 0: wait_land("OI")
            cst("P%d" % step)
            for i in range(2):
                a.I("v_add_u32 %s, 0x%x, %s" % (vr(tWO[i]), ADDR[wt], vr(aWO[i])))
            if hh == 0:
                a.I("v_add_u32 %s, 0x%x, %s" % (vr(tOI), IMG_ADDR[hn], vr(aOI)))
                a.I("v_add_u32 %s, 0x%x, %s" % (vr(tRB), IMG_ADDR[hn], vr(aRB)))
        rd128(BR + 4 * (n % 4), tOI, (blk * 2 + u) * 1024)
        base = RING + 8 * (n % 4); o = 8192 * (kk >> 1) + 4096 * u
        rdtr(base, tWO[0], o)
        tick[(n, 0)] = rdtr(base + 2, tWO[0], o + 2048)
    else:
        base = RING + 8 * (n % 4) + 4; o = 8192 * (kk >> 1) + 4096 * u
        rdtr(base, tWO[1], o)
        tick[(n, 1)] = rdtr(base + 2, tWO[1], o + 2048)
        if u == 0:
            ri = (n // 2) % 2
            o = hn * 4096 + blk * 1024
            rdtr(RA[ri], aRA, o)
            rdtr(RA[ri] + 2, aRA, o + 256)
            tick[(n, 2)] = rd128(RB[ri], tRB, blk * 2048)
        if kk == 3 and step < 3: set_prog("P%d" % step)
DG = 2; NG = 32
for n in range(DG):
    p_reads(n, 0); p_reads(n, 1)
for n in range(NG):
    q.wait(tick[(n, 0)])
    mfma32(PACC, RING + 8 * (n % 4), BR + 4 * (n % 4), c0=(n == 0))
    if n + DG < NG: p_reads(n + DG, 0)
    q.wait(tick[(n, 1)])
    mfma32(PACC + 16, RING + 8 * (n % 4) + 4, BR + 4 * (n % 4), c0=(n == 0))
    if n % 2 == 0:
        q.wait(tick[(n, 2)])
        ri = (n // 2) % 2
        mfma16(RACC, RA[ri], RB[ri], c0=(n == 0))
    if n + DG < NG: p_reads(n + DG, 1)
stamp(7)
cst("Pend")
a.I("v_lshrrev_b32 v82, 1, %s" % vr(vL16))
a.I("s_add_u32 %s, %s, 4096" % (sr(sT0), sr(sA2)))
a.nop(10)
for j in range(16):
    a.I("v_cvt_pk_bf16_f32 %s, %s, %s" % (vr(64 + j), vr(PACC + 2 * j), vr(PACC + 2 * j + 1)))
    if j % 4 == 3:
        a.I("buffer_store_dwordx4 %s, %s, %s, %s offen offset:%d sc0 sc1" % (vr(64 + j - 3, 4), vr(vL16), sr(SWS, 4), sr(sA2), (j // 4) * 1024))
a.I("v_cvt_pk_bf16_f32 v80, %s, %s" % (vr(RACC), vr(RACC + 1)))
a.I("v_cvt_pk_bf16_f32 v81, %s, %s" % (vr(RACC + 2), vr(RACC + 3)))
a.I("buffer_store_dwordx2 v[80:81], v82, %s, %s offen sc0 sc1" % (sr(SWS, 4), sr(sT0)))
stamp(8)
a.I("s_branch L_FINAL")
compute_lines = a.lines

a = Asm()
a.L("L_LOADER")
T1, T2 = 30, 31
vX = [4, 5]; vW = [6, 7, 8, 9]; vK = [10, 11, 12, 13]; vV = 14; vWO = [15, 16, 17, 18]; vWOR = [19, 20, 21, 22]; vLn = 23
vFLl = 24; vFLOl = 25
vFTl = 104
sL4 = sLW
a.I("s_sub_u32 %s, %s, 4" % (sr(sL4), sr(sWAVE)))
a.I("s_lshl_b32 %s, %s, 12" % (sr(sLW8K), sr(sL4)))
a.I("v_lshlrev_b32 %s, 2, v1" % vr(T1))
a.I("v_add_u32 %s, 0x%x, %s" % (vr(T1), MISC, vr(T1)))
a.I("v_mov_b32 %s, 0" % vr(T2))
a.I("s_cmp_eq_u32 %s, 0" % sr(sL4))
a.I("s_cbranch_scc0 L_NOINIT")
a.I("ds_write_b32 %s, %s" % (vr(T1), vr(T2)))
a.L("L_NOINIT")
for i in range(2):
    a.I("v_lshrrev_b32 %s, 3, v1" % vr(T1))
    a.I("v_mul_u32_u24 %s, 1152, %s" % (vr(T1), vr(T1)))
    a.I("v_and_b32 %s, 7, v1" % vr(T2))
    a.I("v_xor_b32 %s, %s, v2" % (vr(T2), vr(T2)))
    if i & 1: a.I("v_xor_b32 %s, 4, %s" % (vr(T2), vr(T2)))
    a.I("v_lshl_add_u32 %s, %s, 4, %s" % (vr(T1), vr(T2), vr(T1)))
    a.I("v_add_u32 %s, %d, %s" % (vr(vX[i]), i * 8192, vr(T1)))
a.I("v_lshlrev_b32 %s, 2, v2" % vr(T2))
a.I("v_xor_b32 %s, %s, v3" % (vr(T2), vr(T2)))
a.I("v_lshlrev_b32 %s, 4, %s" % (vr(T2), vr(T2)))
a.I("v_lshl_add_u32 %s, v2, 13, %s" % (vr(T1), vr(T2)))
for i in range(4):
    a.I("v_add_u32 %s, %d, %s" % (vr(vW[i]), i * 31744, vr(T1)))
a.I("s_mul_i32 %s, %s, 18432" % (sr(sA0), sr(sL4)))
a.I("s_lshl_b32 %s, %s, 17" % (sr(sA1), sr(sL4)))
a.I("s_waitcnt lgkmcnt(0)")
a.I("s_mul_i32 %s, %s, 73728" % (sr(sT0), sr(sB)))
mk_srd(SX, pX, sT0, 73728)
a.I("s_lshl_b32 %s, %s, 8" % (sr(sT0), sr(sH)))
mk_srd(SW, pWQ, sT0, 575 * 8192 + 256)
issued = []
published = [0]
if OPT["pfa"]:
    a.I("s_lshl_b32 %s, %s, 2" % (sr(sT0), sr(sJQ)))
    a.I("s_add_u32 %s, %s, %s" % (sr(sT0), sr(sT0), sr(sL4)))
    a.I("s_mul_i32 %s, %s, %d" % (sr(sT0), sr(sT0), 36 * 128))
    a.I("v_lshlrev_b32 v40, 7, v1")
    a.I("v_lshrrev_b32 v42, 1, v1")
    a.I("v_lshlrev_b32 v42, 13, v42")
    a.I("v_and_b32 v43, 1, v1")
    a.I("v_lshl_add_u32 v42, v43, 7, v42")
    a.I("s_mul_i32 %s, %s, 72" % (sr(sT1), sr(sB)))
    a.I("s_mul_i32 %s, %s, 18" % (sr(sT2), sr(sL4)))
    a.I("s_add_u32 %s, %s, %s" % (sr(sT1), sr(sT1), sr(sT2)))
    a.I("s_lshl_b32 %s, %s, 13" % (sr(sT1), sr(sT1)))
    a.I("s_mov_b32 exec_lo, -1"); a.I("s_mov_b32 exec_hi, 0xf")
    if OPT["pfa"] == 1:
        a.I("buffer_load_dword v41, v42, %s, %s offen%s" % (sr(SW, 4), sr(sT1), " nt" if OPT["ntpf"] else ""))
    if OPT["pfa"] == 3:
        a.I("s_mov_b32 %s, %s" % (sr(sI2), sr(sT0)))
    else:
        a.I("buffer_load_dword v41, v40, %s, %s offen%s" % (sr(SX, 4), sr(sT0), " nt" if OPT["ntpf"] else ""))
    a.I("s_mov_b64 exec, -1")
if OPT["pk"]:
    a.I("s_and_b32 %s, %s, 1" % (sr(sT0), sr(sJQ)))
    a.I("s_cmp_eq_u32 %s, 1" % sr(sT0))
    a.I("s_cbranch_scc0 L_NOPK")
    a.I("s_lshr_b32 %s, %s, 1" % (sr(sT0), sr(sH)))
    a.I("s_lshl_b32 %s, %s, 4" % (sr(sT1), sr(sB)))
    a.I("s_add_u32 %s, %s, %s" % (sr(sT0), sr(sT0), sr(sT1)))
    a.I("s_lshl_b32 %s, %s, 17" % (sr(sT0), sr(sT0)))
    mk_srd(SK, pK, sT0, 131072)
    a.I("v_lshlrev_b32 v40, 7, v1")
    a.I("s_lshl_b32 %s, %s, 14" % (sr(sT0), sr(sL4)))
    a.I("s_add_u32 %s, %s, 65536" % (sr(sT0), sr(sT0)))
    for j in range(OPT["pk"] * 2):
        a.I("buffer_load_dword v41, v40, %s, %s offen nt" % (sr(SK, 4), sr(sT0)))
        a.I("s_add_u32 %s, %s, 8192" % (sr(sT0), sr(sT0)))
    a.L("L_NOPK")
def dma(voff, srd, soff, imm, flags=""):
    if OPT["noload"]:
        a.I("s_nop 0"); return
    a.I("buffer_load_dwordx4 %s, %s, %s offen offset:%d%s lds" % (vr(voff), sr(srd, 4), sr(soff), imm, flags))
def late_setup():
    a.I("v_lshl_add_u32 %s, v2, 8, %s" % (vr(vV), vr(T2)))
    a.I("v_mul_u32_u24 %s, 1152, v2" % vr(T1))
    a.I("v_add_u32 %s, %s, %s" % (vr(T1), vr(T1), vr(T2)))
    for i in range(4):
        a.I("v_add_u32 %s, %d, %s" % (vr(vWO[i]), i * 3584, vr(T1)))
    for i in range(4):
        a.I("v_add_u32 %s, %d, v2" % (vr(T1), 4 * i))
        a.I("v_xor_b32 %s, %s, v3" % (vr(T1), vr(T1)))
        a.I("v_lshlrev_b32 %s, 4, %s" % (vr(T1), vr(T1)))
        a.I("v_lshl_add_u32 %s, v2, 8, %s" % (vr(vK[i]), vr(T1)))
    a.I("v_lshrrev_b32 %s, 1, v1" % vr(T1))
    a.I("v_mul_u32_u24 %s, 1152, %s" % (vr(T1), vr(T1)))
    a.I("v_and_b32 %s, 1, v1" % vr(T2))
    a.I("v_lshl_add_u32 %s, %s, 4, %s" % (vr(T1), vr(T2), vr(T1)))
    for i in range(4):
        a.I("v_add_u32 %s, %d, %s" % (vr(vWOR[i]), i * 35840, vr(T1)))
    a.I("v_lshlrev_b32 %s, 4, v1" % vr(vLn))
    kv_srds()
    mk_srd(SOUT, pOUT, None, 589824)
    if OPT["rot"]:
        a.I("s_and_b32 %s, %s, 1" % (sr(sT0), sr(sJQ)))
        a.I("s_lshl_b32 %s, %s, 16" % (sr(sT0), sr(sT0)))
        a.I("s_add_u32 %s, %s, %s" % (sr(sA3), sr(sT0), sr(sLW8K)))
    else:
        a.I("s_mov_b32 %s, %s" % (sr(sA3), sr(sLW8K)))
    a.I("s_xor_b32 %s, %s, 0x10000" % (sr(sA4), sr(sA3)))
    a.I("v_mov_b32 %s, 0x%x" % (vr(vFLl), MISC))
    a.I("s_lshl_b32 %s, %s, 2" % (sr(sT0), sr(sL4)))
    a.I("s_add_u32 %s, %s, 0x%x" % (sr(sT0), sr(sT0), MISC + F_LAND))
    a.I("v_mov_b32 %s, %s" % (vr(vFLOl), sr(sT0)))
init_ops = []
def init_setup():
    mk_srd(SWS, pWS, None, WS_SIZE)
    for j in range(4): a.I("v_mov_b32 v%d, -1" % (32 + j))
    a.I("v_lshlrev_b32 v36, 4, v1")
    a.I("v_lshlrev_b32 v37, 3, v1")
    a.I("s_lshl_b32 %s, %s, 14" % (sr(sI0), sr(sID)))
    a.I("s_add_u32 %s, %s, %s" % (sr(sI0), sr(sI0), sr(sLW8K)))
    a.I("s_add_u32 %s, %s, 0x%x" % (sr(sI0), sr(sI0), WS_IMG))
    a.I("s_mul_i32 %s, %s, %d" % (sr(sI1), sr(sID), SLAB_BYTES))
    a.I("s_mul_i32 %s, %s, 4608" % (sr(sT1), sr(sL4)))
    a.I("s_add_u32 %s, %s, %s" % (sr(sI1), sr(sI1), sr(sT1)))
    a.I("s_add_u32 %s, %s, 0x%x" % (sr(sI1), sr(sI1), WS_SLAB))
    a.I("s_add_u32 %s, %s, 4096" % (sr(sI2), sr(sI1)))
    a.I("s_lshl_b32 %s, %s, 7" % (sr(sT0), sr(sB)))
    a.I("v_mov_b32 v38, %s" % sr(sT0))
    a.I("buffer_load_dword v39, v38, %s, 0 offen sc1" % sr(SWS, 4)); issued.append("EPOCH")
    for j in range(4):
        init_ops.append("buffer_store_dwordx4 v[32:35], v36, %s, %s offen offset:%d sc0 sc1" % (sr(SWS, 4), sr(sI0), j * 1024))
    for j in range(4):
        init_ops.append("buffer_store_dwordx4 v[32:35], v36, %s, %s offen offset:%d sc0 sc1" % (sr(SWS, 4), sr(sI1), j * 1024))
    init_ops.append("buffer_store_dwordx2 v[32:33], v37, %s, %s offen sc0 sc1" % (sr(SWS, 4), sr(sI2)))
def init_emit(n):
    for _ in range(n):
        if init_ops:
            a.I(init_ops.pop(0)); issued.append("INIT")
def issue(unit):
    a.C("issue " + unit)
    if unit[0] == "A":
        i = int(unit[1:])
        a.I("s_add_u32 %s, %s, %d" % (sr(sT0), sr(sB), i))
        a.I("s_cmp_ge_u32 %s, 9" % sr(sT0))
        a.I("s_cselect_b32 %s, 9, 0" % sr(sT1))
        a.I("s_sub_u32 %s, %s, %s" % (sr(sA2), sr(sT0), sr(sT1)))
        a.I("s_lshl_b32 %s, %s, 7" % (sr(sT0), sr(sA2)))
        a.I("s_lshr_b32 %s, %s, 1" % (sr(sT1), sr(sLW8K)))
        a.I("s_add_u32 m0, %s, %d" % (sr(sT1), ADDR["X%d" % i]))
        a.I("s_add_u32 %s, %s, %s" % (sr(sT0), sr(sT0), sr(sA0)))
        for j in range(2):
            if OPT["nox"]: continue
            dma(vX[j], SX, sT0, j * 1024, " nt" if OPT["ntx"] else ""); issued.append(unit)
        a.I("s_lshl_b32 %s, %s, 19" % (sr(sT0), sr(sA2)))
        a.I("s_add_u32 m0, %s, %d" % (sr(sLW8K), ADDR["W%d" % i]))
        a.I("s_add_u32 %s, %s, %s" % (sr(sT0), sr(sT0), sr(sA1)))
        for j in range(4):
            if OPT["now"]: continue
            dma(vW[j], SW, sT0, j * 1024, " nt" if OPT["ntw"] else ""); issued.append(unit)
    elif unit == "PF":
        if OPT["pfwo"]:
            a.I("s_lshl_b32 %s, %s, 2" % (sr(sT0), sr(sB)))
            a.I("s_add_u32 %s, %s, %s" % (sr(sT0), sr(sT0), sr(sJQ)))
            a.I("s_lshl_b32 %s, %s, 2" % (sr(sT0), sr(sT0)))
            a.I("s_add_u32 %s, %s, %s" % (sr(sT0), sr(sT0), sr(sL4)))
            a.I("s_mul_i32 %s, %s, %d" % (sr(sT0), sr(sT0), 36 * 128))
            a.I("v_lshlrev_b32 v40, 7, v1")
            a.I("s_mov_b32 exec_lo, -1"); a.I("s_mov_b32 exec_hi, 0xf")
            a.I("buffer_load_dword v41, v40, %s, %s offen%s" % (sr(SWO, 4), sr(sT0), " nt" if OPT["ntpf"] else "")); issued.append(unit)
            a.I("s_mov_b64 exec, -1")
    elif unit == "WOR":
        a.I("s_add_u32 %s, %s, %s" % (sr(sT0), sr(sL4), sr(sJQ)))
        a.I("s_and_b32 %s, %s, 3" % (sr(sT0), sr(sT0)))
        a.I("s_mul_i32 %s, %s, %d" % (sr(sT0), sr(sT0), 128 * 1152))
        a.I("s_lshl_b32 %s, %s, 5" % (sr(sT1), sr(sJQ)))
        a.I("s_add_u32 %s, %s, %s" % (sr(sT0), sr(sT0), sr(sT1)))
        a.I("s_add_u32 m0, %s, %d" % (sr(sLW8K), ADDR["WOR"]))
        a.I("s_add_u32 %s, %s, 1024" % (sr(sT0), sr(sT0)))
        for j in range(4):
            dma(vWOR[j], SWO, sT0, j * 1024, " nt" if OPT["ntwo"] else ""); issued.append(unit)
    elif unit[0:2] == "WO":
        u = int(unit[2:])
        a.I("s_lshl_b32 %s, %s, 1" % (sr(sT0), sr(sJQ)))
        a.I("s_add_u32 %s, %s, %d" % (sr(sT0), sr(sT0), u))
        a.I("s_and_b32 %s, %s, 7" % (sr(sT0), sr(sT0)))
        a.I("s_mul_i32 %s, %s, 73728" % (sr(sT0), sr(sT0)))
        a.I("s_add_u32 %s, %s, %s" % (sr(sT0), sr(sT0), sr(sA0)))
        a.I("s_lshl_b32 %s, %s, 8" % (sr(sT1), sr(sJQ)))
        a.I("s_add_u32 m0, %s, %d" % (sr(sLW8K), ADDR[unit]))
        a.I("s_add_u32 %s, %s, %s" % (sr(sT0), sr(sT0), sr(sT1)))
        for j in range(4):
            dma(vWO[j], SWO, sT0, j * 1024, " nt" if OPT["ntwo"] else ""); issued.append(unit)
    elif unit[0] in "KV":
        t = int(unit[1:])
        base = sA3 if t < 4 else sA4
        a.I("s_add_u32 m0, %s, %d" % (sr(sLW8K), ADDR[unit]))
        a.I("s_add_u32 %s, %s, %d" % (sr(sT0), sr(base), (t & 3) * 16384))
        for j in range(4):
            if unit[0] == "K": dma(vK[j], SK, sT0, j * 1024, " nt" if OPT["ntkv"] else "")
            else: dma(vV, SV, sT0, j * 1024, " nt" if OPT["ntkv"] else "")
            issued.append(unit)
    else:
        raise Exception(unit)
def publish(count):
    if count <= published[0]: return
    names = set(n for n, _ in units[:count])
    idxs = [i for i, t in enumerate(issued) if t in names]
    if idxs:
        n = len(issued) - 1 - max(idxs)
        a.I("s_waitcnt vmcnt(%d)" % min(n, 63))
    a.I("v_mov_b32 %s, %d" % (vr(vFTl), count))
    a.I("s_mov_b64 exec, 1")
    a.I("ds_write_b32 %s, %s" % (vr(vFLOl), vr(vFTl)))
    a.I("s_mov_b64 exec, -1")
    published[0] = count
def lstamp(i):
    if OPT["sel"] and units[i][0] not in ("A1", "A8", "K3", "K7", "V3", "V7", "WO3", "WO7"): return
    if OPT["stamps"] == 2:
        a.I("s_memrealtime s[90:91]"); a.I("s_waitcnt lgkmcnt(0)"); a.I("v_writelane_b32 v100, s90, %d" % i)
LOOK = OPT["look"]
proven = 0
for ui, (unit, need) in enumerate(units):
    if ui == 1:
        if OPT["pfa"] == 3:
            a.I("s_mov_b32 exec_lo, -1"); a.I("s_mov_b32 exec_hi, 0xf")
            a.I("buffer_load_dword v41, v40, %s, %s offen%s" % (sr(SX, 4), sr(sI2), " nt" if OPT["ntpf"] else "")); issued.append("PFX")
            a.I("s_mov_b64 exec, -1")
        a.I("v_mov_b32 %s, 0x%x" % (vr(vFLl), MISC))
        a.I("s_lshl_b32 %s, %s, 2" % (sr(sT0), sr(sL4)))
        a.I("s_add_u32 %s, %s, 0x%x" % (sr(sT0), sr(sT0), MISC + F_LAND))
        a.I("v_mov_b32 %s, %s" % (vr(vFLOl), sr(sT0)))
        a.I("s_waitcnt lgkmcnt(0)")
        a.I("s_barrier")
    if ui == 2:
        init_setup(); late_setup()
    if ui == OPT["initat"] and not OPT["spread"]: init_emit(9)
    if need > proven:
        save_pub = published[0]
        ok = newlbl("OK"); sp = newlbl("SP")
        a.I("s_cmp_ge_u32 %s, %d" % (sr(sKNOW), need))
        a.I("s_cbranch_scc1 %s" % ok)
        a.L(sp)
        a.I("ds_read_b128 %s, %s offset:%d" % (vr(vFTl, 4), vr(vFLl), F_PROG))
        a.I("s_waitcnt lgkmcnt(0)")
        a.I("v_min3_u32 %s, %s, %s, %s" % (vr(vFTl), vr(vFTl), vr(vFTl + 1), vr(vFTl + 2)))
        a.I("v_min_u32 %s, %s, %s" % (vr(vFTl), vr(vFTl), vr(vFTl + 3)))
        a.I("s_nop 0")
        a.I("v_readfirstlane_b32 %s, %s" % (sr(sKNOW), vr(vFTl)))
        a.I("s_add_i32 %s, %s, -1" % (sr(sBUD), sr(sBUD)))
        a.I("s_cmp_lt_i32 %s, 0" % sr(sBUD))
        a.I("s_cbranch_scc1 %s" % ok)
        a.I("s_cmp_ge_u32 %s, %d" % (sr(sKNOW), need))
        a.I("s_cbranch_scc1 %s" % ok)
        if OPT["lsleep"]: a.I("s_sleep %d" % OPT["lsleep"])
        a.I("s_branch %s" % sp)
        a.L(ok)
        proven = need
    if unit == "OI" and OPT["lonly"]: continue
    if unit == "OI":
        publish(ui)
        a.I("s_mov_b32 %s, 0" % sr(sT3))
        a.I("s_mov_b32 exec_hi, 0xffff")
        a.I("v_cmp_ne_u32 vcc, %s, v42" % sr(sTAG))
        a.I("s_mov_b32 exec_hi, -1")
        a.I("s_nop 0")
        a.I("s_cbranch_vccz L_POLL0_X")
        a.L("L_POLL0")
        a.I("s_mov_b32 exec_hi, 0xffff")
        a.I("buffer_load_dword v42, v43, %s, 0 offen sc1" % sr(SWS, 4))
        a.I("s_waitcnt vmcnt(0)")
        a.I("v_cmp_ne_u32 vcc, %s, v42" % sr(sTAG))
        a.I("s_mov_b32 exec_hi, -1")
        a.I("s_add_u32 %s, %s, 1" % (sr(sT3), sr(sT3)))
        a.I("s_cmp_gt_u32 %s, 40000" % sr(sT3))
        a.I("s_cbranch_scc1 L_POLL0_X")
        a.I("s_cbranch_vccnz L_POLL0")
        a.L("L_POLL0_X")
        raise_marker = True
    if unit == "OI":
        IMGR = 48
        a.I("s_mov_b32 %s, 0" % sr(sT3))
        a.L("L_POLL1")
        for n in range(3):
            for j in range(4):
                a.I("buffer_load_dwordx4 %s, %s, %s, %s offen offset:%d sc0 sc1" % (vr(IMGR + 16 * n + 4 * j, 4), vr(vLn), sr(SWS, 4), sr([sA1, sA3, sA4][n]), j * 1024))
        a.I("s_waitcnt vmcnt(0)")
        a.I("v_max3_u32 v44, v%d, v%d, v%d" % (IMGR, IMGR + 1, IMGR + 2))
        for r in range(IMGR + 3, IMGR + 47, 2):
            a.I("v_max3_u32 v44, v%d, v%d, v44" % (r, r + 1))
        a.I("v_max_u32 v44, v%d, v44" % (IMGR + 47))
        a.I("v_cmp_eq_u32 vcc, -1, v44")
        a.I("s_add_u32 %s, %s, 1" % (sr(sT3), sr(sT3)))
        a.I("s_cmp_gt_u32 %s, 40000" % sr(sT3))
        a.I("s_cbranch_scc1 L_POLL1_X")
        a.I("s_cbranch_vccnz L_POLL1")
        a.L("L_POLL1_X")
        a.I("v_add_u32 v44, %s, %s" % (sr(sLW8K), vr(vLn)))
        for n in range(3):
            a.I("v_add_u32 v45, 0x%x, v44" % IMG_ADDR[n + 1])
            for j in range(4):
                a.I("ds_write_b128 v45, %s offset:%d" % (vr(IMGR + 16 * n + 4 * j, 4), j * 1024))
        issued[:] = []
        a.I("v_mov_b32 %s, %d" % (vr(vFTl), ui + 1))
        a.I("s_mov_b64 exec, 1")
        a.I("ds_write_b32 %s, %s" % (vr(vFLOl), vr(vFTl)))
        a.I("s_mov_b64 exec, -1")
        published[0] = ui + 1
        lstamp(ui)
        continue
    if ui >= 1: a.I("ds_read_b128 %s, %s offset:%d" % (vr(vFTl + 4, 4), vr(vFLl), F_PROG))
    issue(unit)
    if OPT["spread"] and ui >= OPT["initat"]: init_emit(1)
    if unit == "V4":
        a.I("s_mov_b32 exec_hi, 0xffff")
        a.I("buffer_load_dword v42, v43, %s, 0 offen sc1" % sr(SWS, 4)); issued.append("V4")
        a.I("s_mov_b32 exec_hi, -1")
    pub_emitted = [False]
    if ui - LOOK + 1 > 0:
        before = published[0]
        publish(ui - LOOK + 1)
        pub_emitted[0] = published[0] != before
    if ui >= 1:
        LS_ = {"A1": 1, "A5": 2, "K0": 3, "K4": 4, "V0": 5, "V4": 6, "WOR": 7, "WO6": 8}
        if OPT["stamps"] == 1 and unit in LS_:
            a.I("s_memrealtime %s" % sr(sSTAMP + 2 * LS_[unit], 2))
            a.I("s_waitcnt lgkmcnt(0)")
        else:
            a.I("s_waitcnt lgkmcnt(%d)" % (1 if (ui - LOOK + 1 > 0 and pub_emitted[0]) else 0))
        a.I("v_min3_u32 %s, %s, %s, %s" % (vr(vFTl + 4), vr(vFTl + 4), vr(vFTl + 5), vr(vFTl + 6)))
        a.I("v_min_u32 %s, %s, %s" % (vr(vFTl + 4), vr(vFTl + 4), vr(vFTl + 7)))
        a.I("s_nop 0")
        a.I("v_readfirstlane_b32 %s, %s" % (sr(sKNOW), vr(vFTl + 4)))
    lstamp(ui)
    if unit == "V0":
        assert not init_ops
        a.I("v_readfirstlane_b32 %s, v39" % sr(sTAG))
        a.I("s_lshl_b32 %s, %s, 7" % (sr(sT0), sr(sID)))
        a.I("s_lshl_b32 %s, %s, 2" % (sr(sT1), sr(sL4)))
        a.I("s_add_u32 %s, %s, 1" % (sr(sTAG), sr(sTAG)))
        a.I("s_add_u32 %s, %s, %s" % (sr(sT0), sr(sT0), sr(sT1)))
        a.I("s_add_u32 %s, %s, 0x%x" % (sr(sT0), sr(sT0), WS_FLAG0))
        a.I("v_mov_b32 v40, %s" % sr(sTAG))
        a.I("v_mov_b32 v41, 0")
        a.I("s_mov_b64 exec, 1")
        a.I("buffer_store_dword v40, v41, %s, %s offen sc0 sc1" % (sr(SWS, 4), sr(sT0))); issued.append("FLAG0")
        a.I("s_mov_b64 exec, -1")
        a.I("v_lshrrev_b32 v43, 2, v1")
        a.I("v_lshlrev_b32 v44, 3, v43")
        a.I("s_andn2_b32 %s, %s, 0x18" % (sr(sT1), sr(sID)))
        a.I("v_or_b32 v44, %s, v44" % sr(sT1))
        a.I("v_subrev_u32 v43, 4, v43")
        a.I("s_andn2_b32 %s, %s, 7" % (sr(sT1), sr(sID)))
        a.I("v_or_b32 v43, %s, v43" % sr(sT1))
        a.I("v_cmp_gt_u32 vcc, 16, v1")
        a.I("s_nop 1")
        a.I("v_cndmask_b32 v43, v43, v44, vcc")
        a.I("v_lshlrev_b32 v43, 7, v43")
        a.I("v_and_b32 v44, 3, v1")
        a.I("v_lshl_add_u32 v43, v44, 2, v43")
        a.I("v_add_u32 v43, 0x%x, v43" % WS_FLAG0)
    if unit == "V7":
        for n in range(1, 4):
            a.I("s_add_u32 %s, %s, %d" % (sr(sT0), sr(sJQ), n))
            a.I("s_and_b32 %s, %s, 3" % (sr(sT0), sr(sT0)))
            a.I("s_lshl_b32 %s, %s, 3" % (sr(sT0), sr(sT0)))
            a.I("s_andn2_b32 %s, %s, 0x18" % (sr(sT1), sr(sID)))
            a.I("s_or_b32 %s, %s, %s" % (sr(sT0), sr(sT0), sr(sT1)))
            a.I("s_lshl_b32 %s, %s, 14" % (sr(sT0), sr(sT0)))
            a.I("s_add_u32 %s, %s, %s" % (sr(sT0), sr(sT0), sr(sLW8K)))
            a.I("s_add_u32 %s, %s, 0x%x" % (sr([sA1, sA3, sA4][n - 1]), sr(sT0), WS_IMG))
publish(len(units))
if OPT["stamps"] == 2:
    a.I("v_writelane_b32 v100, %s, 63" % sr(sSTAMP))
    a.I("s_lshl_b32 %s, %s, 2" % (sr(sT0), sr(sID)))
    a.I("s_add_u32 %s, %s, %s" % (sr(sT0), sr(sT0), sr(sLW)))
    a.I("s_lshl_b32 %s, %s, 8" % (sr(sT0), sr(sT0)))
    a.I("s_add_u32 %s, %s, 0x%x" % (sr(sT0), sr(sT0), WS_STAMP + 0x100000))
    a.I("v_lshlrev_b32 v103, 2, v1")
    a.I("buffer_store_dword v100, v103, %s, %s offen" % (sr(SWS, 4), sr(sT0)))
if OPT["lonly"]:
    a.I("s_waitcnt vmcnt(0)")
    a.I("s_endpgm")
a.I("s_branch L_FINAL")
loader_lines = a.lines

a = Asm()
a.L("L_FINAL")
if OPT["stamps"] == 4:
    a.I("s_cmp_lt_u32 %s, 4" % sr(sWAVE))
    a.I("s_cbranch_scc0 L_NOCST")
    a.I("s_waitcnt lgkmcnt(0)")
    for i in range(len(CST)):
        a.I("v_writelane_b32 v100, %s, %d" % (sr(CPAIRS[i]), i))
    a.I("s_lshl_b32 %s, %s, 2" % (sr(sT0), sr(sID)))
    a.I("s_add_u32 %s, %s, %s" % (sr(sT0), sr(sT0), sr(sWAVE)))
    a.I("s_lshl_b32 %s, %s, 8" % (sr(sT0), sr(sT0)))
    a.I("s_add_u32 %s, %s, 0x%x" % (sr(sT0), sr(sT0), WS_STAMP + 0x200000))
    a.I("v_lshlrev_b32 v103, 2, v1")
    a.I("buffer_store_dword v100, v103, %s, %s offen" % (sr(SWS, 4), sr(sT0)))
    a.L("L_NOCST")
a.I("s_lshl_b32 %s, %s, 6" % (sr(sT0), sr(sWAVE)))
a.I("v_add_u32 v0, %s, v1" % sr(sT0))
a.I("v_cmp_gt_u32 vcc, 288, v0")
a.I("s_and_saveexec_b64 s[4:5], vcc")
a.I("s_cbranch_execz L_FIN_SKIP")
a.I("s_and_b32 %s, %s, 1" % (sr(sT0), sr(sKS)))
a.I("s_mul_i32 %s, %s, 288" % (sr(sT0), sr(sT0)))
a.I("v_add_u32 v4, %s, v0" % sr(sT0))
a.I("s_lshr_b32 %s, %s, 1" % (sr(sT2), sr(sKS)))
a.I("s_mul_i32 %s, %s, 4608" % (sr(sT0), sr(sT2)))
a.I("v_lshlrev_b32 v5, 3, v4")
a.I("s_andn2_b32 %s, %s, 7" % (sr(sT1), sr(sID)))
a.I("s_mul_i32 %s, %s, %d" % (sr(sT1), sr(sT1), SLAB_BYTES))
a.I("s_add_u32 %s, %s, %s" % (sr(sT1), sr(sT1), sr(sT0)))
a.I("s_add_u32 %s, %s, 0x%x" % (sr(sA0), sr(sT1), WS_SLAB))
a.I("s_mov_b32 %s, 0" % sr(sT3))
def fin_loads():
    a.I("s_mov_b32 %s, %s" % (sr(sT1), sr(sA0)))
    for k in range(8):
        a.I("buffer_load_dwordx2 %s, v5, %s, %s offen sc0 sc1" % (vr(32 + 2 * k, 2), sr(SWS, 4), sr(sT1)))
        if k < 7: a.I("s_add_u32 %s, %s, %d" % (sr(sT1), sr(sT1), SLAB_BYTES))
fin_loads()
a.I("v_lshrrev_b32 v6, 7, v4")
a.I("v_bfe_u32 v7, v4, 1, 6")
a.I("v_and_b32 v8, 1, v4")
a.I("v_lshrrev_b32 v10, 1, v6")
a.I("v_lshlrev_b32 v10, 5, v10")
a.I("v_and_b32 v11, 1, v6")
a.I("v_lshl_add_u32 v10, v11, 4, v10")
a.I("v_lshl_add_u32 v10, v8, 3, v10")
a.I("v_lshrrev_b32 v11, 5, v7")
a.I("v_lshl_add_u32 v10, v11, 2, v10")
a.I("s_and_b32 %s, %s, 1" % (sr(sT0), sr(sT2)))
a.I("s_lshl_b32 %s, %s, 6" % (sr(sT0), sr(sT0)))
a.I("s_lshl_b32 %s, %s, 7" % (sr(sT1), sr(sJQ)))
a.I("s_add_u32 %s, %s, %s" % (sr(sT0), sr(sT0), sr(sT1)))
a.I("v_add_u32 v10, %s, v10" % sr(sT0))
a.I("s_lshr_b32 %s, %s, 1" % (sr(sT0), sr(sT2)))
a.I("s_lshl_b32 %s, %s, 5" % (sr(sT0), sr(sT0)))
a.I("v_and_b32 v11, 31, v7")
a.I("v_add_u32 v11, %s, v11" % sr(sT0))
a.I("v_subrev_u32 v12, 512, v4")
a.I("v_lshrrev_b32 v13, 4, v12")
a.I("v_lshlrev_b32 v13, 2, v13")
a.I("s_lshl_b32 %s, %s, 4" % (sr(sT0), sr(sJQ)))
a.I("s_add_u32 %s, %s, 512" % (sr(sT0), sr(sT0)))
a.I("v_add_u32 v13, %s, v13" % sr(sT0))
a.I("v_and_b32 v12, 15, v12")
a.I("s_lshl_b32 %s, %s, 4" % (sr(sT0), sr(sT2)))
a.I("v_add_u32 v12, %s, v12" % sr(sT0))
a.I("v_cmp_lt_u32 vcc, 511, v4")
a.I("s_nop 1")
a.I("v_cndmask_b32 v10, v10, v13, vcc")
a.I("v_cndmask_b32 v11, v11, v12, vcc")
a.I("s_lshl_b32 %s, %s, 6" % (sr(sT0), sr(sB)))
a.I("v_add_u32 v11, %s, v11" % sr(sT0))
a.I("v_mul_u32_u24 v11, 1152, v11")
a.I("v_lshl_add_u32 v11, v10, 1, v11")
a.I("s_branch L_FIN_CHK")
a.L("L_FIN_RETRY")
fin_loads()
a.L("L_FIN_CHK")
a.I("s_waitcnt vmcnt(0)")
a.I("v_max3_u32 v12, v32, v33, v34")
for r in range(35, 47, 2):
    a.I("v_max3_u32 v12, v%d, v%d, v12" % (r, r + 1))
a.I("v_max_u32 v12, v47, v12")
a.I("v_cmp_eq_u32 vcc, -1, v12")
a.I("s_add_u32 %s, %s, 1" % (sr(sT3), sr(sT3)))
a.I("s_cmp_gt_u32 %s, 40000" % sr(sT3))
a.I("s_cbranch_scc1 L_FIN_GO")
a.I("s_cbranch_vccnz L_FIN_RETRY")
a.L("L_FIN_GO")
for k in range(8):
    lo0, lo1 = 32 + 2 * k, 33 + 2 * k
    if k == 0:
        a.I("v_lshlrev_b32 v48, 16, v%d" % lo0)
        a.I("v_and_b32 v49, 0xffff0000, v%d" % lo0)
        a.I("v_lshlrev_b32 v50, 16, v%d" % lo1)
        a.I("v_and_b32 v51, 0xffff0000, v%d" % lo1)
    else:
        a.I("v_lshlrev_b32 v52, 16, v%d" % lo0)
        a.I("v_and_b32 v53, 0xffff0000, v%d" % lo0)
        a.I("v_lshlrev_b32 v54, 16, v%d" % lo1)
        a.I("v_and_b32 v55, 0xffff0000, v%d" % lo1)
        a.I("v_pk_add_f32 v[48:49], v[48:49], v[52:53]")
        a.I("v_pk_add_f32 v[50:51], v[50:51], v[54:55]")
a.I("v_cvt_pk_bf16_f32 v48, v48, v49")
a.I("v_cvt_pk_bf16_f32 v49, v50, v51")
a.I("buffer_store_dwordx2 v[48:49], v11, %s, 0 offen" % sr(SOUT, 4))
a.I("s_and_b32 %s, %s, 31" % (sr(sT0), sr(sID)))
a.I("s_cmp_eq_u32 %s, 0" % sr(sT0))
a.I("s_cbranch_scc0 L_FIN_SKIP")
a.I("s_cmp_eq_u32 %s, 4" % sr(sWAVE))
a.I("s_cbranch_scc0 L_FIN_SKIP")
a.I("s_lshl_b32 %s, %s, 7" % (sr(sT0), sr(sB)))
a.I("v_mov_b32 v4, %s" % sr(sTAG))
a.I("v_mov_b32 v5, 0")
a.I("s_mov_b64 exec, 1")
a.I("buffer_store_dword v4, v5, %s, %s offen sc0 sc1" % (sr(SWS, 4), sr(sT0)))
a.L("L_FIN_SKIP")
a.I("s_mov_b64 exec, s[4:5]")
if OPT["stamps"]:
    a.I("s_memrealtime %s" % sr(sSTAMP + 2 * 9, 2))
    a.I("s_waitcnt lgkmcnt(0) vmcnt(0)")
    a.I("s_lshl_b32 %s, %s, 3" % (sr(sT0), sr(sID)))
    a.I("s_add_u32 %s, %s, %s" % (sr(sT0), sr(sT0), sr(sWAVE)))
    a.I("s_lshl_b32 %s, %s, 6" % (sr(sT0), sr(sT0)))
    a.I("s_add_u32 %s, %s, 0x%x" % (sr(sT0), sr(sT0), WS_STAMP))
    a.I("v_mov_b32 v5, 0")
    a.I("s_mov_b64 exec, 1")
    for i in range(10):
        a.I("v_mov_b32 v4, %s" % sr(sSTAMP + 2 * i))
        a.I("buffer_store_dword v4, v5, %s, %s offen offset:%d" % (sr(SWS, 4), sr(sT0), i * 4))
    a.I("s_waitcnt vmcnt(0)")
a.L("L_END")
a.I("s_endpgm")
final_lines = a.lines

tail = """
.section .rodata,"a"
.p2align 6
.amdhsa_kernel %s
  .amdhsa_next_free_vgpr 256
  .amdhsa_next_free_sgpr 96
  .amdhsa_accum_offset 256
  .amdhsa_group_segment_fixed_size 0
  .amdhsa_kernarg_size 64
  .amdhsa_user_sgpr_count 2
  .amdhsa_user_sgpr_kernarg_segment_ptr 1
  .amdhsa_system_sgpr_workgroup_id_x 1
.end_amdhsa_kernel
""" % KNAME

probs = []
for nm, ls in (("compute", entry_lines + compute_lines + final_lines), ("loader", entry_lines + loader_lines + final_lines)):
    probs += check_hazards(ls, nm)
for p in sorted(set(probs)): print("HAZARD", p)
out = "\n".join(hdr + entry_lines + loader_lines + compute_lines + final_lines) + "\n" + tail
open(sys.argv[1], "w").write(out)
open(sys.argv[1] + ".bar", "w").write(",".join(n for n, _ in units))
open(sys.argv[1] + ".cst", "w").write(",".join(CST))
print("units", [(n, x) for n, x in units], "lines", out.count("\n"))
```

```python
import sys, struct
from asmlib import *

KNAME = "standalone__gqa_block_cached__near_ridge_kernel"
OPT = dict(dump=0, stamps=0, ntkv=1, ntw=0, ntx=0, ntwo=0, rot=1, tlb=1, pfwo=1, prio=1, lsleep=1, look=2, pk=1, pfa=0, dga=3, initat=4, nowait=0, noload=0, lonly=0, sel=0, spread=1, ntpf=1, pfat=0, nox=0, now=0, scx=0, light=1, dgp=2, finwait=1, oiord=1, tail1=1)
for a_ in sys.argv[2:]:
    k, v = a_.split("="); OPT[k] = int(v)

WS_EPOCH = 0x0
WS_FLAG1 = 0x1000
WS_IMG   = 0x100000
WS_SLAB  = 0x800000
SLAB_BYTES = 24576
IMG_BYTES = 16384
WS_DUMP  = 0x2000000
WS_STAMP = 0x1800000
WS_SIZE  = 0x10000000

SX, SW, SK, SV, SWO, SWS, SOUT = 8, 12, 16, 20, 24, 28, 32
KARG = 36
sKS, sJQ, sB, sH, sWAVE, sLW, sTAG, sID = 52, 53, 54, 55, 56, 57, 58, 59
sT0, sT1, sT2, sT3 = 60, 61, 62, 63
sC = 64
sLW8K = 66
sA0, sA1, sA2, sA3, sA4 = 67, 68, 69, 70, 71
sSTAMP = 72
sKNOW = 92
sBUD = 93
sKNOW2 = 94
sI0, sI1, sI2 = 4, 5, 6

SLOT = lambda i: i * 16384
XB = 131072
MISC = 155648
F_LAND, F_PROG, F_QX, F_MX, F_OR, F_IMG, F_PX = 0, 16, 32, 48, 64, 80, 96
MXD = 1024; LD = 2048
LDS_BYTES = 163840
def f32bits(x): return struct.unpack("<I", struct.pack("<f", x))[0]
SCALE = (128 ** -0.5) * 1.4426950408889634

STEP = {}
for i in range(9): STEP["A%d" % i] = i
STEP["QS"] = 9
for t in range(8): STEP["K%d" % t] = 10 + t
for t in range(8): STEP["V%d" % t] = 18 + t
STEP["ORS"] = 26
for u in range(8): STEP["P%d" % u] = 27 + u
STEP["PE"] = 35
ADDR = {}; SIZE = {}
XG = [XB, XB + 8192, XB + 16384, SLOT(7), SLOT(7) + 8192, SLOT(6)]
for i in range(9):
    ADDR["W%d" % i] = SLOT(i % 6); ADDR["X%d" % i] = XG[i % 6]
for t, s_ in enumerate([3, 4, 7, 5, 6, 0, 2]): ADDR["K%d" % t] = SLOT(s_)
ADDR["K7"] = XB
ADDR["QS"] = SLOT(1)
for t, s_ in enumerate([1, 3, 4, 7, 5, 6, 0, 2]): ADDR["V%d" % t] = SLOT(s_)
for u, s_ in enumerate([1, 3, 4, 0, 1, 3, 7, 4]): ADDR["WO%d" % u] = SLOT(s_)
ADDR["WOR"] = XB
ADDR["ORS"] = SLOT(5)
IMG_ADDR = [SLOT(7), SLOT(2), SLOT(5), SLOT(6)]
alloc = []
def A_(name, addr, size, step): alloc.append((name, addr, size, step))
def need_of(addr, size, upto):
    n = 0
    for (nm, a0, s0, st) in alloc[:upto]:
        if a0 < addr + size and addr < a0 + s0: n = max(n, st + 1)
    return n
NEED = {}
def place(name, addr, size, step):
    NEED[name] = need_of(addr, size, len(alloc)); A_(name, addr, size, step)
for i in range(9):
    place("X%d" % i, ADDR["X%d" % i], 8192, STEP["A%d" % i]); place("W%d" % i, ADDR["W%d" % i], 16384, STEP["A%d" % i])
place("QS", ADDR["QS"], 16384, STEP["QS"])
for t in range(8): place("K%d" % t, ADDR["K%d" % t], 16384, STEP["K%d" % t])
for t in range(8): place("V%d" % t, ADDR["V%d" % t], 16384, STEP["V%d" % t])
place("WOR", ADDR["WOR"], 16384, STEP["P7"])
for u in range(4): place("WO%d" % u, ADDR["WO%d" % u], 16384, STEP["P%d" % u])
place("ORS", ADDR["ORS"], 32768, STEP["ORS"])
place("OI0", IMG_ADDR[0], 16384, STEP["P1"])
for n in range(1, 4): place("OI%d" % n, IMG_ADDR[n], 16384, STEP["P%d" % (2 * n + 1)])
for u in range(4, 8): place("WO%d" % u, ADDR["WO%d" % u], 16384, STEP["P%d" % u])
STEPNAME = {v: k for k, v in STEP.items()}
units = []
for i in range(9): units.append(("A%d" % i, max(NEED["X%d" % i], NEED["W%d" % i])))
for t in range(8): units.append(("K%d" % t, NEED["K%d" % t]))
for t in range(8): units.append(("V%d" % t, NEED["V%d" % t]))
if OPT["pfat"] == 0: units.append(("PF", 0))
else: units.insert(9, ("PF", 0))
units.append(("WOR", NEED["WOR"]))
if OPT["oiord"] == 0:
    for u in range(4): units.append(("WO%d" % u, NEED["WO%d" % u]))
    for n in range(1, 4): units.append(("OI%d" % n, NEED["OI%d" % n]))
    for u in range(4, 8): units.append(("WO%d" % u, NEED["WO%d" % u]))
else:
    for u in range(7): units.append(("WO%d" % u, NEED["WO%d" % u]))
    for n in range(1, 4): units.append(("OI%d" % n, NEED["OI%d" % n]))
    units.append(("WO7", NEED["WO7"]))
UIDX = {n: i for i, (n, _) in enumerate(units)}

hdr = ["; fused GQA kernel: Q-proj + attention + out-proj; 256 WGs x 512 threads (4 compute + 4 loader waves)",
       "; @launch grid=(256,1,1) block=(512,1,1) lds=%d" % LDS_BYTES,
       '.amdgcn_target "amdgcn-amd-amdhsa--gfx950"', ".text", ".globl %s" % KNAME, ".p2align 8",
       ".type %s,@function" % KNAME, "%s:" % KNAME]

a = Asm()
lbl = [0]
def newlbl(p):
    lbl[0] += 1; return "L_%s%d" % (p, lbl[0])
def stamp(idx):
    if OPT["stamps"] == 4 and idx >= 1: return
    if OPT["stamps"] == 3 and 1 <= idx <= 8:
        a.I("s_mov_b32 %s, %s" % (sr(sSTAMP + 2 * idx), sr(sBUD)))
    elif OPT["stamps"]:
        a.I("s_memrealtime %s" % sr(sSTAMP + 2 * idx, 2))
        a.I("s_waitcnt lgkmcnt(0)")

CST = []
CPAIRS = list(range(8, 28, 2)) + list(range(36, 52, 2)) + list(range(74, 92, 2))
def cst(name):
    if OPT["stamps"] == 4 and len(CST) < len(CPAIRS):
        a.I("s_memtime %s" % sr(CPAIRS[len(CST)], 2)); CST.append(name)
def spin(known, need, rd, nvals, vt, pre=None):
    ok = newlbl("OK"); sp = newlbl("SP")
    a.I("s_cmp_ge_u32 %s, %d" % (sr(known), need))
    a.I("s_cbranch_scc1 %s" % ok)
    n0 = len(a.lines)
    a.L(sp)
    a.I(rd)
    a.I("s_waitcnt lgkmcnt(0)")
    if nvals == 4:
        a.I("v_min3_u32 %s, %s, %s, %s" % (vr(vt), vr(vt), vr(vt + 1), vr(vt + 2)))
        a.I("v_min_u32 %s, %s, %s" % (vr(vt), vr(vt), vr(vt + 3)))
        a.I("s_nop 0")
    a.I("v_readfirstlane_b32 %s, %s" % (sr(known), vr(vt)))
    a.I("s_add_i32 %s, %s, -1" % (sr(sBUD), sr(sBUD)))
    a.I("s_cmp_lt_i32 %s, 0" % sr(sBUD))
    a.I("s_cbranch_scc1 %s" % ok)
    a.I("s_cmp_ge_u32 %s, %d" % (sr(known), need))
    a.I("s_cbranch_scc0 %s" % sp)
    for i in range(n0, len(a.lines)): a.lines[i] += " ;slow"
    a.L(ok)

a.I("s_cmp_ge_u32 s2, 256")
a.I("s_cbranch_scc1 L_END")
a.I("s_load_dwordx16 %s, s[0:1], 0" % sr(KARG, 16))
if OPT["stamps"]:
    a.I("s_memrealtime %s" % sr(sSTAMP, 2))
a.I("v_lshrrev_b32 v2, 6, v0")
a.I("v_and_b32 v1, 63, v0")
a.I("s_mov_b32 %s, s2" % sr(sID))
a.I("v_readfirstlane_b32 %s, v2" % sr(sWAVE))
a.I("s_and_b32 %s, s2, 7" % sr(sKS))
a.I("s_lshr_b32 %s, s2, 3" % sr(sJQ))
a.I("s_and_b32 %s, %s, 3" % (sr(sJQ), sr(sJQ)))
a.I("s_lshr_b32 %s, s2, 5" % sr(sB))
a.I("s_lshl_b32 %s, %s, 2" % (sr(sH), sr(sKS)))
a.I("s_add_u32 %s, %s, %s" % (sr(sH), sr(sH), sr(sJQ)))
a.I("v_lshrrev_b32 v2, 4, v1")
a.I("v_and_b32 v3, 15, v1")
a.I("s_mov_b32 %s, 0" % sr(sKNOW))
a.I("s_mov_b32 %s, 0" % sr(sKNOW2))
a.I("s_mov_b32 %s, 0x80000" % sr(sBUD))
a.I("s_cmp_lt_u32 %s, 4" % sr(sWAVE))
a.I("s_cbranch_scc1 L_COMPUTE")
entry_lines = a.lines

pX, pK, pV, pWQ, pWO, pOUT, pDBG, pWS = [KARG + 2 * i for i in range(8)]
def mk_srd(d, p, off_sgpr, size):
    if off_sgpr is None:
        a.I("s_mov_b32 %s, %s" % (sr(d), sr(p)))
        a.I("s_mov_b32 %s, %s" % (sr(d + 1), sr(p + 1)))
    else:
        a.I("s_add_u32 %s, %s, %s" % (sr(d), sr(p), sr(off_sgpr)))
        a.I("s_addc_u32 %s, %s, 0" % (sr(d + 1), sr(p + 1)))
    a.I("s_mov_b32 %s, 0x%x" % (sr(d + 2), size))
    a.I("s_mov_b32 %s, 0x00020000" % sr(d + 3))
def kv_srds():
    a.I("s_lshr_b32 %s, %s, 1" % (sr(sT0), sr(sH)))
    a.I("s_lshl_b32 %s, %s, 4" % (sr(sT1), sr(sB)))
    a.I("s_add_u32 %s, %s, %s" % (sr(sT0), sr(sT0), sr(sT1)))
    a.I("s_lshl_b32 %s, %s, 17" % (sr(sT0), sr(sT0)))
    mk_srd(SK, pK, sT0, 131072)
    mk_srd(SV, pV, sT0, 131072)
    a.I("s_mul_i32 %s, %s, 589824" % (sr(sT0), sr(sKS)))
    mk_srd(SWO, pWO, sT0, 589824)

a = Asm()
q = LdsQ(a)
def ds_read(kind, dst, n, addr, off):
    assert 0 <= off < 65536, off
    a.I("%s %s, %s offset:%d" % (kind, vr(dst, n), vr(addr), off))
    return q.issue()
def rd128(dst, addr, off): return ds_read("ds_read_b128", dst, 4, addr, off)
def rdtr(dst, addr, off): return ds_read("ds_read_b64_tr_b16", dst, 2, addr, off)
def ds_write(kind, addr, src, n, off):
    assert 0 <= off < 65536
    a.I("%s %s, %s offset:%d" % (kind, vr(addr), vr(src, n), off))
    return q.issue()
def mfma32(d, A, B, c0=False):
    a.I("v_mfma_f32_32x32x16_bf16 %s, %s, %s, %s" % (vr(d, 16), vr(A, 4), vr(B, 4), "0" if c0 else vr(d, 16)))
def mfma16(d, A, B, c0=False):
    a.I("v_mfma_f32_16x16x32_bf16 %s, %s, %s, %s" % (vr(d, 4), vr(A, 4), vr(B, 4), "0" if c0 else vr(d, 4)))

vFLP = 0; vFL = 2; vFLO = 3
aX = [4, 5, 6, 7]; aW = [8, 9]; aK = 10; aV = [11, 12, 13, 14]; aWO = [15, 16]; aOI = 17; aRA = 18; aRB = 19
tA, tB, tC, tD, tE, tF = 20, 21, 22, 23, 24, 25
vIMG, vL16 = 26, 27
vFT = 28
vM, vL, vP0, vP1 = 4, 5, 6, 7
LS = 8
RING = 32; QF = 64; KR = 96; OACC = 64; S = 128

def wait_land(unit):
    if OPT["nowait"] and not unit.startswith("OI"): return
    spin(sKNOW, UIDX[unit] + 1, "ds_read_b128 %s, %s offset:%d" % (vr(vFT, 4), vr(vFL), F_LAND), 4, vFT)
def wait_prog(step):
    spin(sKNOW2, STEP[step] + 1, "ds_read_b128 %s, %s offset:%d" % (vr(vFT, 4), vr(vFL), F_PROG), 4, vFT)
def set_prog(step):
    a.I("v_mov_b32 %s, %d" % (vr(vFT), STEP[step] + 1))
    a.I("s_mov_b64 exec, 1")
    ds_write("ds_write_b32", vFLO, vFT, 1, F_PROG)
    a.I("s_mov_b64 exec, -1")
def set_flag(off):
    a.I("v_mov_b32 %s, 1" % vr(vFT))
    a.I("s_mov_b64 exec, 1")
    ds_write("ds_write_b32", vFLO, vFT, 1, off)
    a.I("s_mov_b64 exec, -1")
def wait_partner(off):
    a.I("s_mov_b32 %s, 0" % sr(sT3))
    spin(sT3, 1, "ds_read_b32 %s, %s offset:%d" % (vr(vFT), vr(vFLP), off), 1, vFT)
def wait_all(off):
    a.I("s_mov_b32 %s, 0" % sr(sT3))
    spin(sT3, 1, "ds_read_b128 %s, %s offset:%d" % (vr(vFT, 4), vr(vFL), off), 4, vFT)

a.L("L_COMPUTE")
if OPT["prio"]: a.I("s_setprio 1")
sQH = sA0
a.I("s_and_b32 %s, %s, 1" % (sr(sLW), sr(sWAVE)))
a.I("s_lshl_b32 %s, %s, 13" % (sr(sLW8K), sr(sLW)))
a.I("s_lshr_b32 %s, %s, 1" % (sr(sQH), sr(sWAVE)))
a.I("s_mov_b32 %s, 0x%x" % (sr(sC), f32bits(SCALE)))
a.I("s_mov_b32 %s, 0x%x" % (sr(sC + 1), f32bits(SCALE)))
hf, r_, c4, mh, l31, L4, L15 = 32, 33, 34, 35, 36, 43, 44
T1, T2, T3 = 37, 38, 39
a.I("v_mov_b32 %s, v2" % vr(L4))
a.I("v_mov_b32 %s, v3" % vr(L15))
a.I("v_lshrrev_b32 %s, 5, v1" % vr(hf))
a.I("v_lshrrev_b32 %s, 2, v3" % vr(r_))
a.I("v_and_b32 %s, 3, v1" % vr(c4))
a.I("v_and_b32 %s, 1, v2" % vr(mh))
a.I("v_and_b32 %s, 31, v1" % vr(l31))
a.I("s_waitcnt lgkmcnt(0)")
mk_srd(SWS, pWS, None, WS_SIZE)
mk_srd(SOUT, pOUT, None, 589824)
a.I("s_mul_i32 %s, %s, %d" % (sr(sA1), sr(sID), IMG_BYTES))
a.I("s_add_u32 %s, %s, 0x%x" % (sr(sA1), sr(sA1), WS_IMG))
a.I("s_mul_i32 %s, %s, %d" % (sr(sA2), sr(sID), SLAB_BYTES))
a.I("s_mul_i32 %s, %s, 6144" % (sr(sT0), sr(sWAVE)))
a.I("s_add_u32 %s, %s, %s" % (sr(sA2), sr(sA2), sr(sT0)))
a.I("s_add_u32 %s, %s, 0x%x" % (sr(sA2), sr(sA2), WS_SLAB))
a.I("s_lshl_b32 %s, %s, 7" % (sr(sT0), sr(sB)))
a.I("v_mov_b32 v253, %s" % sr(sT0))
a.I("buffer_load_dword v252, v253, %s, 0 offen sc1" % sr(SWS, 4))
if OPT["tlb"]:
    kv_srds()
    a.I("v_mov_b32 v254, 0")
    a.I("s_mov_b64 exec, 1")
    l0 = newlbl("TW"); l1 = newlbl("TW"); l2 = newlbl("TW"); le = newlbl("TW")
    a.I("s_cmp_eq_u32 %s, 0" % sr(sWAVE)); a.I("s_cbranch_scc0 %s" % l0)
    a.I("buffer_load_dword v255, v254, %s, 0 offen nt" % sr(SK, 4))
    a.I("buffer_load_dword v255, v254, %s, 0 offen" % sr(SOUT, 4))
    a.I("s_branch %s" % le)
    a.L(l0)
    a.I("s_cmp_eq_u32 %s, 1" % sr(sWAVE)); a.I("s_cbranch_scc0 %s" % l1)
    a.I("buffer_load_dword v255, v254, %s, 0 offen nt" % sr(SV, 4))
    a.I("buffer_load_dword v255, v254, %s, %s offen sc1" % (sr(SWS, 4), sr(sA1)))
    a.I("buffer_load_dword v255, v254, %s, 0 offen sc1" % sr(SWS, 4))
    a.I("s_branch %s" % le)
    a.L(l1)
    a.I("s_cmp_eq_u32 %s, 2" % sr(sWAVE)); a.I("s_cbranch_scc0 %s" % l2)
    a.I("buffer_load_dword v255, v254, %s, 0 offen" % sr(SWO, 4))
    a.I("s_mov_b32 %s, 589820" % sr(sT0))
    a.I("buffer_load_dword v255, v254, %s, %s offen" % (sr(SWO, 4), sr(sT0)))
    a.I("s_branch %s" % le)
    a.L(l2)
    a.I("s_andn2_b32 %s, %s, 7" % (sr(sT1), sr(sID)))
    a.I("s_mul_i32 %s, %s, %d" % (sr(sT1), sr(sT1), SLAB_BYTES))
    a.I("s_add_u32 %s, %s, 0x%x" % (sr(sT1), sr(sT1), WS_SLAB))
    a.I("buffer_load_dword v255, v254, %s, %s offen sc1" % (sr(SWS, 4), sr(sT1)))
    a.I("s_add_u32 %s, %s, %d" % (sr(sT1), sr(sT1), SLAB_BYTES * 8 - 4))
    a.I("buffer_load_dword v255, v254, %s, %s offen sc1" % (sr(SWS, 4), sr(sT1)))
    a.L(le)
    a.I("s_mov_b64 exec, -1")
a.I("v_lshlrev_b32 %s, 7, %s" % (vr(T1), vr(l31)))
a.I("v_add_u32 %s, 0x%x, %s" % (vr(T1), XB, vr(T1)))
a.I("v_bfe_u32 %s, %s, 1, 3" % (vr(T2), vr(l31)))
a.I("v_xor_b32 %s, %s, %s" % (vr(T2), vr(hf), vr(T2)))
a.I("v_lshlrev_b32 %s, 4, %s" % (vr(T2), vr(T2)))
a.I("v_add_u32 %s, %s, %s" % (vr(aX[0]), vr(T1), vr(T2)))
for s in range(1, 4):
    a.I("v_xor_b32 %s, %d, %s" % (vr(aX[s]), 32 * s, vr(aX[0])))
swp = 40
a.I("v_and_b32 %s, 1, %s" % (vr(T1), vr(c4)))
a.I("v_lshlrev_b32 %s, 1, %s" % (vr(T1), vr(T1)))
a.I("v_lshrrev_b32 %s, 1, %s" % (vr(T2), vr(c4)))
a.I("v_or_b32 %s, %s, %s" % (vr(swp), vr(T1), vr(T2)))
def tr_addr(dst, rowlane, cq, blk, extra_sgpr=None):
    a.I("v_xor_b32 %s, %s, %s" % (vr(T1), blk, vr(r_)))
    a.I("v_lshlrev_b32 %s, 6, %s" % (vr(T1), vr(T1)))
    a.I("v_lshrrev_b32 %s, 1, %s" % (vr(T2), vr(cq)))
    a.I("v_lshl_add_u32 %s, %s, 1, %s" % (vr(T2), vr(mh), vr(T2)))
    a.I("v_lshl_add_u32 %s, %s, 4, %s" % (vr(T1), vr(T2), vr(T1)))
    a.I("v_and_b32 %s, 1, %s" % (vr(T2), vr(cq)))
    a.I("v_lshl_add_u32 %s, %s, 3, %s" % (vr(T1), vr(T2), vr(T1)))
    a.I("v_lshl_add_u32 %s, %s, 8, %s" % (vr(dst), vr(rowlane), vr(T1)))
    if extra_sgpr is not None:
        a.I("v_add_u32 %s, %s, %s" % (vr(dst), sr(extra_sgpr), vr(dst)))
rowA = 41
a.I("v_lshl_add_u32 %s, %s, 3, %s" % (vr(rowA), vr(hf), vr(r_)))
tr_addr(aW[0], rowA, swp, sr(sWAVE))
a.I("v_xor_b32 %s, %s, %s" % (vr(T1), vr(hf), vr(L15)))
a.I("v_lshlrev_b32 %s, 4, %s" % (vr(T1), vr(T1)))
a.I("v_lshl_add_u32 %s, %s, 8, %s" % (vr(aK), vr(l31), vr(T1)))
a.I("v_add_u32 %s, %s, %s" % (vr(aK), sr(sLW8K), vr(aK)))
rowB = 42
a.I("v_lshl_add_u32 %s, %s, 2, %s" % (vr(rowB), vr(hf), vr(r_)))
for i in range(4):
    a.I("s_lshl_b32 %s, %s, 1" % (sr(sT0), sr(sLW)))
    a.I("s_xor_b32 %s, %s, %d" % (sr(sT0), sr(sT0), i))
    tr_addr(aV[i], rowB, c4, sr(sT0), sLW8K)
tr_addr(aWO[0], rowB, c4, sr(sWAVE))
a.I("v_lshlrev_b32 %s, 4, v1" % vr(vL16))
a.I("s_lshl_b32 %s, %s, 13" % (sr(sT0), sr(sQH)))
a.I("v_add_u32 %s, %s, %s" % (vr(aOI), sr(sT0), vr(vL16)))
a.I("v_lshrrev_b32 %s, 1, %s" % (vr(T1), vr(L4)))
a.I("v_lshlrev_b32 %s, 4, %s" % (vr(T1), vr(T1)))
a.I("v_lshl_add_u32 %s, %s, 2, %s" % (vr(T1), vr(mh), vr(T1)))
a.I("v_add_u32 %s, %s, %s" % (vr(T1), vr(T1), vr(r_)))
a.I("v_lshlrev_b32 %s, 5, %s" % (vr(T1), vr(T1)))
a.I("v_lshl_add_u32 %s, %s, 3, %s" % (vr(T1), vr(c4), vr(T1)))
a.I("v_add_u32 %s, 0x%x, %s" % (vr(aRA), ADDR["WOR"], vr(T1)))
a.I("v_lshrrev_b32 %s, 1, %s" % (vr(T1), vr(L4)))
a.I("v_lshlrev_b32 %s, 10, %s" % (vr(T1), vr(T1)))
a.I("v_lshl_add_u32 %s, %s, 5, %s" % (vr(T2), vr(mh), vr(L15)))
a.I("v_lshl_add_u32 %s, %s, 4, %s" % (vr(T1), vr(T2), vr(T1)))
a.I("s_lshl_b32 %s, %s, 13" % (sr(sT0), sr(sQH)))
a.I("s_lshl_b32 %s, %s, 8" % (sr(sT1), sr(sLW)))
a.I("s_add_u32 %s, %s, %s" % (sr(sT0), sr(sT0), sr(sT1)))
a.I("v_add_u32 %s, %s, %s" % (vr(aRB), sr(sT0), vr(T1)))
a.I("s_lshl_b32 %s, %s, 12" % (sr(sT0), sr(sLW)))
a.I("v_add_u32 %s, %s, %s" % (vr(vIMG), sr(sT0), vr(aOI)))
a.I("v_mov_b32 %s, 0x%x" % (vr(vFL), MISC))
a.I("s_lshl_b32 %s, %s, 2" % (sr(sT0), sr(sWAVE)))
a.I("s_add_u32 %s, %s, 0x%x" % (sr(sT0), sr(sT0), MISC))
a.I("v_mov_b32 %s, %s" % (vr(vFLO), sr(sT0)))
a.I("s_xor_b32 %s, %s, 4" % (sr(sT0), sr(sT0)))
a.I("v_mov_b32 %s, %s" % (vr(vFLP), sr(sT0)))
a.I("v_add_u32 %s, 0x%x, %s" % (vr(tA), SLOT(3), vr(aW[0])))
aX2 = [tC, tD, tE, tF]
for s_ in range(4):
    a.I("v_subrev_u32 %s, 0x%x, %s" % (vr(aX2[s_]), XB - SLOT(6), vr(aX[s_])))
a.I("s_barrier")
if OPT["lonly"]:
    a.I("v_mov_b32 %s, 1000" % vr(vFT))
    a.I("ds_write_b32 %s, %s offset:%d" % (vr(vFLO), vr(vFT), F_PROG))
    a.I("s_waitcnt lgkmcnt(0) vmcnt(0)")
    a.I("s_endpgm")
stamp(1)

def dump_regs(base, n, slot_index):
    a.I("s_lshl_b32 %s, %s, 2" % (sr(sT0), sr(sID)))
    a.I("s_add_u32 %s, %s, %s" % (sr(sT0), sr(sT0), sr(sWAVE)))
    a.I("s_mul_i32 %s, %s, %d" % (sr(sT0), sr(sT0), n * 256))
    a.I("s_add_u32 %s, %s, 0x%x" % (sr(sT0), sr(sT0), WS_DUMP + slot_index * 0x2000000))
    for j in range(0, n, 4):
        a.I("buffer_store_dwordx4 %s, %s, %s, %s offen" % (vr(base + j, 4), vr(vL16), sr(SWS, 4), sr(sT0)))
        a.I("s_add_u32 %s, %s, 1024" % (sr(sT0), sr(sT0)))
    a.I("s_waitcnt vmcnt(0)")

a.C("==== phase A ====")
QACC = 128; BR = KR; NG = 36
tick = {}
def a_reads(n, part):
    i, s = divmod(n, 4)
    xa = ADDR["X%d" % i]; wo_ = ADDR["W%d" % i]
    if xa >= XB: xo = xa - XB; ax = aX
    else: xo = xa - SLOT(6); ax = aX2
    hi = wo_ >= SLOT(3)
    aw = tA if hi else aW[0]
    if hi: wo_ -= SLOT(3)
    if part == 0:
        if s == 0:
            wait_land("A%d" % i)
            if i % 2 == 0: cst("A%d" % i)
        base = RING + 4 * (n % 4); o = wo_ + 4096 * s
        rdtr(base, aw, o)
        rdtr(base + 2, aw, o + 1024)
        tick[(n, 0)] = rd128(BR + 8 * (n % 4), ax[s], xo)
    else:
        tick[(n, 1)] = rd128(BR + 8 * (n % 4) + 4, ax[s], xo + 4096)
        if s == 3: set_prog("A%d" % i)
DG = OPT["dga"]
for n in range(DG):
    a_reads(n, 0); a_reads(n, 1)
for n in range(NG):
    q.wait(tick[(n, 0)])
    mfma32(QACC, RING + 4 * (n % 4), BR + 8 * (n % 4), c0=(n == 0))
    if n + DG < NG: a_reads(n + DG, 0)
    q.wait(tick[(n, 1)])
    mfma32(QACC + 16, RING + 4 * (n % 4), BR + 8 * (n % 4) + 4, c0=(n == 0))
    if n + DG < NG: a_reads(n + DG, 1)
stamp(2)
cst("Aend")
a.I("s_lshl_b32 %s, %s, 11" % (sr(sT0), sr(sWAVE)))
a.I("s_add_u32 %s, %s, %d" % (sr(sT0), sr(sT0), ADDR["QS"]))
a.I("v_add_u32 %s, %s, %s" % (vr(tA), sr(sT0), vr(vL16)))
a.I("v_add_u32 %s, 0x%x, %s" % (vr(tB), ADDR["QS"], vr(aOI)))
wait_prog(STEPNAME[NEED["QS"] - 1])
a.I("s_waitcnt vmcnt(0)")
a.I("v_readfirstlane_b32 %s, v252" % sr(sTAG))
a.nop(5)
a.I("s_add_u32 %s, %s, 1" % (sr(sTAG), sr(sTAG)))
if OPT["dump"] == 1: dump_regs(QACC, 32, 0)
QP = 32
for t in range(2):
    for j in range(8):
        a.I("v_cvt_pk_bf16_f32 %s, %s, %s" % (vr(QP + 8 * t + j), vr(QACC + 16 * t + 2 * j), vr(QACC + 16 * t + 2 * j + 1)))
    for j in range(2):
        ds_write("ds_write_b128", tA, QP + 8 * t + 4 * j, 4, t * 8192 + j * 1024)
set_flag(F_QX)
a.I("v_mov_b32 %s, 0xff800000" % vr(vM))
wait_all(F_QX)
for sgm in range(8):
    rd128(QF + 4 * sgm, tB, sgm * 1024)
set_prog("QS")

a.C("==== phase K ====")
D = 7
tick = {}
def max_ops(t):
    return ["v_max3_f32 %s, %s, %s, %s" % (vr(vM), vr(S + 16 * t + 2 * j), vr(S + 16 * t + 2 * j + 1), vr(vM)) for j in range(8)]
pend = []
for n in range(64 + D):
    m = n - D
    if m >= 0:
        t, s = divmod(m, 8)
        q.wait(tick[m])
        mfma32(S + 16 * t, KR + 4 * (m % 8), QF + 4 * s, c0=(s == 0))
        if s == 2 and t >= 1: pend = max_ops(t - 1)
        if s >= 3 and pend:
            a.I(pend.pop(0)); a.I(pend.pop(0))
    if n < 64:
        t, s = divmod(n, 8)
        if s == 0:
            wait_land("K%d" % t)
            if t % 4 == 0 or t == 7: cst("K%d" % t)
            a.I("v_add_u32 %s, 0x%x, %s" % (vr(tC), ADDR["K%d" % t], vr(aK)))
        tmp = tD if n % 2 == 0 else tE
        if s == 0:
            tick[n] = rd128(KR + 4 * (n % 8), tC, 0)
        else:
            a.I("v_xor_b32 %s, %d, %s" % (vr(tmp), 32 * s, vr(tC)))
            tick[n] = rd128(KR + 4 * (n % 8), tmp, 0)
        if s == 7: set_prog("K%d" % t)
assert not pend
stamp(3)
cst("Kend")
a.I("s_lshl_b32 %s, %s, 8" % (sr(sT0), sr(sWAVE)))
a.I("s_add_u32 %s, %s, %d" % (sr(sT0), sr(sT0), MISC + MXD))
a.I("v_lshlrev_b32 %s, 2, v1" % vr(tA))
a.I("v_add_u32 %s, %s, %s" % (vr(tA), sr(sT0), vr(tA)))
a.I("v_xor_b32 %s, 0x100, %s" % (vr(tB), vr(tA)))
a.nop(8)
for s_ in max_ops(7): a.I(s_)
if OPT["dump"] == 2: dump_regs(S, 128, 0)

a.C("==== softmax ====")
a.I("v_mov_b32 %s, %s" % (vr(tC), vr(vM)))
a.nop(2)
a.I("v_permlane32_swap_b32 %s, %s" % (vr(tC), vr(vM)))
a.I("v_max_f32 %s, %s, %s" % (vr(vM), vr(tC), vr(vM)))
ds_write("ds_write_b32", tA, vM, 1, 0)
set_flag(F_MX)
a.I("v_mov_b32 %s, 0" % vr(LS))
a.I("v_mov_b32 %s, 0" % vr(LS + 1))
wait_partner(F_MX)
tk = ds_read("ds_read_b32", tC, 1, tB, 0)
q.wait(tk)
a.I("v_max_f32 %s, %s, %s" % (vr(vM), vr(tC), vr(vM)))
a.I("v_mul_f32 %s, %s, %s" % (vr(vP0), sr(sC), vr(vM)))
a.I("v_sub_f32 %s, 0, %s" % (vr(vP0), vr(vP0)))
a.I("v_mov_b32 %s, %s" % (vr(vP1), vr(vP0)))
for t in range(8):
    b0 = S + 16 * t
    for j in range(8):
        a.I("v_pk_fma_f32 %s, %s, %s, %s" % (vr(b0 + 2 * j, 2), vr(b0 + 2 * j, 2), sr(sC, 2), vr(vP0, 2)))
    for j in range(16):
        a.I("v_exp_f32 %s, %s" % (vr(b0 + j), vr(b0 + j)))
    a.I("s_nop 0")
    for j in range(8):
        a.I("v_pk_add_f32 %s, %s, %s" % (vr(LS, 2), vr(LS, 2), vr(b0 + 2 * j, 2)))
    for j in range(8):
        a.I("v_cvt_pk_bf16_f32 %s, %s, %s" % (vr(b0 + j), vr(b0 + 2 * j), vr(b0 + 2 * j + 1)))
a.I("v_add_f32 %s, %s, %s" % (vr(vL), vr(LS), vr(LS + 1)))
a.I("v_mov_b32 %s, %s" % (vr(tC), vr(vL)))
a.nop(2)
a.I("v_permlane32_swap_b32 %s, %s" % (vr(tC), vr(vL)))
a.I("v_add_f32 %s, %s, %s" % (vr(vL), vr(tC), vr(vL)))
ds_write("ds_write_b32", tA, vL, 1, LD - MXD)
stamp(4)
cst("SMend")

a.C("==== phase V ====")
tick = {}
tV = [tC, tD, tE, tF]
for n in range(64 + D):
    m = n - D
    if m >= 0:
        t, rem = divmod(m, 8); u, ai = divmod(rem, 4)
        q.wait(tick[m])
        mfma32(OACC + 16 * ai, RING + 4 * (m % 8), S + 16 * t + 4 * u, c0=(m < 4))
    if n < 64:
        t, rem = divmod(n, 8); u, ai = divmod(rem, 4)
        if rem == 0:
            wait_land("V%d" % t)
            if t % 4 == 0 or t == 7: cst("V%d" % t)
            for i in range(4):
                a.I("v_add_u32 %s, 0x%x, %s" % (vr(tV[i]), ADDR["V%d" % t], vr(aV[i])))
        o = 4096 * u
        rdtr(RING + 4 * (n % 8), tV[ai], o)
        tick[n] = rdtr(RING + 4 * (n % 8) + 2, tV[ai], o + 2048)
        if rem == 7: set_prog("V%d" % t)
stamp(5)
cst("Vend")
a.C("==== O reduce ====")
a.I("s_lshl_b32 %s, %s, 13" % (sr(sT0), sr(sWAVE)))
a.I("s_add_u32 %s, %s, %d" % (sr(sT0), sr(sT0), ADDR["ORS"]))
a.I("v_add_u32 %s, %s, %s" % (vr(tA), sr(sT0), vr(vL16)))
a.I("v_xor_b32 %s, 0x2000, %s" % (vr(tA + 0 + 5 - 5 + 4), vr(tA)))
a.I("v_add_u32 %s, 0x%x, %s" % (vr(tC), IMG_ADDR[0], vr(vIMG)))
assert (ADDR["ORS"] // 8192) % 2 == 0
wait_prog(STEPNAME[max(NEED["ORS"], NEED["OI0"]) - 1])
a.nop(8)
for j in range(8):
    ds_write("ds_write_b128", tA, OACC + 32 + 4 * j, 4, j * 1024)
set_flag(F_OR)
wait_partner(F_OR)
cst("ORp")
tk = []
tkl = ds_read("ds_read_b32", vP0, 1, tB, LD - MXD)
for j in range(8):
    tk.append(rd128(RING + 4 * j, tE, j * 1024))
set_prog("ORS")
q.wait(tkl)
a.I("v_add_f32 %s, %s, %s" % (vr(vL), vr(vP0), vr(vL)))
a.I("v_rcp_f32 %s, %s" % (vr(vL), vr(vL)))
a.I("s_nop 0")
a.I("v_mov_b32 %s, %s" % (vr(vP0), vr(vL)))
a.I("v_mov_b32 %s, %s" % (vr(vP1), vr(vL)))
PK = 96
for j in range(8):
    q.wait(tk[j])
    for h2 in range(2):
        d = OACC + 4 * j + 2 * h2
        a.I("v_pk_add_f32 %s, %s, %s" % (vr(d, 2), vr(d, 2), vr(RING + 4 * j + 2 * h2, 2)))
        a.I("v_pk_mul_f32 %s, %s, %s" % (vr(d, 2), vr(d, 2), vr(vP0, 2)))
    for h2 in range(2):
        d = OACC + 4 * j + 2 * h2
        a.I("v_cvt_pk_bf16_f32 %s, %s, %s" % (vr(PK + 2 * j + h2), vr(d), vr(d + 1)))
    if j % 2 == 1:
        jj = j // 2
        a.I("buffer_store_dwordx4 %s, %s, %s, %s offen offset:%d sc0 sc1" % (vr(PK + 4 * jj, 4), vr(vIMG), sr(SWS, 4), sr(sA1), jj * 1024))
        ds_write("ds_write_b128", tC, PK + 4 * jj, 4, jj * 1024)
set_flag(F_IMG)
a.I("s_lshl_b32 %s, %s, 7" % (sr(sT0), sr(sID)))
a.I("s_lshl_b32 %s, %s, 2" % (sr(sT1), sr(sWAVE)))
a.I("s_add_u32 %s, %s, %s" % (sr(sT0), sr(sT0), sr(sT1)))
a.I("s_add_u32 %s, %s, 0x%x" % (sr(sT0), sr(sT0), WS_FLAG1))
a.I("v_mov_b32 %s, %s" % (vr(tA), sr(sTAG)))
a.I("v_mov_b32 %s, 0" % vr(tB))
a.I("s_waitcnt vmcnt(0)")
a.I("s_mov_b64 exec, 1")
a.I("buffer_store_dword %s, %s, %s, %s offen sc0 sc1" % (vr(tA), vr(tB), sr(SWS, 4), sr(sT0)))
a.I("s_mov_b64 exec, -1")
if OPT["dump"] == 3: dump_regs(OACC, 32, 0)
stamp(6)
cst("ORend")

a.C("==== phase P ====")
tick = {}
tWO = tC; tOI = tE; tRB = tF
PACC = 160; RACC = 192; RA = [196, 200]; RB = [204, 208]
BRP = 96
def p_reads(n, part):
    step, kk = divmod(n, 4)
    hn, hh = divmod(step, 2)
    blk = 2 * hh + (kk >> 1); u = kk & 1
    wt = "WO%d" % step
    if part == 0:
        if kk == 0:
            if step == 0:
                wait_all(F_IMG)
                wait_land("WO0")
            else:
                wait_land(wt)
            if hh == 0 and hn > 0: wait_land("OI%d" % hn)
            cst("P%d" % step)
            a.I("v_add_u32 %s, 0x%x, %s" % (vr(tWO), ADDR[wt], vr(aWO[0])))
            if hh == 0:
                a.I("v_add_u32 %s, 0x%x, %s" % (vr(tOI), IMG_ADDR[hn], vr(vL16)))
                a.I("v_add_u32 %s, 0x%x, %s" % (vr(tRB), IMG_ADDR[hn], vr(aRB)))
        base = RING + 4 * (n % 4); o = 8192 * (kk >> 1) + 4096 * u
        rdtr(base, tWO, o)
        rdtr(base + 2, tWO, o + 2048)
        tick[(n, 0)] = rd128(BRP + 8 * (n % 4), tOI, (blk * 2 + u) * 1024)
    else:
        tick[(n, 1)] = rd128(BRP + 8 * (n % 4) + 4, tOI, 8192 + (blk * 2 + u) * 1024)
        if u == 0:
            ri = (n // 2) % 2
            o = hn * 4096 + blk * 1024
            rdtr(RA[ri], aRA, o)
            rdtr(RA[ri] + 2, aRA, o + 256)
            tick[(n, 2)] = rd128(RB[ri], tRB, blk * 2048)
        if kk == 3 and step < 3: set_prog("P%d" % step)
DG = OPT["dgp"]; NG = 32
for n in range(DG):
    p_reads(n, 0); p_reads(n, 1)
for n in range(NG):
    q.wait(tick[(n, 0)])
    mfma32(PACC, RING + 4 * (n % 4), BRP + 8 * (n % 4), c0=(n == 0))
    if n + DG < NG: p_reads(n + DG, 0)
    q.wait(tick[(n, 1)])
    mfma32(PACC + 16, RING + 4 * (n % 4), BRP + 8 * (n % 4) + 4, c0=(n == 0))
    if n % 2 == 0:
        q.wait(tick[(n, 2)])
        ri = (n // 2) % 2
        mfma16(RACC, RA[ri], RB[ri], c0=(n == 0))
    if n + DG < NG: p_reads(n + DG, 1)
stamp(7)
cst("Pend")
GS = 64
for g in range(6): a.I("v_mov_b32 %s, %s" % (vr(GS + 4 * g + 3), sr(sTAG)))
a.I("s_add_u32 %s, %s, 4096" % (sr(sT2), sr(sA2)))
a.nop(5)
def spos(d): return GS + 4 * (d // 3) + (d % 3)
srcs = [(PACC + 2 * j, PACC + 2 * j + 1) for j in range(16)] + [(RACC, RACC + 1), (RACC + 2, RACC + 3)]
for d, (x0, x1) in enumerate(srcs):
    a.I("v_cvt_pk_bf16_f32 %s, %s, %s" % (vr(spos(d)), vr(x0), vr(x1)))
    if d % 3 == 2:
        g = d // 3
        a.I("buffer_store_dwordx4 %s, %s, %s, %s offen offset:%d sc0 sc1" % (vr(GS + 4 * g, 4), vr(vL16), sr(SWS, 4), sr(sA2 if g < 4 else sT2), (g % 4) * 1024))
set_prog("PE")
stamp(8)
a.I("s_branch L_CEND")
compute_lines = a.lines

a = Asm()
a.L("L_LOADER")
T1, T2 = 30, 31
vX = [4, 5]; vW = [6, 7, 8, 9]; vK = [10, 11, 12, 13]; vV = 14; vWO = [15, 16, 17, 18]; vWOR = [19, 20, 21, 22]; vLn = 23
vFLl = 24; vFLOl = 25
vFTl = 104
sL4 = sLW
a.I("s_sub_u32 %s, %s, 4" % (sr(sL4), sr(sWAVE)))
a.I("s_lshl_b32 %s, %s, 12" % (sr(sLW8K), sr(sL4)))
a.I("v_lshlrev_b32 %s, 2, v1" % vr(T1))
a.I("v_add_u32 %s, 0x%x, %s" % (vr(T1), MISC, vr(T1)))
a.I("v_mov_b32 %s, 0" % vr(T2))
a.I("s_cmp_eq_u32 %s, 0" % sr(sL4))
a.I("s_cbranch_scc0 L_NOINIT")
a.I("ds_write_b32 %s, %s" % (vr(T1), vr(T2)))
a.L("L_NOINIT")
for i in range(2):
    a.I("v_lshrrev_b32 %s, 3, v1" % vr(T1))
    a.I("v_mul_u32_u24 %s, 1152, %s" % (vr(T1), vr(T1)))
    a.I("v_and_b32 %s, 7, v1" % vr(T2))
    a.I("v_xor_b32 %s, %s, v2" % (vr(T2), vr(T2)))
    if i & 1: a.I("v_xor_b32 %s, 4, %s" % (vr(T2), vr(T2)))
    a.I("v_lshl_add_u32 %s, %s, 4, %s" % (vr(T1), vr(T2), vr(T1)))
    a.I("v_add_u32 %s, %d, %s" % (vr(vX[i]), i * 8192, vr(T1)))
a.I("v_lshlrev_b32 %s, 2, v2" % vr(T2))
a.I("v_xor_b32 %s, %s, v3" % (vr(T2), vr(T2)))
a.I("v_lshlrev_b32 %s, 4, %s" % (vr(T2), vr(T2)))
a.I("v_lshl_add_u32 %s, v2, 13, %s" % (vr(T1), vr(T2)))
for i in range(4):
    a.I("v_add_u32 %s, %d, %s" % (vr(vW[i]), i * 31744, vr(T1)))
a.I("s_mul_i32 %s, %s, 18432" % (sr(sA0), sr(sL4)))
a.I("s_lshl_b32 %s, %s, 17" % (sr(sA1), sr(sL4)))
a.I("s_waitcnt lgkmcnt(0)")
a.I("s_mul_i32 %s, %s, 73728" % (sr(sT0), sr(sB)))
mk_srd(SX, pX, sT0, 73728)
a.I("s_lshl_b32 %s, %s, 8" % (sr(sT0), sr(sH)))
mk_srd(SW, pWQ, sT0, 575 * 8192 + 256)
issued = []
published = [0]
if OPT["pfa"]:
    a.I("s_lshl_b32 %s, %s, 2" % (sr(sT0), sr(sJQ)))
    a.I("s_add_u32 %s, %s, %s" % (sr(sT0), sr(sT0), sr(sL4)))
    a.I("s_mul_i32 %s, %s, %d" % (sr(sT0), sr(sT0), 36 * 128))
    a.I("v_lshlrev_b32 v40, 7, v1")
    a.I("v_lshrrev_b32 v42, 1, v1")
    a.I("v_lshlrev_b32 v42, 13, v42")
    a.I("v_and_b32 v43, 1, v1")
    a.I("v_lshl_add_u32 v42, v43, 7, v42")
    a.I("s_mul_i32 %s, %s, 72" % (sr(sT1), sr(sB)))
    a.I("s_mul_i32 %s, %s, 18" % (sr(sT2), sr(sL4)))
    a.I("s_add_u32 %s, %s, %s" % (sr(sT1), sr(sT1), sr(sT2)))
    a.I("s_lshl_b32 %s, %s, 13" % (sr(sT1), sr(sT1)))
    a.I("s_mov_b32 exec_lo, -1"); a.I("s_mov_b32 exec_hi, 0xf")
    if OPT["pfa"] == 1:
        a.I("buffer_load_dword v41, v42, %s, %s offen%s" % (sr(SW, 4), sr(sT1), " nt" if OPT["ntpf"] else ""))
    if OPT["pfa"] == 3:
        a.I("s_mov_b32 %s, %s" % (sr(sI2), sr(sT0)))
    else:
        a.I("buffer_load_dword v41, v40, %s, %s offen%s" % (sr(SX, 4), sr(sT0), " nt" if OPT["ntpf"] else ""))
    a.I("s_mov_b64 exec, -1")
if OPT["pk"]:
    a.I("s_and_b32 %s, %s, 1" % (sr(sT0), sr(sJQ)))
    a.I("s_cmp_eq_u32 %s, 1" % sr(sT0))
    a.I("s_cbranch_scc0 L_NOPK")
    a.I("s_lshr_b32 %s, %s, 1" % (sr(sT0), sr(sH)))
    a.I("s_lshl_b32 %s, %s, 4" % (sr(sT1), sr(sB)))
    a.I("s_add_u32 %s, %s, %s" % (sr(sT0), sr(sT0), sr(sT1)))
    a.I("s_lshl_b32 %s, %s, 17" % (sr(sT0), sr(sT0)))
    mk_srd(SK, pK, sT0, 131072)
    a.I("v_lshlrev_b32 v40, 7, v1")
    a.I("s_lshl_b32 %s, %s, 14" % (sr(sT0), sr(sL4)))
    if OPT["pk"] == 2:
        a.I("s_lshl_b32 %s, %s, 1" % (sr(sT0), sr(sT0)))
    elif OPT["rot"]:
        a.I("s_add_u32 %s, %s, 65536" % (sr(sT0), sr(sT0)))
    for j in range(OPT["pk"] * 2):
        a.I("buffer_load_dword v41, v40, %s, %s offen%s" % (sr(SK, 4), sr(sT0), " nt" if OPT["ntkv"] else ""))
        a.I("s_add_u32 %s, %s, 8192" % (sr(sT0), sr(sT0)))
    a.L("L_NOPK")
def dma(voff, srd, soff, imm, flags=""):
    if OPT["noload"]:
        a.I("s_nop 0"); return
    a.I("buffer_load_dwordx4 %s, %s, %s offen offset:%d%s lds" % (vr(voff), sr(srd, 4), sr(soff), imm, flags))
def late_setup():
    a.I("v_lshl_add_u32 %s, v2, 8, %s" % (vr(vV), vr(T2)))
    a.I("v_mul_u32_u24 %s, 1152, v2" % vr(T1))
    a.I("v_add_u32 %s, %s, %s" % (vr(T1), vr(T1), vr(T2)))
    for i in range(4):
        a.I("v_add_u32 %s, %d, %s" % (vr(vWO[i]), i * 3584, vr(T1)))
    for i in range(4):
        a.I("v_add_u32 %s, %d, v2" % (vr(T1), 4 * i))
        a.I("v_xor_b32 %s, %s, v3" % (vr(T1), vr(T1)))
        a.I("v_lshlrev_b32 %s, 4, %s" % (vr(T1), vr(T1)))
        a.I("v_lshl_add_u32 %s, v2, 8, %s" % (vr(vK[i]), vr(T1)))
    a.I("v_lshrrev_b32 %s, 1, v1" % vr(T1))
    a.I("v_mul_u32_u24 %s, 1152, %s" % (vr(T1), vr(T1)))
    a.I("v_and_b32 %s, 1, v1" % vr(T2))
    a.I("v_lshl_add_u32 %s, %s, 4, %s" % (vr(T1), vr(T2), vr(T1)))
    for i in range(4):
        a.I("v_add_u32 %s, %d, %s" % (vr(vWOR[i]), i * 35840, vr(T1)))
    a.I("v_lshlrev_b32 %s, 4, v1" % vr(vLn))
    kv_srds()
    mk_srd(SOUT, pOUT, None, 589824)
    if OPT["rot"]:
        a.I("s_and_b32 %s, %s, 1" % (sr(sT0), sr(sJQ)))
        a.I("s_lshl_b32 %s, %s, 16" % (sr(sT0), sr(sT0)))
        a.I("s_add_u32 %s, %s, %s" % (sr(sA3), sr(sT0), sr(sLW8K)))
    else:
        a.I("s_mov_b32 %s, %s" % (sr(sA3), sr(sLW8K)))
    a.I("s_xor_b32 %s, %s, 0x10000" % (sr(sA4), sr(sA3)))
    a.I("v_mov_b32 %s, 0x%x" % (vr(vFLl), MISC))
    a.I("s_lshl_b32 %s, %s, 2" % (sr(sT0), sr(sL4)))
    a.I("s_add_u32 %s, %s, 0x%x" % (sr(sT0), sr(sT0), MISC + F_LAND))
    a.I("v_mov_b32 %s, %s" % (vr(vFLOl), sr(sT0)))
def init_setup():
    mk_srd(SWS, pWS, None, WS_SIZE)
    a.I("s_lshl_b32 %s, %s, 7" % (sr(sT0), sr(sB)))
    a.I("v_mov_b32 v38, %s" % sr(sT0))
    a.I("buffer_load_dword v39, v38, %s, 0 offen sc1" % sr(SWS, 4)); issued.append("EPOCH")
def issue(unit):
    a.C("issue " + unit)
    if unit[0] == "A":
        i = int(unit[1:])
        a.I("s_add_u32 %s, %s, %d" % (sr(sT0), sr(sB), i))
        a.I("s_cmp_ge_u32 %s, 9" % sr(sT0))
        a.I("s_cselect_b32 %s, 9, 0" % sr(sT1))
        a.I("s_sub_u32 %s, %s, %s" % (sr(sA2), sr(sT0), sr(sT1)))
        a.I("s_lshl_b32 %s, %s, 7" % (sr(sT0), sr(sA2)))
        a.I("s_lshr_b32 %s, %s, 1" % (sr(sT1), sr(sLW8K)))
        a.I("s_add_u32 m0, %s, %d" % (sr(sT1), ADDR["X%d" % i]))
        a.I("s_add_u32 %s, %s, %s" % (sr(sT0), sr(sT0), sr(sA0)))
        for j in range(2):
            if OPT["nox"]: continue
            dma(vX[j], SX, sT0, j * 1024, " nt" if OPT["ntx"] else ""); issued.append(unit)
        a.I("s_lshl_b32 %s, %s, 19" % (sr(sT0), sr(sA2)))
        a.I("s_add_u32 m0, %s, %d" % (sr(sLW8K), ADDR["W%d" % i]))
        a.I("s_add_u32 %s, %s, %s" % (sr(sT0), sr(sT0), sr(sA1)))
        for j in range(4):
            if OPT["now"]: continue
            dma(vW[j], SW, sT0, j * 1024, " nt" if OPT["ntw"] else ""); issued.append(unit)
    elif unit.startswith("OI"):
        n = int(unit[2:])
        a.I("s_add_u32 m0, %s, %d" % (sr(sLW8K), IMG_ADDR[n]))
        a.I("s_nop 0")
        for j in range(4):
            dma(vLn, SWS, [sA1, sA3, sA4][n - 1], j * 1024, " sc0 sc1"); issued.append(unit)
    elif unit == "PF":
        if OPT["pfwo"]:
            a.I("s_lshl_b32 %s, %s, 2" % (sr(sT0), sr(sB)))
            a.I("s_add_u32 %s, %s, %s" % (sr(sT0), sr(sT0), sr(sJQ)))
            a.I("s_lshl_b32 %s, %s, 2" % (sr(sT0), sr(sT0)))
            a.I("s_add_u32 %s, %s, %s" % (sr(sT0), sr(sT0), sr(sL4)))
            a.I("s_mul_i32 %s, %s, %d" % (sr(sT0), sr(sT0), 36 * 128))
            a.I("v_lshlrev_b32 v40, 7, v1")
            a.I("s_mov_b32 exec_lo, -1"); a.I("s_mov_b32 exec_hi, 0xf")
            a.I("buffer_load_dword v41, v40, %s, %s offen%s" % (sr(SWO, 4), sr(sT0), " nt" if OPT["ntpf"] else "")); issued.append(unit)
            a.I("s_mov_b64 exec, -1")
    elif unit == "WOR":
        a.I("s_add_u32 %s, %s, %s" % (sr(sT0), sr(sL4), sr(sJQ)))
        a.I("s_and_b32 %s, %s, 3" % (sr(sT0), sr(sT0)))
        a.I("s_mul_i32 %s, %s, %d" % (sr(sT0), sr(sT0), 128 * 1152))
        a.I("s_lshl_b32 %s, %s, 5" % (sr(sT1), sr(sJQ)))
        a.I("s_add_u32 %s, %s, %s" % (sr(sT0), sr(sT0), sr(sT1)))
        a.I("s_add_u32 m0, %s, %d" % (sr(sLW8K), ADDR["WOR"]))
        a.I("s_add_u32 %s, %s, 1024" % (sr(sT0), sr(sT0)))
        for j in range(4):
            dma(vWOR[j], SWO, sT0, j * 1024, " nt" if OPT["ntwo"] else ""); issued.append(unit)
    elif unit[0:2] == "WO":
        u = int(unit[2:])
        a.I("s_lshl_b32 %s, %s, 1" % (sr(sT0), sr(sJQ)))
        a.I("s_add_u32 %s, %s, %d" % (sr(sT0), sr(sT0), u))
        a.I("s_and_b32 %s, %s, 7" % (sr(sT0), sr(sT0)))
        a.I("s_mul_i32 %s, %s, 73728" % (sr(sT0), sr(sT0)))
        a.I("s_add_u32 %s, %s, %s" % (sr(sT0), sr(sT0), sr(sA0)))
        a.I("s_lshl_b32 %s, %s, 8" % (sr(sT1), sr(sJQ)))
        a.I("s_add_u32 m0, %s, %d" % (sr(sLW8K), ADDR[unit]))
        a.I("s_add_u32 %s, %s, %s" % (sr(sT0), sr(sT0), sr(sT1)))
        for j in range(4):
            dma(vWO[j], SWO, sT0, j * 1024, " nt" if OPT["ntwo"] else ""); issued.append(unit)
    elif unit[0] in "KV":
        t = int(unit[1:])
        base = sA3 if t < 4 else sA4
        a.I("s_add_u32 m0, %s, %d" % (sr(sLW8K), ADDR[unit]))
        a.I("s_add_u32 %s, %s, %d" % (sr(sT0), sr(base), (t & 3) * 16384))
        for j in range(4):
            if unit[0] == "K": dma(vK[j], SK, sT0, j * 1024, " nt" if OPT["ntkv"] else "")
            else: dma(vV, SV, sT0, j * 1024, " nt" if OPT["ntkv"] else "")
            issued.append(unit)
    else:
        raise Exception(unit)
def publish(count):
    if count <= published[0]: return
    names = set(n for n, _ in units[:count])
    idxs = [i for i, t in enumerate(issued) if t in names]
    if idxs:
        n = len(issued) - 1 - max(idxs)
        a.I("s_waitcnt vmcnt(%d)" % min(n, 63))
    a.I("v_mov_b32 %s, %d" % (vr(vFTl), count))
    a.I("s_mov_b64 exec, 1")
    a.I("ds_max_u32 %s, %s" % (vr(vFLOl), vr(vFTl)))
    a.I("s_mov_b64 exec, -1")
    published[0] = count
def lstamp(i):
    if OPT["sel"] and units[i][0] not in ("A1", "A8", "K3", "K7", "V3", "V7", "WO3", "WO7"): return
    if OPT["stamps"] == 2:
        a.I("s_memrealtime s[90:91]"); a.I("s_waitcnt lgkmcnt(0)"); a.I("v_writelane_b32 v100, s90, %d" % i)
LOOK = OPT["look"]
proven = 0
for ui, (unit, need) in enumerate(units):
    if ui == 1:
        if OPT["pfa"] == 3:
            a.I("s_mov_b32 exec_lo, -1"); a.I("s_mov_b32 exec_hi, 0xf")
            a.I("buffer_load_dword v41, v40, %s, %s offen%s" % (sr(SX, 4), sr(sI2), " nt" if OPT["ntpf"] else "")); issued.append("PFX")
            a.I("s_mov_b64 exec, -1")
        a.I("v_mov_b32 %s, 0x%x" % (vr(vFLl), MISC))
        a.I("s_lshl_b32 %s, %s, 2" % (sr(sT0), sr(sL4)))
        a.I("s_add_u32 %s, %s, 0x%x" % (sr(sT0), sr(sT0), MISC + F_LAND))
        a.I("v_mov_b32 %s, %s" % (vr(vFLOl), sr(sT0)))
        a.I("s_waitcnt lgkmcnt(0)")
        a.I("s_barrier")
    if ui == 2:
        init_setup(); late_setup()

    if need > proven:
        save_pub = published[0]
        ok = newlbl("OK"); sp = newlbl("SP")
        a.I("s_cmp_ge_u32 %s, %d" % (sr(sKNOW), need))
        a.I("s_cbranch_scc1 %s" % ok)
        a.L(sp)
        a.I("ds_read_b128 %s, %s offset:%d" % (vr(vFTl, 4), vr(vFLl), F_PROG))
        a.I("s_waitcnt lgkmcnt(0)")
        a.I("v_min3_u32 %s, %s, %s, %s" % (vr(vFTl), vr(vFTl), vr(vFTl + 1), vr(vFTl + 2)))
        a.I("v_min_u32 %s, %s, %s" % (vr(vFTl), vr(vFTl), vr(vFTl + 3)))
        a.I("s_nop 0")
        a.I("v_readfirstlane_b32 %s, %s" % (sr(sKNOW), vr(vFTl)))
        a.I("s_add_i32 %s, %s, -1" % (sr(sBUD), sr(sBUD)))
        a.I("s_cmp_lt_i32 %s, 0" % sr(sBUD))
        a.I("s_cbranch_scc1 %s" % ok)
        a.I("s_cmp_ge_u32 %s, %d" % (sr(sKNOW), need))
        a.I("s_cbranch_scc1 %s" % ok)
        if OPT["lsleep"]: a.I("s_sleep %d" % OPT["lsleep"])
        a.I("s_branch %s" % sp)
        a.L(ok)
        proven = need
    if unit.startswith("OI") and OPT["lonly"]: continue
    if unit.startswith("OI"):
        n = int(unit[2:])
        lp = "L_POLL%d" % n
        if n == 1:
            publish(ui)
            a.I("s_mov_b32 %s, 0" % sr(sT3))
        else:
            a.I("s_and_b32 %s, %s, 0x%x" % (sr(sT0), sr(sA2), 0xF << (4 * (n - 1))))
            a.I("s_cbranch_scc0 %s_X" % lp)
            a.I("s_waitcnt vmcnt(0)")
            a.I("v_mov_b32 %s, %d" % (vr(vFTl), ui))
            a.I("s_mov_b64 exec, 1")
            a.I("ds_max_u32 %s, %s" % (vr(vFLOl), vr(vFTl)))
            a.I("s_mov_b64 exec, -1")
        a.L(lp)
        a.I("s_mov_b64 exec, 0xfff")
        a.I("buffer_load_dword v42, v43, %s, 0 offen sc0 sc1" % sr(SWS, 4))
        a.I("s_waitcnt vmcnt(0)")
        a.I("v_cmp_ne_u32 vcc, %s, v42" % sr(sTAG))
        a.I("s_mov_b64 exec, -1")
        a.I("s_add_u32 %s, %s, 1" % (sr(sT3), sr(sT3)))
        a.I("s_mov_b32 %s, vcc_lo" % sr(sA2))
        a.I("s_cmp_gt_u32 %s, 40000" % sr(sT3))
        a.I("s_cbranch_scc1 %s_X" % lp)
        a.I("s_and_b32 %s, %s, 0x%x" % (sr(sT0), sr(sA2), 0xF << (4 * (n - 1))))
        a.I("s_cbranch_scc1 %s" % lp)
        a.L(lp + "_X")
    if ui >= 1: a.I("ds_read_b128 %s, %s offset:%d" % (vr(vFTl + 4, 4), vr(vFLl), F_PROG))
    issue(unit)
    pub_emitted = [False]
    lk = 1 if (OPT["tail1"] and (unit.startswith("OI") or unit == "WO7")) else LOOK
    if ui - lk + 1 > 0:
        before = published[0]
        publish(ui - lk + 1)
        pub_emitted[0] = published[0] != before
    if ui >= 1:
        LS_ = {"A1": 1, "A5": 2, "K0": 3, "K4": 4, "V0": 5, "V4": 6, "WOR": 7, "WO6": 8}
        if OPT["stamps"] == 1 and unit in LS_:
            a.I("s_memrealtime %s" % sr(sSTAMP + 2 * LS_[unit], 2))
            a.I("s_waitcnt lgkmcnt(0)")
        else:
            a.I("s_waitcnt lgkmcnt(%d)" % (1 if (ui - LOOK + 1 > 0 and pub_emitted[0]) else 0))
        a.I("v_min3_u32 %s, %s, %s, %s" % (vr(vFTl + 4), vr(vFTl + 4), vr(vFTl + 5), vr(vFTl + 6)))
        a.I("v_min_u32 %s, %s, %s" % (vr(vFTl + 4), vr(vFTl + 4), vr(vFTl + 7)))
        a.I("s_nop 0")
        a.I("v_readfirstlane_b32 %s, %s" % (sr(sKNOW), vr(vFTl + 4)))
    lstamp(ui)
    if unit == "V0":
        a.I("v_readfirstlane_b32 %s, v39" % sr(sTAG))
        a.I("s_nop 0")
        a.I("s_add_u32 %s, %s, 1" % (sr(sTAG), sr(sTAG)))
    if unit == "V7":
        a.I("v_lshrrev_b32 v43, 2, v1")
        a.I("v_add_u32 v43, %s, v43" % sr(sJQ))
        a.I("v_add_u32 v43, 1, v43")
        a.I("v_and_b32 v43, 3, v43")
        a.I("v_lshlrev_b32 v43, 3, v43")
        a.I("s_andn2_b32 %s, %s, 0x18" % (sr(sT1), sr(sID)))
        a.I("v_or_b32 v43, %s, v43" % sr(sT1))
        a.I("v_lshlrev_b32 v43, 7, v43")
        a.I("v_and_b32 v44, 3, v1")
        a.I("v_lshl_add_u32 v43, v44, 2, v43")
        a.I("v_add_u32 v43, 0x%x, v43" % WS_FLAG1)
        for n in range(1, 4):
            a.I("s_add_u32 %s, %s, %d" % (sr(sT0), sr(sJQ), n))
            a.I("s_and_b32 %s, %s, 3" % (sr(sT0), sr(sT0)))
            a.I("s_lshl_b32 %s, %s, 3" % (sr(sT0), sr(sT0)))
            a.I("s_andn2_b32 %s, %s, 0x18" % (sr(sT1), sr(sID)))
            a.I("s_or_b32 %s, %s, %s" % (sr(sT0), sr(sT0), sr(sT1)))
            a.I("s_mul_i32 %s, %s, %d" % (sr(sT0), sr(sT0), IMG_BYTES))
            a.I("s_add_u32 %s, %s, %s" % (sr(sT0), sr(sT0), sr(sLW8K)))
            a.I("s_add_u32 %s, %s, 0x%x" % (sr([sA1, sA3, sA4][n - 1]), sr(sT0), WS_IMG))
publish(len(units))
if OPT["stamps"] == 2:
    a.I("v_writelane_b32 v100, %s, 63" % sr(sSTAMP))
    a.I("s_lshl_b32 %s, %s, 2" % (sr(sT0), sr(sID)))
    a.I("s_add_u32 %s, %s, %s" % (sr(sT0), sr(sT0), sr(sLW)))
    a.I("s_lshl_b32 %s, %s, 8" % (sr(sT0), sr(sT0)))
    a.I("s_add_u32 %s, %s, 0x%x" % (sr(sT0), sr(sT0), WS_STAMP + 0x100000))
    a.I("v_lshlrev_b32 v103, 2, v1")
    a.I("buffer_store_dword v100, v103, %s, %s offen" % (sr(SWS, 4), sr(sT0)))
if OPT["lonly"]:
    a.I("s_waitcnt vmcnt(0)")
    a.I("s_endpgm")
a.I("s_branch L_FINAL")
loader_lines = a.lines

a = Asm()
a.L("L_FINAL")
a.I("s_cmp_ge_u32 %s, 7" % sr(sWAVE))
a.I("s_cbranch_scc1 L_FIN_SKIP")
sP, sW, sG = sA1, sA2, sA3
a.I("s_mul_i32 %s, %s, 3" % (sr(sP), sr(sKS)))
a.I("s_add_u32 %s, %s, %s" % (sr(sP), sr(sP), sr(sLW)))
a.I("s_mul_i32 %s, %s, 43" % (sr(sW), sr(sP)))
a.I("s_lshr_b32 %s, %s, 8" % (sr(sW), sr(sW)))
a.I("s_mul_i32 %s, %s, 6" % (sr(sT0), sr(sW)))
a.I("s_sub_u32 %s, %s, %s" % (sr(sG), sr(sP), sr(sT0)))
a.I("s_mul_i32 %s, %s, 6144" % (sr(sT0), sr(sW)))
a.I("s_lshl_b32 %s, %s, 10" % (sr(sT1), sr(sG)))
a.I("s_add_u32 %s, %s, %s" % (sr(sT0), sr(sT0), sr(sT1)))
a.I("s_andn2_b32 %s, %s, 7" % (sr(sT1), sr(sID)))
a.I("s_mul_i32 %s, %s, %d" % (sr(sT1), sr(sT1), SLAB_BYTES))
a.I("s_add_u32 %s, %s, %s" % (sr(sT1), sr(sT1), sr(sT0)))
a.I("s_add_u32 %s, %s, 0x%x" % (sr(sA0), sr(sT1), WS_SLAB))
a.I("v_lshlrev_b32 v5, 4, v1")
a.I("s_mov_b32 %s, 0" % sr(sT3))
if OPT["finwait"]:
    a.L("L_FW")
    a.I("ds_read_b128 v[104:107], v24 offset:%d" % F_PROG)
    a.I("s_waitcnt lgkmcnt(0)")
    a.I("v_min3_u32 v104, v104, v105, v106")
    a.I("v_min_u32 v104, v104, v107")
    a.I("s_nop 0")
    a.I("v_readfirstlane_b32 %s, v104" % sr(sKNOW))
    a.I("s_add_i32 %s, %s, -1" % (sr(sBUD), sr(sBUD)))
    a.I("s_cmp_lt_i32 %s, 0" % sr(sBUD))
    a.I("s_cbranch_scc1 L_FW_X")
    a.I("s_cmp_ge_u32 %s, %d" % (sr(sKNOW), STEP["PE"] + 1))
    a.I("s_cbranch_scc1 L_FW_X")
    a.I("s_sleep 1")
    a.I("s_branch L_FW")
    a.L("L_FW_X")
def fin_loads():
    a.I("s_mov_b32 %s, %s" % (sr(sT1), sr(sA0)))
    for k in range(8):
        a.I("buffer_load_dwordx4 %s, v5, %s, %s offen sc0 sc1" % (vr(32 + 4 * k, 4), sr(SWS, 4), sr(sT1)))
        if k < 7: a.I("s_add_u32 %s, %s, %d" % (sr(sT1), sr(sT1), SLAB_BYTES))
fin_loads()
a.I("v_and_b32 v6, 31, v1")
a.I("v_mul_u32_u24 v6, 1152, v6")
a.I("v_lshrrev_b32 v7, 5, v1")
a.I("v_lshl_add_u32 v6, v7, 3, v6")
a.I("v_and_b32 v7, 15, v1")
a.I("v_mul_u32_u24 v7, 1152, v7")
a.I("v_lshrrev_b32 v8, 4, v1")
a.I("v_lshl_add_u32 v7, v8, 3, v7")
sO = [8, 9, 10]; sR = [12, 13, 14]
for i in range(3):
    a.I("s_mul_i32 %s, %s, 3" % (sr(sT0), sr(sG)))
    a.I("s_add_u32 %s, %s, %d" % (sr(sT0), sr(sT0), i))
    a.I("s_bfe_u32 %s, %s, 0x20001" % (sr(sT1), sr(sT0)))
    a.I("s_lshl_b32 %s, %s, 3" % (sr(sT1), sr(sT1)))
    a.I("s_and_b32 %s, %s, 1" % (sr(sT2), sr(sT0)))
    a.I("s_lshl_b32 %s, %s, 1" % (sr(sT2), sr(sT2)))
    a.I("s_add_u32 %s, %s, %s" % (sr(sT1), sr(sT1), sr(sT2)))
    a.I("s_lshl_b32 %s, %s, 5" % (sr(sT2), sr(sW)))
    a.I("s_add_u32 %s, %s, %s" % (sr(sT1), sr(sT1), sr(sT2)))
    a.I("s_lshl_b32 %s, %s, 7" % (sr(sT2), sr(sJQ)))
    a.I("s_add_u32 %s, %s, %s" % (sr(sT1), sr(sT1), sr(sT2)))
    a.I("s_lshr_b32 %s, %s, 3" % (sr(sT2), sr(sT0)))
    a.I("s_and_b32 %s, %s, 1" % (sr(sT2), sr(sT2)))
    a.I("s_lshl_b32 %s, %s, 5" % (sr(sT2), sr(sT2)))
    a.I("s_lshl_b32 %s, %s, 6" % (sr(sO[i]), sr(sB)))
    a.I("s_add_u32 %s, %s, %s" % (sr(sT2), sr(sT2), sr(sO[i])))
    a.I("s_mul_i32 %s, %s, 1152" % (sr(sT2), sr(sT2)))
    a.I("s_lshl_b32 %s, %s, 1" % (sr(sT1), sr(sT1)))
    a.I("s_add_u32 %s, %s, %s" % (sr(sO[i]), sr(sT1), sr(sT2)))
    a.I("s_sub_u32 %s, %s, 16" % (sr(sT1), sr(sT0)))
    a.I("s_lshl_b32 %s, %s, 1" % (sr(sT1), sr(sT1)))
    a.I("s_lshl_b32 %s, %s, 4" % (sr(sT2), sr(sJQ)))
    a.I("s_add_u32 %s, %s, %s" % (sr(sT1), sr(sT1), sr(sT2)))
    a.I("s_add_u32 %s, %s, 512" % (sr(sT1), sr(sT1)))
    a.I("s_lshl_b32 %s, %s, 1" % (sr(sT1), sr(sT1)))
    a.I("s_lshl_b32 %s, %s, 4" % (sr(sT2), sr(sW)))
    a.I("s_lshl_b32 %s, %s, 6" % (sr(sR[i]), sr(sB)))
    a.I("s_add_u32 %s, %s, %s" % (sr(sT2), sr(sT2), sr(sR[i])))
    a.I("s_mul_i32 %s, %s, 1152" % (sr(sT2), sr(sT2)))
    a.I("s_add_u32 %s, %s, %s" % (sr(sT1), sr(sT1), sr(sT2)))
    a.I("s_cmp_ge_u32 %s, 16" % sr(sT0))
    a.I("s_cselect_b32 %s, %s, %s" % (sr(sO[i]), sr(sT1), sr(sO[i])))
    a.I("s_cselect_b32 %s, 1, 0" % sr(sR[i]))
a.I("s_branch L_FIN_CHK")
a.L("L_FIN_RETRY")
fin_loads()
a.L("L_FIN_CHK")
a.I("s_waitcnt vmcnt(0)")
a.I("v_xor_b32 v12, %s, v35" % sr(sTAG))
for k in range(1, 8):
    a.I("v_xor_b32 v13, %s, v%d" % (sr(sTAG), 35 + 4 * k))
    a.I("v_or_b32 v12, v13, v12")
a.I("v_cmp_ne_u32 vcc, 0, v12")
a.I("s_add_u32 %s, %s, 1" % (sr(sT3), sr(sT3)))
a.I("s_cmp_gt_u32 %s, 40000" % sr(sT3))
a.I("s_cbranch_scc1 L_FIN_GO")
a.I("s_cbranch_vccnz L_FIN_RETRY")
a.L("L_FIN_GO")
for i in range(3):
    acc = 64 + 2 * i
    for k in range(8):
        r = 32 + 4 * k + i
        if k == 0:
            a.I("v_lshlrev_b32 v%d, 16, v%d" % (acc, r))
            a.I("v_and_b32 v%d, 0xffff0000, v%d" % (acc + 1, r))
        else:
            t = 72 + 2 * ((k + i) % 3)
            a.I("v_lshlrev_b32 v%d, 16, v%d" % (t, r))
            a.I("v_and_b32 v%d, 0xffff0000, v%d" % (t + 1, r))
            a.I("v_pk_add_f32 v[%d:%d], v[%d:%d], v[%d:%d]" % (acc, acc + 1, acc, acc + 1, t, t + 1))
    a.I("v_cvt_pk_bf16_f32 v%d, v%d, v%d" % (80 + i, acc, acc + 1))
    a.I("s_cmp_eq_u32 %s, 1" % sr(sR[i]))
    a.I("s_cselect_b64 vcc, -1, 0")
    a.I("v_cndmask_b32 v%d, v6, v7, vcc" % (84 + i))
    a.I("buffer_store_dword v%d, v%d, %s, %s offen" % (80 + i, 84 + i, sr(SOUT, 4), sr(sO[i])))
a.I("s_and_b32 %s, %s, 31" % (sr(sT0), sr(sID)))
a.I("s_cmp_eq_u32 %s, 0" % sr(sT0))
a.I("s_cbranch_scc0 L_FIN_SKIP")
a.I("s_cmp_eq_u32 %s, 4" % sr(sWAVE))
a.I("s_cbranch_scc0 L_FIN_SKIP")
a.I("s_lshl_b32 %s, %s, 7" % (sr(sT0), sr(sB)))
a.I("v_mov_b32 v4, %s" % sr(sTAG))
a.I("v_mov_b32 v5, 0")
a.I("s_mov_b64 exec, 1")
a.I("buffer_store_dword v4, v5, %s, %s offen sc0 sc1" % (sr(SWS, 4), sr(sT0)))
a.I("s_mov_b64 exec, -1")
a.L("L_FIN_SKIP")
a.L("L_CEND")
if OPT["stamps"] == 4:
    a.I("s_cmp_lt_u32 %s, 4" % sr(sWAVE))
    a.I("s_cbranch_scc0 L_NOCST")
    a.I("s_waitcnt lgkmcnt(0)")
    for i in range(len(CST)):
        a.I("v_writelane_b32 v100, %s, %d" % (sr(CPAIRS[i]), i))
    a.I("s_lshl_b32 %s, %s, 2" % (sr(sT0), sr(sID)))
    a.I("s_add_u32 %s, %s, %s" % (sr(sT0), sr(sT0), sr(sWAVE)))
    a.I("s_lshl_b32 %s, %s, 8" % (sr(sT0), sr(sT0)))
    a.I("s_add_u32 %s, %s, 0x%x" % (sr(sT0), sr(sT0), WS_STAMP + 0x200000))
    a.I("v_lshlrev_b32 v103, 2, v1")
    a.I("buffer_store_dword v100, v103, %s, %s offen" % (sr(SWS, 4), sr(sT0)))
    a.L("L_NOCST")
if OPT["stamps"]:
    a.I("s_memrealtime %s" % sr(sSTAMP + 2 * 9, 2))
    a.I("s_waitcnt lgkmcnt(0) vmcnt(0)")
    a.I("s_lshl_b32 %s, %s, 3" % (sr(sT0), sr(sID)))
    a.I("s_add_u32 %s, %s, %s" % (sr(sT0), sr(sT0), sr(sWAVE)))
    a.I("s_lshl_b32 %s, %s, 6" % (sr(sT0), sr(sT0)))
    a.I("s_add_u32 %s, %s, 0x%x" % (sr(sT0), sr(sT0), WS_STAMP))
    a.I("v_mov_b32 v5, 0")
    a.I("s_mov_b64 exec, 1")
    for i in range(10):
        a.I("v_mov_b32 v4, %s" % sr(sSTAMP + 2 * i))
        a.I("buffer_store_dword v4, v5, %s, %s offen offset:%d" % (sr(SWS, 4), sr(sT0), i * 4))
    a.I("s_waitcnt vmcnt(0)")
a.L("L_END")
a.I("s_endpgm")
final_lines = a.lines

tail = """
.section .rodata,"a"
.p2align 6
.amdhsa_kernel %s
  .amdhsa_next_free_vgpr 256
  .amdhsa_next_free_sgpr 96
  .amdhsa_accum_offset 256
  .amdhsa_group_segment_fixed_size 0
  .amdhsa_kernarg_size 64
  .amdhsa_user_sgpr_count 2
  .amdhsa_user_sgpr_kernarg_segment_ptr 1
  .amdhsa_system_sgpr_workgroup_id_x 1
.end_amdhsa_kernel
""" % KNAME

probs = []
for nm, ls in (("compute", entry_lines + compute_lines + final_lines), ("loader", entry_lines + loader_lines + final_lines)):
    probs += check_hazards(ls, nm)
    probs += check_hazards([l for l in ls if ";slow" not in l], nm + "-fast")
for p in sorted(set(probs)): print("HAZARD", p)
out = "\n".join(hdr + entry_lines + loader_lines + compute_lines + final_lines) + "\n" + tail
if OPT["scx"] == 0: out = out.replace(" sc0 sc1", " sc1")
open(sys.argv[1], "w").write(out)
open(sys.argv[1] + ".bar", "w").write(",".join(n for n, _ in units))
open(sys.argv[1] + ".cst", "w").write(",".join(CST))
print("units", [(n, x) for n, x in units], "lines", out.count("\n"))
```

```python
import sys, struct
from asmlib import *

KNAME = "standalone__gqa_block_cached__near_ridge_kernel"
OPT = dict(dump=0, stamps=0, ntkv=1, ntw=0, ntx=0, ntwo=0, rot=1, tlb=1, pfwo=1, prio=1, lsleep=1, look=2, pk=1, pfa=0, dga=3, initat=4, nowait=0, noload=0, lonly=0, sel=0, spread=1, ntpf=1, pfat=0, nox=0, now=0, scx=0, light=1, dgp=2, finwait=1, oiord=1, tail1=1, outsc=0, lateflag=1, codepf=0)
for a_ in sys.argv[2:]:
    k, v = a_.split("="); OPT[k] = int(v)

WS_EPOCH = 0x0
WS_FLAG1 = 0x1000
WS_IMG   = 0x100000
WS_SLAB  = 0x800000
SLAB_BYTES = 24576
IMG_BYTES = 16384
WS_DUMP  = 0x2000000
WS_STAMP = 0x1800000
WS_SIZE  = 0x10000000

SX, SW, SK, SV, SWO, SWS, SOUT = 8, 12, 16, 20, 24, 28, 32
KARG = 36
sKS, sJQ, sB, sH, sWAVE, sLW, sTAG, sID = 52, 53, 54, 55, 56, 57, 58, 59
sT0, sT1, sT2, sT3 = 60, 61, 62, 63
sC = 64
sLW8K = 66
sA0, sA1, sA2, sA3, sA4 = 67, 68, 69, 70, 71
sSTAMP = 72
sKNOW = 92
sBUD = 93
sKNOW2 = 94
sI0, sI1, sI2 = 4, 5, 6

SLOT = lambda i: i * 16384
XB = 131072
MISC = 155648
F_LAND, F_PROG, F_QX, F_MX, F_OR, F_IMG, F_PX = 0, 16, 32, 48, 64, 80, 96
MXD = 1024; LD = 2048
LDS_BYTES = 163840
def f32bits(x): return struct.unpack("<I", struct.pack("<f", x))[0]
SCALE = (128 ** -0.5) * 1.4426950408889634

STEP = {}
for i in range(9): STEP["A%d" % i] = i
STEP["QS"] = 9
for t in range(8): STEP["K%d" % t] = 10 + t
for t in range(8): STEP["V%d" % t] = 18 + t
STEP["ORS"] = 26
for u in range(8): STEP["P%d" % u] = 27 + u
STEP["PE"] = 35
ADDR = {}; SIZE = {}
XG = [XB, XB + 8192, XB + 16384, SLOT(7), SLOT(7) + 8192, SLOT(6)]
for i in range(9):
    ADDR["W%d" % i] = SLOT(i % 6); ADDR["X%d" % i] = XG[i % 6]
for t, s_ in enumerate([3, 4, 7, 5, 6, 0, 2]): ADDR["K%d" % t] = SLOT(s_)
ADDR["K7"] = XB
ADDR["QS"] = SLOT(1)
for t, s_ in enumerate([1, 3, 4, 7, 5, 6, 0, 2]): ADDR["V%d" % t] = SLOT(s_)
for u, s_ in enumerate([1, 3, 4, 0, 1, 3, 7, 4]): ADDR["WO%d" % u] = SLOT(s_)
ADDR["WOR"] = XB
ADDR["ORS"] = SLOT(5)
IMG_ADDR = [SLOT(7), SLOT(2), SLOT(5), SLOT(6)]
alloc = []
def A_(name, addr, size, step): alloc.append((name, addr, size, step))
def need_of(addr, size, upto):
    n = 0
    for (nm, a0, s0, st) in alloc[:upto]:
        if a0 < addr + size and addr < a0 + s0: n = max(n, st + 1)
    return n
NEED = {}
def place(name, addr, size, step):
    NEED[name] = need_of(addr, size, len(alloc)); A_(name, addr, size, step)
for i in range(9):
    place("X%d" % i, ADDR["X%d" % i], 8192, STEP["A%d" % i]); place("W%d" % i, ADDR["W%d" % i], 16384, STEP["A%d" % i])
place("QS", ADDR["QS"], 16384, STEP["QS"])
for t in range(8): place("K%d" % t, ADDR["K%d" % t], 16384, STEP["K%d" % t])
for t in range(8): place("V%d" % t, ADDR["V%d" % t], 16384, STEP["V%d" % t])
place("WOR", ADDR["WOR"], 16384, STEP["P7"])
for u in range(4): place("WO%d" % u, ADDR["WO%d" % u], 16384, STEP["P%d" % u])
place("ORS", ADDR["ORS"], 32768, STEP["ORS"])
place("OI0", IMG_ADDR[0], 16384, STEP["P1"])
for n in range(1, 4): place("OI%d" % n, IMG_ADDR[n], 16384, STEP["P%d" % (2 * n + 1)])
for u in range(4, 8): place("WO%d" % u, ADDR["WO%d" % u], 16384, STEP["P%d" % u])
STEPNAME = {v: k for k, v in STEP.items()}
units = []
for i in range(9): units.append(("A%d" % i, max(NEED["X%d" % i], NEED["W%d" % i])))
for t in range(8): units.append(("K%d" % t, NEED["K%d" % t]))
for t in range(8): units.append(("V%d" % t, NEED["V%d" % t]))
if OPT["pfat"] == 0: units.append(("PF", 0))
else: units.insert(9, ("PF", 0))
units.append(("WOR", NEED["WOR"]))
if OPT["oiord"] == 0:
    for u in range(4): units.append(("WO%d" % u, NEED["WO%d" % u]))
    for n in range(1, 4): units.append(("OI%d" % n, NEED["OI%d" % n]))
    for u in range(4, 8): units.append(("WO%d" % u, NEED["WO%d" % u]))
else:
    for u in range(7): units.append(("WO%d" % u, NEED["WO%d" % u]))
    for n in range(1, 4): units.append(("OI%d" % n, NEED["OI%d" % n]))
    units.append(("WO7", NEED["WO7"]))
UIDX = {n: i for i, (n, _) in enumerate(units)}

hdr = ["; fused GQA kernel: Q-proj + attention + out-proj; 256 WGs x 512 threads (4 compute + 4 loader waves)",
       "; @launch grid=(256,1,1) block=(512,1,1) lds=%d" % LDS_BYTES,
       '.amdgcn_target "amdgcn-amd-amdhsa--gfx950"', ".text", ".globl %s" % KNAME, ".p2align 8",
       ".type %s,@function" % KNAME, "%s:" % KNAME]

a = Asm()
lbl = [0]
def newlbl(p):
    lbl[0] += 1; return "L_%s%d" % (p, lbl[0])
def stamp(idx):
    if OPT["stamps"] == 4 and idx >= 1: return
    if OPT["stamps"] == 3 and 1 <= idx <= 8:
        a.I("s_mov_b32 %s, %s" % (sr(sSTAMP + 2 * idx), sr(sBUD)))
    elif OPT["stamps"]:
        a.I("s_memrealtime %s" % sr(sSTAMP + 2 * idx, 2))
        a.I("s_waitcnt lgkmcnt(0)")

CST = []
CPAIRS = list(range(8, 28, 2)) + list(range(36, 52, 2)) + list(range(74, 92, 2))
def cst(name):
    if OPT["stamps"] == 4 and len(CST) < len(CPAIRS):
        a.I("s_memtime %s" % sr(CPAIRS[len(CST)], 2)); CST.append(name)
def spin(known, need, rd, nvals, vt, pre=None):
    ok = newlbl("OK"); sp = newlbl("SP")
    a.I("s_cmp_ge_u32 %s, %d" % (sr(known), need))
    a.I("s_cbranch_scc1 %s" % ok)
    n0 = len(a.lines)
    a.L(sp)
    a.I(rd)
    a.I("s_waitcnt lgkmcnt(0)")
    if nvals == 4:
        a.I("v_min3_u32 %s, %s, %s, %s" % (vr(vt), vr(vt), vr(vt + 1), vr(vt + 2)))
        a.I("v_min_u32 %s, %s, %s" % (vr(vt), vr(vt), vr(vt + 3)))
        a.I("s_nop 0")
    a.I("v_readfirstlane_b32 %s, %s" % (sr(known), vr(vt)))
    a.I("s_add_i32 %s, %s, -1" % (sr(sBUD), sr(sBUD)))
    a.I("s_cmp_lt_i32 %s, 0" % sr(sBUD))
    a.I("s_cbranch_scc1 %s" % ok)
    a.I("s_cmp_ge_u32 %s, %d" % (sr(known), need))
    a.I("s_cbranch_scc0 %s" % sp)
    for i in range(n0, len(a.lines)): a.lines[i] += " ;slow"
    a.L(ok)

a.I("s_cmp_ge_u32 s2, 256")
a.I("s_cbranch_scc1 L_END")
a.I("s_load_dwordx16 %s, s[0:1], 0" % sr(KARG, 16))
if OPT["stamps"]:
    a.I("s_memrealtime %s" % sr(sSTAMP, 2))
a.I("v_lshrrev_b32 v2, 6, v0")
a.I("v_and_b32 v1, 63, v0")
a.I("s_mov_b32 %s, s2" % sr(sID))
a.I("v_readfirstlane_b32 %s, v2" % sr(sWAVE))
a.I("s_and_b32 %s, s2, 7" % sr(sKS))
a.I("s_lshr_b32 %s, s2, 3" % sr(sJQ))
a.I("s_and_b32 %s, %s, 3" % (sr(sJQ), sr(sJQ)))
a.I("s_lshr_b32 %s, s2, 5" % sr(sB))
a.I("s_lshl_b32 %s, %s, 2" % (sr(sH), sr(sKS)))
a.I("s_add_u32 %s, %s, %s" % (sr(sH), sr(sH), sr(sJQ)))
a.I("v_lshrrev_b32 v2, 4, v1")
a.I("v_and_b32 v3, 15, v1")
a.I("s_mov_b32 %s, 0" % sr(sKNOW))
a.I("s_mov_b32 %s, 0" % sr(sKNOW2))
a.I("s_mov_b32 %s, 0x80000" % sr(sBUD))
a.I("s_cmp_lt_u32 %s, 4" % sr(sWAVE))
a.I("s_cbranch_scc1 L_COMPUTE")
entry_lines = a.lines

pX, pK, pV, pWQ, pWO, pOUT, pDBG, pWS = [KARG + 2 * i for i in range(8)]
def mk_srd(d, p, off_sgpr, size):
    if off_sgpr is None:
        a.I("s_mov_b32 %s, %s" % (sr(d), sr(p)))
        a.I("s_mov_b32 %s, %s" % (sr(d + 1), sr(p + 1)))
    else:
        a.I("s_add_u32 %s, %s, %s" % (sr(d), sr(p), sr(off_sgpr)))
        a.I("s_addc_u32 %s, %s, 0" % (sr(d + 1), sr(p + 1)))
    a.I("s_mov_b32 %s, 0x%x" % (sr(d + 2), size))
    a.I("s_mov_b32 %s, 0x00020000" % sr(d + 3))
def kv_srds():
    a.I("s_lshr_b32 %s, %s, 1" % (sr(sT0), sr(sH)))
    a.I("s_lshl_b32 %s, %s, 4" % (sr(sT1), sr(sB)))
    a.I("s_add_u32 %s, %s, %s" % (sr(sT0), sr(sT0), sr(sT1)))
    a.I("s_lshl_b32 %s, %s, 17" % (sr(sT0), sr(sT0)))
    mk_srd(SK, pK, sT0, 131072)
    mk_srd(SV, pV, sT0, 131072)
    a.I("s_mul_i32 %s, %s, 589824" % (sr(sT0), sr(sKS)))
    mk_srd(SWO, pWO, sT0, 589824)

a = Asm()
q = LdsQ(a)
def ds_read(kind, dst, n, addr, off):
    assert 0 <= off < 65536, off
    a.I("%s %s, %s offset:%d" % (kind, vr(dst, n), vr(addr), off))
    return q.issue()
def rd128(dst, addr, off): return ds_read("ds_read_b128", dst, 4, addr, off)
def rdtr(dst, addr, off): return ds_read("ds_read_b64_tr_b16", dst, 2, addr, off)
def ds_write(kind, addr, src, n, off):
    assert 0 <= off < 65536
    a.I("%s %s, %s offset:%d" % (kind, vr(addr), vr(src, n), off))
    return q.issue()
def mfma32(d, A, B, c0=False):
    a.I("v_mfma_f32_32x32x16_bf16 %s, %s, %s, %s" % (vr(d, 16), vr(A, 4), vr(B, 4), "0" if c0 else vr(d, 16)))
def mfma16(d, A, B, c0=False):
    a.I("v_mfma_f32_16x16x32_bf16 %s, %s, %s, %s" % (vr(d, 4), vr(A, 4), vr(B, 4), "0" if c0 else vr(d, 4)))

vFLP = 0; vFL = 2; vFLO = 3
aX = [4, 5, 6, 7]; aW = [8, 9]; aK = 10; aV = [11, 12, 13, 14]; aWO = [15, 16]; aOI = 17; aRA = 18; aRB = 19
tA, tB, tC, tD, tE, tF = 20, 21, 22, 23, 24, 25
vIMG, vL16 = 26, 27
vFT = 28
vM, vL, vP0, vP1 = 4, 5, 6, 7
LS = 8
RING = 32; QF = 64; KR = 96; OACC = 64; S = 128

def wait_land(unit):
    if OPT["nowait"] and not unit.startswith("OI"): return
    spin(sKNOW, UIDX[unit] + 1, "ds_read_b128 %s, %s offset:%d" % (vr(vFT, 4), vr(vFL), F_LAND), 4, vFT)
def wait_prog(step):
    spin(sKNOW2, STEP[step] + 1, "ds_read_b128 %s, %s offset:%d" % (vr(vFT, 4), vr(vFL), F_PROG), 4, vFT)
def set_prog(step):
    a.I("v_mov_b32 %s, %d" % (vr(vFT), STEP[step] + 1))
    a.I("s_mov_b64 exec, 1")
    ds_write("ds_write_b32", vFLO, vFT, 1, F_PROG)
    a.I("s_mov_b64 exec, -1")
def set_flag(off):
    a.I("v_mov_b32 %s, 1" % vr(vFT))
    a.I("s_mov_b64 exec, 1")
    ds_write("ds_write_b32", vFLO, vFT, 1, off)
    a.I("s_mov_b64 exec, -1")
def wait_partner(off):
    a.I("s_mov_b32 %s, 0" % sr(sT3))
    spin(sT3, 1, "ds_read_b32 %s, %s offset:%d" % (vr(vFT), vr(vFLP), off), 1, vFT)
def wait_all(off):
    a.I("s_mov_b32 %s, 0" % sr(sT3))
    spin(sT3, 1, "ds_read_b128 %s, %s offset:%d" % (vr(vFT, 4), vr(vFL), off), 4, vFT)

a.L("L_COMPUTE")
if OPT["codepf"]:
    a.I("s_cmp_eq_u32 %s, 3" % sr(sWAVE))
    a.I("s_cbranch_scc0 L_NOCPF")
    a.I("s_getpc_b64 s[4:5]")
    a.L("L_PCREF")
    a.I("s_lshr_b32 %s, %s, 3" % (sr(sT0), sr(sID)))
    a.I("s_mul_i32 %s, %s, %d" % (sr(sT0), sr(sT0), OPT["codepf"] * 128))
    a.I("s_add_u32 s4, s4, %s" % sr(sT0))
    a.I("s_addc_u32 s5, s5, 0")
    a.I("v_lshlrev_b32 v9, 7, v1")
    a.I("s_mov_b64 exec, 0x%x" % ((1 << OPT["codepf"]) - 1))
    a.I("global_load_dword v9, v9, s[4:5]")
    a.I("s_mov_b64 exec, -1")
    a.L("L_NOCPF")
if OPT["prio"]: a.I("s_setprio 1")
sQH = sA0
a.I("s_and_b32 %s, %s, 1" % (sr(sLW), sr(sWAVE)))
a.I("s_lshl_b32 %s, %s, 13" % (sr(sLW8K), sr(sLW)))
a.I("s_lshr_b32 %s, %s, 1" % (sr(sQH), sr(sWAVE)))
a.I("s_mov_b32 %s, 0x%x" % (sr(sC), f32bits(SCALE)))
a.I("s_mov_b32 %s, 0x%x" % (sr(sC + 1), f32bits(SCALE)))
hf, r_, c4, mh, l31, L4, L15 = 32, 33, 34, 35, 36, 43, 44
T1, T2, T3 = 37, 38, 39
a.I("v_mov_b32 %s, v2" % vr(L4))
a.I("v_mov_b32 %s, v3" % vr(L15))
a.I("v_lshrrev_b32 %s, 5, v1" % vr(hf))
a.I("v_lshrrev_b32 %s, 2, v3" % vr(r_))
a.I("v_and_b32 %s, 3, v1" % vr(c4))
a.I("v_and_b32 %s, 1, v2" % vr(mh))
a.I("v_and_b32 %s, 31, v1" % vr(l31))
a.I("s_waitcnt lgkmcnt(0)")
mk_srd(SWS, pWS, None, WS_SIZE)
mk_srd(SOUT, pOUT, None, 589824)
a.I("s_mul_i32 %s, %s, %d" % (sr(sA1), sr(sID), IMG_BYTES))
a.I("s_add_u32 %s, %s, 0x%x" % (sr(sA1), sr(sA1), WS_IMG))
a.I("s_mul_i32 %s, %s, %d" % (sr(sA2), sr(sID), SLAB_BYTES))
a.I("s_mul_i32 %s, %s, 6144" % (sr(sT0), sr(sWAVE)))
a.I("s_add_u32 %s, %s, %s" % (sr(sA2), sr(sA2), sr(sT0)))
a.I("s_add_u32 %s, %s, 0x%x" % (sr(sA2), sr(sA2), WS_SLAB))
a.I("s_lshl_b32 %s, %s, 7" % (sr(sT0), sr(sB)))
a.I("v_mov_b32 v31, %s" % sr(sT0))
a.I("buffer_load_dword v16, v31, %s, 0 offen sc1" % sr(SWS, 4))
if OPT["tlb"]:
    kv_srds()
    a.I("v_mov_b32 v254, 0")
    a.I("s_mov_b64 exec, 1")
    l0 = newlbl("TW"); l1 = newlbl("TW"); l2 = newlbl("TW"); le = newlbl("TW")
    a.I("s_cmp_eq_u32 %s, 0" % sr(sWAVE)); a.I("s_cbranch_scc0 %s" % l0)
    a.I("buffer_load_dword v9, v254, %s, 0 offen nt" % sr(SK, 4))
    a.I("buffer_load_dword v9, v254, %s, 0 offen" % sr(SOUT, 4))
    a.I("s_branch %s" % le)
    a.L(l0)
    a.I("s_cmp_eq_u32 %s, 1" % sr(sWAVE)); a.I("s_cbranch_scc0 %s" % l1)
    a.I("buffer_load_dword v9, v254, %s, 0 offen nt" % sr(SV, 4))
    a.I("buffer_load_dword v9, v254, %s, %s offen sc1" % (sr(SWS, 4), sr(sA1)))
    a.I("buffer_load_dword v9, v254, %s, 0 offen sc1" % sr(SWS, 4))
    a.I("s_branch %s" % le)
    a.L(l1)
    a.I("s_cmp_eq_u32 %s, 2" % sr(sWAVE)); a.I("s_cbranch_scc0 %s" % l2)
    a.I("buffer_load_dword v9, v254, %s, 0 offen" % sr(SWO, 4))
    a.I("s_mov_b32 %s, 589820" % sr(sT0))
    a.I("buffer_load_dword v9, v254, %s, %s offen" % (sr(SWO, 4), sr(sT0)))
    a.I("s_branch %s" % le)
    a.L(l2)
    a.I("s_andn2_b32 %s, %s, 7" % (sr(sT1), sr(sID)))
    a.I("s_mul_i32 %s, %s, %d" % (sr(sT1), sr(sT1), SLAB_BYTES))
    a.I("s_add_u32 %s, %s, 0x%x" % (sr(sT1), sr(sT1), WS_SLAB))
    a.I("buffer_load_dword v9, v254, %s, %s offen sc1" % (sr(SWS, 4), sr(sT1)))
    a.I("s_add_u32 %s, %s, %d" % (sr(sT1), sr(sT1), SLAB_BYTES * 8 - 4))
    a.I("buffer_load_dword v9, v254, %s, %s offen sc1" % (sr(SWS, 4), sr(sT1)))
    a.L(le)
    a.I("s_mov_b64 exec, -1")
a.I("v_lshlrev_b32 %s, 7, %s" % (vr(T1), vr(l31)))
a.I("v_add_u32 %s, 0x%x, %s" % (vr(T1), XB, vr(T1)))
a.I("v_bfe_u32 %s, %s, 1, 3" % (vr(T2), vr(l31)))
a.I("v_xor_b32 %s, %s, %s" % (vr(T2), vr(hf), vr(T2)))
a.I("v_lshlrev_b32 %s, 4, %s" % (vr(T2), vr(T2)))
a.I("v_add_u32 %s, %s, %s" % (vr(aX[0]), vr(T1), vr(T2)))
for s in range(1, 4):
    a.I("v_xor_b32 %s, %d, %s" % (vr(aX[s]), 32 * s, vr(aX[0])))
swp = 40
a.I("v_and_b32 %s, 1, %s" % (vr(T1), vr(c4)))
a.I("v_lshlrev_b32 %s, 1, %s" % (vr(T1), vr(T1)))
a.I("v_lshrrev_b32 %s, 1, %s" % (vr(T2), vr(c4)))
a.I("v_or_b32 %s, %s, %s" % (vr(swp), vr(T1), vr(T2)))
def tr_addr(dst, rowlane, cq, blk, extra_sgpr=None):
    a.I("v_xor_b32 %s, %s, %s" % (vr(T1), blk, vr(r_)))
    a.I("v_lshlrev_b32 %s, 6, %s" % (vr(T1), vr(T1)))
    a.I("v_lshrrev_b32 %s, 1, %s" % (vr(T2), vr(cq)))
    a.I("v_lshl_add_u32 %s, %s, 1, %s" % (vr(T2), vr(mh), vr(T2)))
    a.I("v_lshl_add_u32 %s, %s, 4, %s" % (vr(T1), vr(T2), vr(T1)))
    a.I("v_and_b32 %s, 1, %s" % (vr(T2), vr(cq)))
    a.I("v_lshl_add_u32 %s, %s, 3, %s" % (vr(T1), vr(T2), vr(T1)))
    a.I("v_lshl_add_u32 %s, %s, 8, %s" % (vr(dst), vr(rowlane), vr(T1)))
    if extra_sgpr is not None:
        a.I("v_add_u32 %s, %s, %s" % (vr(dst), sr(extra_sgpr), vr(dst)))
rowA = 41
a.I("v_lshl_add_u32 %s, %s, 3, %s" % (vr(rowA), vr(hf), vr(r_)))
tr_addr(aW[0], rowA, swp, sr(sWAVE))
a.I("v_xor_b32 %s, %s, %s" % (vr(T1), vr(hf), vr(L15)))
a.I("v_lshlrev_b32 %s, 4, %s" % (vr(T1), vr(T1)))
a.I("v_lshl_add_u32 %s, %s, 8, %s" % (vr(aK), vr(l31), vr(T1)))
a.I("v_add_u32 %s, %s, %s" % (vr(aK), sr(sLW8K), vr(aK)))
rowB = 42
a.I("v_lshl_add_u32 %s, %s, 2, %s" % (vr(rowB), vr(hf), vr(r_)))
for i in range(4):
    a.I("s_lshl_b32 %s, %s, 1" % (sr(sT0), sr(sLW)))
    a.I("s_xor_b32 %s, %s, %d" % (sr(sT0), sr(sT0), i))
    tr_addr(aV[i], rowB, c4, sr(sT0), sLW8K)
tr_addr(aWO[0], rowB, c4, sr(sWAVE))
a.I("v_lshlrev_b32 %s, 4, v1" % vr(vL16))
a.I("s_lshl_b32 %s, %s, 13" % (sr(sT0), sr(sQH)))
a.I("v_add_u32 %s, %s, %s" % (vr(aOI), sr(sT0), vr(vL16)))
a.I("v_lshrrev_b32 %s, 1, %s" % (vr(T1), vr(L4)))
a.I("v_lshlrev_b32 %s, 4, %s" % (vr(T1), vr(T1)))
a.I("v_lshl_add_u32 %s, %s, 2, %s" % (vr(T1), vr(mh), vr(T1)))
a.I("v_add_u32 %s, %s, %s" % (vr(T1), vr(T1), vr(r_)))
a.I("v_lshlrev_b32 %s, 5, %s" % (vr(T1), vr(T1)))
a.I("v_lshl_add_u32 %s, %s, 3, %s" % (vr(T1), vr(c4), vr(T1)))
a.I("v_add_u32 %s, 0x%x, %s" % (vr(aRA), ADDR["WOR"], vr(T1)))
a.I("v_lshrrev_b32 %s, 1, %s" % (vr(T1), vr(L4)))
a.I("v_lshlrev_b32 %s, 10, %s" % (vr(T1), vr(T1)))
a.I("v_lshl_add_u32 %s, %s, 5, %s" % (vr(T2), vr(mh), vr(L15)))
a.I("v_lshl_add_u32 %s, %s, 4, %s" % (vr(T1), vr(T2), vr(T1)))
a.I("s_lshl_b32 %s, %s, 13" % (sr(sT0), sr(sQH)))
a.I("s_lshl_b32 %s, %s, 8" % (sr(sT1), sr(sLW)))
a.I("s_add_u32 %s, %s, %s" % (sr(sT0), sr(sT0), sr(sT1)))
a.I("v_add_u32 %s, %s, %s" % (vr(aRB), sr(sT0), vr(T1)))
a.I("s_lshl_b32 %s, %s, 12" % (sr(sT0), sr(sLW)))
a.I("v_add_u32 %s, %s, %s" % (vr(vIMG), sr(sT0), vr(aOI)))
a.I("v_mov_b32 %s, 0x%x" % (vr(vFL), MISC))
a.I("s_lshl_b32 %s, %s, 2" % (sr(sT0), sr(sWAVE)))
a.I("s_add_u32 %s, %s, 0x%x" % (sr(sT0), sr(sT0), MISC))
a.I("v_mov_b32 %s, %s" % (vr(vFLO), sr(sT0)))
a.I("s_xor_b32 %s, %s, 4" % (sr(sT0), sr(sT0)))
a.I("v_mov_b32 %s, %s" % (vr(vFLP), sr(sT0)))
a.I("v_add_u32 %s, 0x%x, %s" % (vr(tA), SLOT(3), vr(aW[0])))
aX2 = [tC, tD, tE, tF]
for s_ in range(4):
    a.I("v_subrev_u32 %s, 0x%x, %s" % (vr(aX2[s_]), XB - SLOT(6), vr(aX[s_])))
a.I("s_barrier")
if OPT["lonly"]:
    a.I("v_mov_b32 %s, 1000" % vr(vFT))
    a.I("ds_write_b32 %s, %s offset:%d" % (vr(vFLO), vr(vFT), F_PROG))
    a.I("s_waitcnt lgkmcnt(0) vmcnt(0)")
    a.I("s_endpgm")
stamp(1)

def dump_regs(base, n, slot_index):
    a.I("s_lshl_b32 %s, %s, 2" % (sr(sT0), sr(sID)))
    a.I("s_add_u32 %s, %s, %s" % (sr(sT0), sr(sT0), sr(sWAVE)))
    a.I("s_mul_i32 %s, %s, %d" % (sr(sT0), sr(sT0), n * 256))
    a.I("s_add_u32 %s, %s, 0x%x" % (sr(sT0), sr(sT0), WS_DUMP + slot_index * 0x2000000))
    for j in range(0, n, 4):
        a.I("buffer_store_dwordx4 %s, %s, %s, %s offen" % (vr(base + j, 4), vr(vL16), sr(SWS, 4), sr(sT0)))
        a.I("s_add_u32 %s, %s, 1024" % (sr(sT0), sr(sT0)))
    a.I("s_waitcnt vmcnt(0)")

a.C("==== phase A ====")
QACC = 128; BR = KR; NG = 36
tick = {}
def a_reads(n, part):
    i, s = divmod(n, 4)
    xa = ADDR["X%d" % i]; wo_ = ADDR["W%d" % i]
    if xa >= XB: xo = xa - XB; ax = aX
    else: xo = xa - SLOT(6); ax = aX2
    hi = wo_ >= SLOT(3)
    aw = tA if hi else aW[0]
    if hi: wo_ -= SLOT(3)
    if part == 0:
        if s == 0:
            wait_land("A%d" % i)
            if i % 2 == 0: cst("A%d" % i)
        base = RING + 4 * (n % 4); o = wo_ + 4096 * s
        rdtr(base, aw, o)
        rdtr(base + 2, aw, o + 1024)
        tick[(n, 0)] = rd128(BR + 8 * (n % 4), ax[s], xo)
    else:
        tick[(n, 1)] = rd128(BR + 8 * (n % 4) + 4, ax[s], xo + 4096)
        if s == 3: set_prog("A%d" % i)
DG = OPT["dga"]
for n in range(DG):
    a_reads(n, 0); a_reads(n, 1)
for n in range(NG):
    q.wait(tick[(n, 0)])
    mfma32(QACC, RING + 4 * (n % 4), BR + 8 * (n % 4), c0=(n == 0))
    if n + DG < NG: a_reads(n + DG, 0)
    q.wait(tick[(n, 1)])
    mfma32(QACC + 16, RING + 4 * (n % 4), BR + 8 * (n % 4) + 4, c0=(n == 0))
    if n + DG < NG: a_reads(n + DG, 1)
stamp(2)
cst("Aend")
a.I("s_lshl_b32 %s, %s, 11" % (sr(sT0), sr(sWAVE)))
a.I("s_add_u32 %s, %s, %d" % (sr(sT0), sr(sT0), ADDR["QS"]))
a.I("v_add_u32 %s, %s, %s" % (vr(tA), sr(sT0), vr(vL16)))
a.I("v_add_u32 %s, 0x%x, %s" % (vr(tB), ADDR["QS"], vr(aOI)))
wait_prog(STEPNAME[NEED["QS"] - 1])
a.nop(6)
if OPT["dump"] == 1: dump_regs(QACC, 32, 0)
QP = 32
for t in range(2):
    for j in range(8):
        a.I("v_cvt_pk_bf16_f32 %s, %s, %s" % (vr(QP + 8 * t + j), vr(QACC + 16 * t + 2 * j), vr(QACC + 16 * t + 2 * j + 1)))
    for j in range(2):
        ds_write("ds_write_b128", tA, QP + 8 * t + 4 * j, 4, t * 8192 + j * 1024)
set_flag(F_QX)
a.I("v_mov_b32 %s, 0xff800000" % vr(vM))

a.C("==== phase K ====")
D = 7
tick = {}
def max_ops(t):
    return ["v_max3_f32 %s, %s, %s, %s" % (vr(vM), vr(S + 16 * t + 2 * j), vr(S + 16 * t + 2 * j + 1), vr(vM)) for j in range(8)]
pend = []
for n in range(64 + D):
    m = n - D
    if m == 0:
        wait_all(F_QX)
        qtk = [rd128(QF + 4 * sgm, tB, sgm * 1024) for sgm in range(8)]
        set_prog("QS")
    if m >= 0:
        t, s = divmod(m, 8)
        q.wait(tick[m])
        if m < 8: q.wait(qtk[m])
        mfma32(S + 16 * t, KR + 4 * (m % 8), QF + 4 * s, c0=(s == 0))
        if s == 2 and t >= 1: pend = max_ops(t - 1)
        if s >= 3 and pend:
            a.I(pend.pop(0)); a.I(pend.pop(0))
    if n < 64:
        t, s = divmod(n, 8)
        if s == 0:
            wait_land("K%d" % t)
            if t % 4 == 0 or t == 7: cst("K%d" % t)
            a.I("v_add_u32 %s, 0x%x, %s" % (vr(tC), ADDR["K%d" % t], vr(aK)))
        tmp = tD if n % 2 == 0 else tE
        if s == 0:
            tick[n] = rd128(KR + 4 * (n % 8), tC, 0)
        else:
            a.I("v_xor_b32 %s, %d, %s" % (vr(tmp), 32 * s, vr(tC)))
            tick[n] = rd128(KR + 4 * (n % 8), tmp, 0)
        if s == 7: set_prog("K%d" % t)
assert not pend
stamp(3)
cst("Kend")
a.I("s_waitcnt vmcnt(0)")
a.I("v_readfirstlane_b32 %s, v16" % sr(sTAG))
a.I("s_lshl_b32 %s, %s, 8" % (sr(sT0), sr(sWAVE)))
a.I("s_add_u32 %s, %s, %d" % (sr(sT0), sr(sT0), MISC + MXD))
a.I("v_lshlrev_b32 %s, 2, v1" % vr(tA))
a.I("v_add_u32 %s, %s, %s" % (vr(tA), sr(sT0), vr(tA)))
a.I("v_xor_b32 %s, 0x100, %s" % (vr(tB), vr(tA)))
a.nop(8)
for s_ in max_ops(7): a.I(s_)
if OPT["dump"] == 2: dump_regs(S, 128, 0)

a.C("==== softmax ====")
a.I("s_add_u32 %s, %s, 1" % (sr(sTAG), sr(sTAG)))
a.I("v_mov_b32 %s, %s" % (vr(tC), vr(vM)))
a.nop(2)
a.I("v_permlane32_swap_b32 %s, %s" % (vr(tC), vr(vM)))
a.I("v_max_f32 %s, %s, %s" % (vr(vM), vr(tC), vr(vM)))
ds_write("ds_write_b32", tA, vM, 1, 0)
a.I("v_mov_b32 %s, 0" % vr(LS))
a.I("v_mov_b32 %s, 0" % vr(LS + 1))
a.I("v_mul_f32 %s, %s, %s" % (vr(vP0), sr(sC), vr(vM)))
a.I("v_sub_f32 %s, 0, %s" % (vr(vP0), vr(vP0)))
a.I("v_mov_b32 %s, %s" % (vr(vP1), vr(vP0)))
for t in range(8):
    b0 = S + 16 * t
    for j in range(8):
        a.I("v_pk_fma_f32 %s, %s, %s, %s" % (vr(b0 + 2 * j, 2), vr(b0 + 2 * j, 2), sr(sC, 2), vr(vP0, 2)))
    for j in range(16):
        a.I("v_exp_f32 %s, %s" % (vr(b0 + j), vr(b0 + j)))
    a.I("s_nop 0")
    for j in range(8):
        a.I("v_pk_add_f32 %s, %s, %s" % (vr(LS, 2), vr(LS, 2), vr(b0 + 2 * j, 2)))
    for j in range(8):
        a.I("v_cvt_pk_bf16_f32 %s, %s, %s" % (vr(b0 + j), vr(b0 + 2 * j), vr(b0 + 2 * j + 1)))
a.I("v_add_f32 %s, %s, %s" % (vr(vL), vr(LS), vr(LS + 1)))
a.I("v_mov_b32 %s, %s" % (vr(tC), vr(vL)))
a.nop(2)
a.I("v_permlane32_swap_b32 %s, %s" % (vr(tC), vr(vL)))
a.I("v_add_f32 %s, %s, %s" % (vr(vL), vr(tC), vr(vL)))
ds_write("ds_write_b32", tA, vL, 1, LD - MXD)
stamp(4)
cst("SMend")

a.C("==== phase V ====")
tick = {}
tV = [tC, tD, tE, tF]
for n in range(64 + D):
    m = n - D
    if m >= 0:
        t, rem = divmod(m, 8); u, ai = divmod(rem, 4)
        q.wait(tick[m])
        mfma32(OACC + 16 * ai, RING + 4 * (m % 8), S + 16 * t + 4 * u, c0=(m < 4))
    if n < 64:
        t, rem = divmod(n, 8); u, ai = divmod(rem, 4)
        if rem == 0:
            wait_land("V%d" % t)
            if t % 4 == 0 or t == 7: cst("V%d" % t)
            for i in range(4):
                a.I("v_add_u32 %s, 0x%x, %s" % (vr(tV[i]), ADDR["V%d" % t], vr(aV[i])))
        o = 4096 * u
        rdtr(RING + 4 * (n % 8), tV[ai], o)
        tick[n] = rdtr(RING + 4 * (n % 8) + 2, tV[ai], o + 2048)
        if rem == 7: set_prog("V%d" % t)
stamp(5)
cst("Vend")
a.C("==== O reduce ====")
a.I("s_lshl_b32 %s, %s, 13" % (sr(sT0), sr(sWAVE)))
a.I("s_add_u32 %s, %s, %d" % (sr(sT0), sr(sT0), ADDR["ORS"]))
a.I("v_add_u32 %s, %s, %s" % (vr(tA), sr(sT0), vr(vL16)))
a.I("v_xor_b32 %s, 0x2000, %s" % (vr(tA + 0 + 5 - 5 + 4), vr(tA)))
a.I("v_add_u32 %s, 0x%x, %s" % (vr(tC), IMG_ADDR[0], vr(vIMG)))
assert (ADDR["ORS"] // 8192) % 2 == 0
wait_prog(STEPNAME[max(NEED["ORS"], NEED["OI0"]) - 1])
a.nop(8)
for j in range(8):
    ds_write("ds_write_b128", tA, OACC + 32 + 4 * j, 4, j * 1024)
set_flag(F_OR)
wait_partner(F_OR)
cst("ORp")
tk = []
tkm = ds_read("ds_read_b32", vP0, 1, tB, 0)
tkl = ds_read("ds_read_b32", vP1, 1, tB, LD - MXD)
for j in range(8):
    tk.append(rd128(RING + 4 * j, tE, j * 1024))
set_prog("ORS")
q.wait(tkl)
a.I("v_max_f32 %s, %s, %s" % (vr(tD), vr(vP0), vr(vM)))
a.I("v_sub_f32 %s, %s, %s" % (vr(vM), vr(vM), vr(tD)))
a.I("v_sub_f32 %s, %s, %s" % (vr(vP0), vr(vP0), vr(tD)))
a.I("v_mul_f32 %s, %s, %s" % (vr(vM), sr(sC), vr(vM)))
a.I("v_mul_f32 %s, %s, %s" % (vr(vP0), sr(sC), vr(vP0)))
a.I("v_exp_f32 %s, %s" % (vr(vM), vr(vM)))
a.I("v_exp_f32 %s, %s" % (vr(vP0), vr(vP0)))
a.I("s_nop 0")
a.I("v_mul_f32 %s, %s, %s" % (vr(vL), vr(vL), vr(vM)))
a.I("v_fma_f32 %s, %s, %s, %s" % (vr(vL), vr(vP1), vr(vP0), vr(vL)))
a.I("v_rcp_f32 %s, %s" % (vr(vL), vr(vL)))
a.I("s_nop 0")
a.I("v_mul_f32 %s, %s, %s" % (vr(LS), vr(vP0), vr(vL)))
a.I("v_mul_f32 %s, %s, %s" % (vr(vP0), vr(vM), vr(vL)))
a.I("v_mov_b32 %s, %s" % (vr(LS + 1), vr(LS)))
a.I("v_mov_b32 %s, %s" % (vr(vP1), vr(vP0)))
PK = 96
for j in range(8):
    q.wait(tk[j])
    for h2 in range(2):
        d = OACC + 4 * j + 2 * h2
        a.I("v_pk_mul_f32 %s, %s, %s" % (vr(d, 2), vr(d, 2), vr(vP0, 2)))
        a.I("v_pk_fma_f32 %s, %s, %s, %s" % (vr(d, 2), vr(RING + 4 * j + 2 * h2, 2), vr(LS, 2), vr(d, 2)))
    for h2 in range(2):
        d = OACC + 4 * j + 2 * h2
        a.I("v_cvt_pk_bf16_f32 %s, %s, %s" % (vr(PK + 2 * j + h2), vr(d), vr(d + 1)))
    if j % 2 == 1:
        jj = j // 2
        a.I("buffer_store_dwordx4 %s, %s, %s, %s offen offset:%d sc0 sc1" % (vr(PK + 4 * jj, 4), vr(vIMG), sr(SWS, 4), sr(sA1), jj * 1024))
        ds_write("ds_write_b128", tC, PK + 4 * jj, 4, jj * 1024)
set_flag(F_IMG)
def flag1():
    a.I("s_lshl_b32 %s, %s, 7" % (sr(sT0), sr(sID)))
    a.I("s_lshl_b32 %s, %s, 2" % (sr(sT1), sr(sWAVE)))
    a.I("s_add_u32 %s, %s, %s" % (sr(sT0), sr(sT0), sr(sT1)))
    a.I("s_add_u32 %s, %s, 0x%x" % (sr(sT0), sr(sT0), WS_FLAG1))
    a.I("v_mov_b32 %s, %s" % (vr(tA), sr(sTAG)))
    a.I("v_mov_b32 %s, 0" % vr(tB))
    a.I("s_waitcnt vmcnt(0)")
    a.I("s_mov_b64 exec, 1")
    a.I("buffer_store_dword %s, %s, %s, %s offen sc0 sc1" % (vr(tA), vr(tB), sr(SWS, 4), sr(sT0)))
    a.I("s_mov_b64 exec, -1")
if not OPT["lateflag"]: flag1()
if OPT["dump"] == 3: dump_regs(OACC, 32, 0)
stamp(6)
cst("ORend")

a.C("==== phase P ====")
tick = {}
tWO = tC; tOI = tE; tRB = tF
PACC = 160; RACC = 192; RA = [196, 200]; RB = [204, 208]
BRP = 96
def p_reads(n, part):
    step, kk = divmod(n, 4)
    hn, hh = divmod(step, 2)
    blk = 2 * hh + (kk >> 1); u = kk & 1
    wt = "WO%d" % step
    if part == 0:
        if kk == 0:
            if step == 0:
                wait_all(F_IMG)
                wait_land("WO0")
            else:
                if step == 2 and OPT["lateflag"]: flag1()
                wait_land(wt)
            if hh == 0 and hn > 0: wait_land("OI%d" % hn)
            cst("P%d" % step)
            a.I("v_add_u32 %s, 0x%x, %s" % (vr(tWO), ADDR[wt], vr(aWO[0])))
            if hh == 0:
                a.I("v_add_u32 %s, 0x%x, %s" % (vr(tOI), IMG_ADDR[hn], vr(vL16)))
                a.I("v_add_u32 %s, 0x%x, %s" % (vr(tRB), IMG_ADDR[hn], vr(aRB)))
        base = RING + 4 * (n % 4); o = 8192 * (kk >> 1) + 4096 * u
        rdtr(base, tWO, o)
        rdtr(base + 2, tWO, o + 2048)
        tick[(n, 0)] = rd128(BRP + 8 * (n % 4), tOI, (blk * 2 + u) * 1024)
    else:
        tick[(n, 1)] = rd128(BRP + 8 * (n % 4) + 4, tOI, 8192 + (blk * 2 + u) * 1024)
        if u == 0:
            ri = (n // 2) % 2
            o = hn * 4096 + blk * 1024
            rdtr(RA[ri], aRA, o)
            rdtr(RA[ri] + 2, aRA, o + 256)
            tick[(n, 2)] = rd128(RB[ri], tRB, blk * 2048)
        if kk == 3 and step < 3: set_prog("P%d" % step)
DG = OPT["dgp"]; NG = 32
for n in range(DG):
    p_reads(n, 0); p_reads(n, 1)
for n in range(NG):
    q.wait(tick[(n, 0)])
    mfma32(PACC, RING + 4 * (n % 4), BRP + 8 * (n % 4), c0=(n == 0))
    if n + DG < NG: p_reads(n + DG, 0)
    q.wait(tick[(n, 1)])
    mfma32(PACC + 16, RING + 4 * (n % 4), BRP + 8 * (n % 4) + 4, c0=(n == 0))
    if n % 2 == 0:
        q.wait(tick[(n, 2)])
        ri = (n // 2) % 2
        mfma16(RACC, RA[ri], RB[ri], c0=(n == 0))
    if n + DG < NG: p_reads(n + DG, 1)
stamp(7)
cst("Pend")
GS = 64
for g in range(6): a.I("v_mov_b32 %s, %s" % (vr(GS + 4 * g + 3), sr(sTAG)))
a.I("s_add_u32 %s, %s, 4096" % (sr(sT2), sr(sA2)))
a.nop(5)
def spos(d): return GS + 4 * (d // 3) + (d % 3)
srcs = [(PACC + 2 * j, PACC + 2 * j + 1) for j in range(16)] + [(RACC, RACC + 1), (RACC + 2, RACC + 3)]
for d, (x0, x1) in enumerate(srcs):
    a.I("v_cvt_pk_bf16_f32 %s, %s, %s" % (vr(spos(d)), vr(x0), vr(x1)))
    if d % 3 == 2:
        g = d // 3
        a.I("buffer_store_dwordx4 %s, %s, %s, %s offen offset:%d sc0 sc1" % (vr(GS + 4 * g, 4), vr(vL16), sr(SWS, 4), sr(sA2 if g < 4 else sT2), (g % 4) * 1024))
set_prog("PE")
stamp(8)
a.I("s_branch L_CEND")
compute_lines = a.lines

a = Asm()
a.L("L_LOADER")
T1, T2 = 30, 31
vX = [4, 5]; vW = [6, 7, 8, 9]; vK = [10, 11, 12, 13]; vV = 14; vWO = [15, 16, 17, 18]; vWOR = [19, 20, 21, 22]; vLn = 23
vFLl = 24; vFLOl = 25
vFTl = 104
sL4 = sLW
a.I("s_sub_u32 %s, %s, 4" % (sr(sL4), sr(sWAVE)))
a.I("s_lshl_b32 %s, %s, 12" % (sr(sLW8K), sr(sL4)))
a.I("v_lshlrev_b32 %s, 2, v1" % vr(T1))
a.I("v_add_u32 %s, 0x%x, %s" % (vr(T1), MISC, vr(T1)))
a.I("v_mov_b32 %s, 0" % vr(T2))
a.I("s_cmp_eq_u32 %s, 0" % sr(sL4))
a.I("s_cbranch_scc0 L_NOINIT")
a.I("ds_write_b32 %s, %s" % (vr(T1), vr(T2)))
a.L("L_NOINIT")
for i in range(2):
    a.I("v_lshrrev_b32 %s, 3, v1" % vr(T1))
    a.I("v_mul_u32_u24 %s, 1152, %s" % (vr(T1), vr(T1)))
    a.I("v_and_b32 %s, 7, v1" % vr(T2))
    a.I("v_xor_b32 %s, %s, v2" % (vr(T2), vr(T2)))
    if i & 1: a.I("v_xor_b32 %s, 4, %s" % (vr(T2), vr(T2)))
    a.I("v_lshl_add_u32 %s, %s, 4, %s" % (vr(T1), vr(T2), vr(T1)))
    a.I("v_add_u32 %s, %d, %s" % (vr(vX[i]), i * 8192, vr(T1)))
a.I("v_lshlrev_b32 %s, 2, v2" % vr(T2))
a.I("v_xor_b32 %s, %s, v3" % (vr(T2), vr(T2)))
a.I("v_lshlrev_b32 %s, 4, %s" % (vr(T2), vr(T2)))
a.I("v_lshl_add_u32 %s, v2, 13, %s" % (vr(T1), vr(T2)))
for i in range(4):
    a.I("v_add_u32 %s, %d, %s" % (vr(vW[i]), i * 31744, vr(T1)))
a.I("s_mul_i32 %s, %s, 18432" % (sr(sA0), sr(sL4)))
a.I("s_lshl_b32 %s, %s, 17" % (sr(sA1), sr(sL4)))
a.I("s_waitcnt lgkmcnt(0)")
a.I("s_mul_i32 %s, %s, 73728" % (sr(sT0), sr(sB)))
mk_srd(SX, pX, sT0, 73728)
a.I("s_lshl_b32 %s, %s, 8" % (sr(sT0), sr(sH)))
mk_srd(SW, pWQ, sT0, 575 * 8192 + 256)
issued = []
published = [0]
if OPT["pfa"]:
    a.I("s_lshl_b32 %s, %s, 2" % (sr(sT0), sr(sJQ)))
    a.I("s_add_u32 %s, %s, %s" % (sr(sT0), sr(sT0), sr(sL4)))
    a.I("s_mul_i32 %s, %s, %d" % (sr(sT0), sr(sT0), 36 * 128))
    a.I("v_lshlrev_b32 v40, 7, v1")
    a.I("v_lshrrev_b32 v42, 1, v1")
    a.I("v_lshlrev_b32 v42, 13, v42")
    a.I("v_and_b32 v43, 1, v1")
    a.I("v_lshl_add_u32 v42, v43, 7, v42")
    a.I("s_mul_i32 %s, %s, 72" % (sr(sT1), sr(sB)))
    a.I("s_mul_i32 %s, %s, 18" % (sr(sT2), sr(sL4)))
    a.I("s_add_u32 %s, %s, %s" % (sr(sT1), sr(sT1), sr(sT2)))
    a.I("s_lshl_b32 %s, %s, 13" % (sr(sT1), sr(sT1)))
    a.I("s_mov_b32 exec_lo, -1"); a.I("s_mov_b32 exec_hi, 0xf")
    if OPT["pfa"] == 1:
        a.I("buffer_load_dword v41, v42, %s, %s offen%s" % (sr(SW, 4), sr(sT1), " nt" if OPT["ntpf"] else ""))
    if OPT["pfa"] == 3:
        a.I("s_mov_b32 %s, %s" % (sr(sI2), sr(sT0)))
    else:
        a.I("buffer_load_dword v41, v40, %s, %s offen%s" % (sr(SX, 4), sr(sT0), " nt" if OPT["ntpf"] else ""))
    a.I("s_mov_b64 exec, -1")
if OPT["pk"]:
    a.I("s_and_b32 %s, %s, 1" % (sr(sT0), sr(sJQ)))
    a.I("s_cmp_eq_u32 %s, 1" % sr(sT0))
    a.I("s_cbranch_scc0 L_NOPK")
    a.I("s_lshr_b32 %s, %s, 1" % (sr(sT0), sr(sH)))
    a.I("s_lshl_b32 %s, %s, 4" % (sr(sT1), sr(sB)))
    a.I("s_add_u32 %s, %s, %s" % (sr(sT0), sr(sT0), sr(sT1)))
    a.I("s_lshl_b32 %s, %s, 17" % (sr(sT0), sr(sT0)))
    mk_srd(SK, pK, sT0, 131072)
    a.I("v_lshlrev_b32 v40, 7, v1")
    a.I("s_lshl_b32 %s, %s, 14" % (sr(sT0), sr(sL4)))
    if OPT["pk"] == 2:
        a.I("s_lshl_b32 %s, %s, 1" % (sr(sT0), sr(sT0)))
    elif OPT["rot"]:
        a.I("s_add_u32 %s, %s, 65536" % (sr(sT0), sr(sT0)))
    for j in range(OPT["pk"] * 2):
        a.I("buffer_load_dword v41, v40, %s, %s offen%s" % (sr(SK, 4), sr(sT0), " nt" if OPT["ntkv"] else ""))
        a.I("s_add_u32 %s, %s, 8192" % (sr(sT0), sr(sT0)))
    a.L("L_NOPK")
def dma(voff, srd, soff, imm, flags=""):
    if OPT["noload"]:
        a.I("s_nop 0"); return
    a.I("buffer_load_dwordx4 %s, %s, %s offen offset:%d%s lds" % (vr(voff), sr(srd, 4), sr(soff), imm, flags))
def late_setup():
    a.I("v_lshl_add_u32 %s, v2, 8, %s" % (vr(vV), vr(T2)))
    a.I("v_mul_u32_u24 %s, 1152, v2" % vr(T1))
    a.I("v_add_u32 %s, %s, %s" % (vr(T1), vr(T1), vr(T2)))
    for i in range(4):
        a.I("v_add_u32 %s, %d, %s" % (vr(vWO[i]), i * 3584, vr(T1)))
    for i in range(4):
        a.I("v_add_u32 %s, %d, v2" % (vr(T1), 4 * i))
        a.I("v_xor_b32 %s, %s, v3" % (vr(T1), vr(T1)))
        a.I("v_lshlrev_b32 %s, 4, %s" % (vr(T1), vr(T1)))
        a.I("v_lshl_add_u32 %s, v2, 8, %s" % (vr(vK[i]), vr(T1)))
    a.I("v_lshrrev_b32 %s, 1, v1" % vr(T1))
    a.I("v_mul_u32_u24 %s, 1152, %s" % (vr(T1), vr(T1)))
    a.I("v_and_b32 %s, 1, v1" % vr(T2))
    a.I("v_lshl_add_u32 %s, %s, 4, %s" % (vr(T1), vr(T2), vr(T1)))
    for i in range(4):
        a.I("v_add_u32 %s, %d, %s" % (vr(vWOR[i]), i * 35840, vr(T1)))
    a.I("v_lshlrev_b32 %s, 4, v1" % vr(vLn))
    kv_srds()
    mk_srd(SOUT, pOUT, None, 589824)
    if OPT["rot"]:
        a.I("s_and_b32 %s, %s, 1" % (sr(sT0), sr(sJQ)))
        a.I("s_lshl_b32 %s, %s, 16" % (sr(sT0), sr(sT0)))
        a.I("s_add_u32 %s, %s, %s" % (sr(sA3), sr(sT0), sr(sLW8K)))
    else:
        a.I("s_mov_b32 %s, %s" % (sr(sA3), sr(sLW8K)))
    a.I("s_xor_b32 %s, %s, 0x10000" % (sr(sA4), sr(sA3)))
    a.I("v_mov_b32 %s, 0x%x" % (vr(vFLl), MISC))
    a.I("s_lshl_b32 %s, %s, 2" % (sr(sT0), sr(sL4)))
    a.I("s_add_u32 %s, %s, 0x%x" % (sr(sT0), sr(sT0), MISC + F_LAND))
    a.I("v_mov_b32 %s, %s" % (vr(vFLOl), sr(sT0)))
def init_setup():
    mk_srd(SWS, pWS, None, WS_SIZE)
    a.I("s_lshl_b32 %s, %s, 7" % (sr(sT0), sr(sB)))
    a.I("v_mov_b32 v38, %s" % sr(sT0))
    a.I("buffer_load_dword v39, v38, %s, 0 offen sc1" % sr(SWS, 4)); issued.append("EPOCH")
def issue(unit):
    a.C("issue " + unit)
    if unit[0] == "A":
        i = int(unit[1:])
        a.I("s_add_u32 %s, %s, %d" % (sr(sT0), sr(sB), i))
        a.I("s_cmp_ge_u32 %s, 9" % sr(sT0))
        a.I("s_cselect_b32 %s, 9, 0" % sr(sT1))
        a.I("s_sub_u32 %s, %s, %s" % (sr(sA2), sr(sT0), sr(sT1)))
        a.I("s_lshl_b32 %s, %s, 7" % (sr(sT0), sr(sA2)))
        a.I("s_lshr_b32 %s, %s, 1" % (sr(sT1), sr(sLW8K)))
        a.I("s_add_u32 m0, %s, %d" % (sr(sT1), ADDR["X%d" % i]))
        a.I("s_add_u32 %s, %s, %s" % (sr(sT0), sr(sT0), sr(sA0)))
        for j in range(2):
            if OPT["nox"]: continue
            dma(vX[j], SX, sT0, j * 1024, " nt" if OPT["ntx"] else ""); issued.append(unit)
        a.I("s_lshl_b32 %s, %s, 19" % (sr(sT0), sr(sA2)))
        a.I("s_add_u32 m0, %s, %d" % (sr(sLW8K), ADDR["W%d" % i]))
        a.I("s_add_u32 %s, %s, %s" % (sr(sT0), sr(sT0), sr(sA1)))
        for j in range(4):
            if OPT["now"]: continue
            dma(vW[j], SW, sT0, j * 1024, " nt" if OPT["ntw"] else ""); issued.append(unit)
    elif unit.startswith("OI"):
        n = int(unit[2:])
        a.I("s_add_u32 m0, %s, %d" % (sr(sLW8K), IMG_ADDR[n]))
        a.I("s_nop 0")
        for j in range(4):
            dma(vLn, SWS, [sA1, sA3, sA4][n - 1], j * 1024, " sc0 sc1"); issued.append(unit)
    elif unit == "PF":
        if OPT["pfwo"]:
            a.I("s_lshl_b32 %s, %s, 2" % (sr(sT0), sr(sB)))
            a.I("s_add_u32 %s, %s, %s" % (sr(sT0), sr(sT0), sr(sJQ)))
            a.I("s_lshl_b32 %s, %s, 2" % (sr(sT0), sr(sT0)))
            a.I("s_add_u32 %s, %s, %s" % (sr(sT0), sr(sT0), sr(sL4)))
            a.I("s_mul_i32 %s, %s, %d" % (sr(sT0), sr(sT0), 36 * 128))
            a.I("v_lshlrev_b32 v40, 7, v1")
            a.I("s_mov_b32 exec_lo, -1"); a.I("s_mov_b32 exec_hi, 0xf")
            a.I("buffer_load_dword v41, v40, %s, %s offen%s" % (sr(SWO, 4), sr(sT0), " nt" if OPT["ntpf"] else "")); issued.append(unit)
            a.I("s_mov_b64 exec, -1")
    elif unit == "WOR":
        a.I("s_add_u32 %s, %s, %s" % (sr(sT0), sr(sL4), sr(sJQ)))
        a.I("s_and_b32 %s, %s, 3" % (sr(sT0), sr(sT0)))
        a.I("s_mul_i32 %s, %s, %d" % (sr(sT0), sr(sT0), 128 * 1152))
        a.I("s_lshl_b32 %s, %s, 5" % (sr(sT1), sr(sJQ)))
        a.I("s_add_u32 %s, %s, %s" % (sr(sT0), sr(sT0), sr(sT1)))
        a.I("s_add_u32 m0, %s, %d" % (sr(sLW8K), ADDR["WOR"]))
        a.I("s_add_u32 %s, %s, 1024" % (sr(sT0), sr(sT0)))
        for j in range(4):
            dma(vWOR[j], SWO, sT0, j * 1024, " nt" if OPT["ntwo"] else ""); issued.append(unit)
    elif unit[0:2] == "WO":
        u = int(unit[2:])
        a.I("s_lshl_b32 %s, %s, 1" % (sr(sT0), sr(sJQ)))
        a.I("s_add_u32 %s, %s, %d" % (sr(sT0), sr(sT0), u))
        a.I("s_and_b32 %s, %s, 7" % (sr(sT0), sr(sT0)))
        a.I("s_mul_i32 %s, %s, 73728" % (sr(sT0), sr(sT0)))
        a.I("s_add_u32 %s, %s, %s" % (sr(sT0), sr(sT0), sr(sA0)))
        a.I("s_lshl_b32 %s, %s, 8" % (sr(sT1), sr(sJQ)))
        a.I("s_add_u32 m0, %s, %d" % (sr(sLW8K), ADDR[unit]))
        a.I("s_add_u32 %s, %s, %s" % (sr(sT0), sr(sT0), sr(sT1)))
        for j in range(4):
            dma(vWO[j], SWO, sT0, j * 1024, " nt" if OPT["ntwo"] else ""); issued.append(unit)
    elif unit[0] in "KV":
        t = int(unit[1:])
        base = sA3 if t < 4 else sA4
        a.I("s_add_u32 m0, %s, %d" % (sr(sLW8K), ADDR[unit]))
        a.I("s_add_u32 %s, %s, %d" % (sr(sT0), sr(base), (t & 3) * 16384))
        for j in range(4):
            if unit[0] == "K": dma(vK[j], SK, sT0, j * 1024, " nt" if OPT["ntkv"] else "")
            else: dma(vV, SV, sT0, j * 1024, " nt" if OPT["ntkv"] else "")
            issued.append(unit)
    else:
        raise Exception(unit)
def publish(count):
    if count <= published[0]: return
    names = set(n for n, _ in units[:count])
    idxs = [i for i, t in enumerate(issued) if t in names]
    if idxs:
        n = len(issued) - 1 - max(idxs)
        a.I("s_waitcnt vmcnt(%d)" % min(n, 63))
    a.I("v_mov_b32 %s, %d" % (vr(vFTl), count))
    a.I("s_mov_b64 exec, 1")
    a.I("ds_max_u32 %s, %s" % (vr(vFLOl), vr(vFTl)))
    a.I("s_mov_b64 exec, -1")
    published[0] = count
def lstamp(i):
    if OPT["sel"] and units[i][0] not in ("A1", "A8", "K3", "K7", "V3", "V7", "WO3", "WO7"): return
    if OPT["stamps"] == 2:
        a.I("s_memrealtime s[90:91]"); a.I("s_waitcnt lgkmcnt(0)"); a.I("v_writelane_b32 v100, s90, %d" % i)
LOOK = OPT["look"]
proven = 0
for ui, (unit, need) in enumerate(units):
    if ui == 1:
        if OPT["pfa"] == 3:
            a.I("s_mov_b32 exec_lo, -1"); a.I("s_mov_b32 exec_hi, 0xf")
            a.I("buffer_load_dword v41, v40, %s, %s offen%s" % (sr(SX, 4), sr(sI2), " nt" if OPT["ntpf"] else "")); issued.append("PFX")
            a.I("s_mov_b64 exec, -1")
        a.I("v_mov_b32 %s, 0x%x" % (vr(vFLl), MISC))
        a.I("s_lshl_b32 %s, %s, 2" % (sr(sT0), sr(sL4)))
        a.I("s_add_u32 %s, %s, 0x%x" % (sr(sT0), sr(sT0), MISC + F_LAND))
        a.I("v_mov_b32 %s, %s" % (vr(vFLOl), sr(sT0)))
        a.I("s_waitcnt lgkmcnt(0)")
        a.I("s_barrier")
    if ui == 2:
        init_setup(); late_setup()

    if need > proven:
        save_pub = published[0]
        ok = newlbl("OK"); sp = newlbl("SP")
        a.I("s_cmp_ge_u32 %s, %d" % (sr(sKNOW), need))
        a.I("s_cbranch_scc1 %s" % ok)
        a.L(sp)
        a.I("ds_read_b128 %s, %s offset:%d" % (vr(vFTl, 4), vr(vFLl), F_PROG))
        a.I("s_waitcnt lgkmcnt(0)")
        a.I("v_min3_u32 %s, %s, %s, %s" % (vr(vFTl), vr(vFTl), vr(vFTl + 1), vr(vFTl + 2)))
        a.I("v_min_u32 %s, %s, %s" % (vr(vFTl), vr(vFTl), vr(vFTl + 3)))
        a.I("s_nop 0")
        a.I("v_readfirstlane_b32 %s, %s" % (sr(sKNOW), vr(vFTl)))
        a.I("s_add_i32 %s, %s, -1" % (sr(sBUD), sr(sBUD)))
        a.I("s_cmp_lt_i32 %s, 0" % sr(sBUD))
        a.I("s_cbranch_scc1 %s" % ok)
        a.I("s_cmp_ge_u32 %s, %d" % (sr(sKNOW), need))
        a.I("s_cbranch_scc1 %s" % ok)
        if OPT["lsleep"]: a.I("s_sleep %d" % OPT["lsleep"])
        a.I("s_branch %s" % sp)
        a.L(ok)
        proven = need
    if unit.startswith("OI") and OPT["lonly"]: continue
    if unit.startswith("OI"):
        n = int(unit[2:])
        lp = "L_POLL%d" % n
        if n == 1:
            publish(ui)
            a.I("s_mov_b32 %s, 0" % sr(sT3))
        else:
            a.I("s_and_b32 %s, %s, 0x%x" % (sr(sT0), sr(sA2), 0xF << (4 * (n - 1))))
            a.I("s_cbranch_scc0 %s_X" % lp)
            a.I("s_waitcnt vmcnt(0)")
            a.I("v_mov_b32 %s, %d" % (vr(vFTl), ui))
            a.I("s_mov_b64 exec, 1")
            a.I("ds_max_u32 %s, %s" % (vr(vFLOl), vr(vFTl)))
            a.I("s_mov_b64 exec, -1")
        a.L(lp)
        a.I("s_mov_b64 exec, 0xfff")
        a.I("buffer_load_dword v42, v43, %s, 0 offen sc0 sc1" % sr(SWS, 4))
        a.I("s_waitcnt vmcnt(0)")
        a.I("v_cmp_ne_u32 vcc, %s, v42" % sr(sTAG))
        a.I("s_mov_b64 exec, -1")
        a.I("s_add_u32 %s, %s, 1" % (sr(sT3), sr(sT3)))
        a.I("s_mov_b32 %s, vcc_lo" % sr(sA2))
        a.I("s_cmp_gt_u32 %s, 40000" % sr(sT3))
        a.I("s_cbranch_scc1 %s_X" % lp)
        a.I("s_and_b32 %s, %s, 0x%x" % (sr(sT0), sr(sA2), 0xF << (4 * (n - 1))))
        a.I("s_cbranch_scc1 %s" % lp)
        a.L(lp + "_X")
    if ui >= 1: a.I("ds_read_b128 %s, %s offset:%d" % (vr(vFTl + 4, 4), vr(vFLl), F_PROG))
    issue(unit)
    pub_emitted = [False]
    lk = 1 if (OPT["tail1"] and (unit.startswith("OI") or unit in ("WO7", "K0", "V0", "PF"))) else LOOK
    if ui - lk + 1 > 0:
        before = published[0]
        publish(ui - lk + 1)
        pub_emitted[0] = published[0] != before
    if ui >= 1:
        LS_ = {"A1": 1, "A5": 2, "K0": 3, "K4": 4, "V0": 5, "V4": 6, "WOR": 7, "WO6": 8}
        if OPT["stamps"] == 1 and unit in LS_:
            a.I("s_memrealtime %s" % sr(sSTAMP + 2 * LS_[unit], 2))
            a.I("s_waitcnt lgkmcnt(0)")
        else:
            a.I("s_waitcnt lgkmcnt(%d)" % (1 if (ui - LOOK + 1 > 0 and pub_emitted[0]) else 0))
        a.I("v_min3_u32 %s, %s, %s, %s" % (vr(vFTl + 4), vr(vFTl + 4), vr(vFTl + 5), vr(vFTl + 6)))
        a.I("v_min_u32 %s, %s, %s" % (vr(vFTl + 4), vr(vFTl + 4), vr(vFTl + 7)))
        a.I("s_nop 0")
        a.I("v_readfirstlane_b32 %s, %s" % (sr(sKNOW), vr(vFTl + 4)))
    lstamp(ui)
    if unit == "V0":
        a.I("v_readfirstlane_b32 %s, v39" % sr(sTAG))
        a.I("s_nop 0")
        a.I("s_add_u32 %s, %s, 1" % (sr(sTAG), sr(sTAG)))
    if unit == "V7":
        a.I("v_lshrrev_b32 v43, 2, v1")
        a.I("v_add_u32 v43, %s, v43" % sr(sJQ))
        a.I("v_add_u32 v43, 1, v43")
        a.I("v_and_b32 v43, 3, v43")
        a.I("v_lshlrev_b32 v43, 3, v43")
        a.I("s_andn2_b32 %s, %s, 0x18" % (sr(sT1), sr(sID)))
        a.I("v_or_b32 v43, %s, v43" % sr(sT1))
        a.I("v_lshlrev_b32 v43, 7, v43")
        a.I("v_and_b32 v44, 3, v1")
        a.I("v_lshl_add_u32 v43, v44, 2, v43")
        a.I("v_add_u32 v43, 0x%x, v43" % WS_FLAG1)
        for n in range(1, 4):
            a.I("s_add_u32 %s, %s, %d" % (sr(sT0), sr(sJQ), n))
            a.I("s_and_b32 %s, %s, 3" % (sr(sT0), sr(sT0)))
            a.I("s_lshl_b32 %s, %s, 3" % (sr(sT0), sr(sT0)))
            a.I("s_andn2_b32 %s, %s, 0x18" % (sr(sT1), sr(sID)))
            a.I("s_or_b32 %s, %s, %s" % (sr(sT0), sr(sT0), sr(sT1)))
            a.I("s_mul_i32 %s, %s, %d" % (sr(sT0), sr(sT0), IMG_BYTES))
            a.I("s_add_u32 %s, %s, %s" % (sr(sT0), sr(sT0), sr(sLW8K)))
            a.I("s_add_u32 %s, %s, 0x%x" % (sr([sA1, sA3, sA4][n - 1]), sr(sT0), WS_IMG))
publish(len(units))
if OPT["stamps"] == 2:
    a.I("v_writelane_b32 v100, %s, 63" % sr(sSTAMP))
    a.I("s_lshl_b32 %s, %s, 2" % (sr(sT0), sr(sID)))
    a.I("s_add_u32 %s, %s, %s" % (sr(sT0), sr(sT0), sr(sLW)))
    a.I("s_lshl_b32 %s, %s, 8" % (sr(sT0), sr(sT0)))
    a.I("s_add_u32 %s, %s, 0x%x" % (sr(sT0), sr(sT0), WS_STAMP + 0x100000))
    a.I("v_lshlrev_b32 v103, 2, v1")
    a.I("buffer_store_dword v100, v103, %s, %s offen" % (sr(SWS, 4), sr(sT0)))
if OPT["lonly"]:
    a.I("s_waitcnt vmcnt(0)")
    a.I("s_endpgm")
a.I("s_branch L_FINAL")
loader_lines = a.lines

a = Asm()
a.L("L_FINAL")
a.I("s_cmp_ge_u32 %s, 7" % sr(sWAVE))
a.I("s_cbranch_scc1 L_FIN_SKIP")
sP, sW, sG = sA1, sA2, sA3
a.I("s_mul_i32 %s, %s, 3" % (sr(sP), sr(sKS)))
a.I("s_add_u32 %s, %s, %s" % (sr(sP), sr(sP), sr(sLW)))
a.I("s_mul_i32 %s, %s, 43" % (sr(sW), sr(sP)))
a.I("s_lshr_b32 %s, %s, 8" % (sr(sW), sr(sW)))
a.I("s_mul_i32 %s, %s, 6" % (sr(sT0), sr(sW)))
a.I("s_sub_u32 %s, %s, %s" % (sr(sG), sr(sP), sr(sT0)))
a.I("s_mul_i32 %s, %s, 6144" % (sr(sT0), sr(sW)))
a.I("s_lshl_b32 %s, %s, 10" % (sr(sT1), sr(sG)))
a.I("s_add_u32 %s, %s, %s" % (sr(sT0), sr(sT0), sr(sT1)))
a.I("s_andn2_b32 %s, %s, 7" % (sr(sT1), sr(sID)))
a.I("s_mul_i32 %s, %s, %d" % (sr(sT1), sr(sT1), SLAB_BYTES))
a.I("s_add_u32 %s, %s, %s" % (sr(sT1), sr(sT1), sr(sT0)))
a.I("s_add_u32 %s, %s, 0x%x" % (sr(sA0), sr(sT1), WS_SLAB))
a.I("v_lshlrev_b32 v5, 4, v1")
a.I("s_mov_b32 %s, 0" % sr(sT3))
if OPT["finwait"]:
    a.L("L_FW")
    a.I("ds_read_b128 v[104:107], v24 offset:%d" % F_PROG)
    a.I("s_waitcnt lgkmcnt(0)")
    a.I("v_min3_u32 v104, v104, v105, v106")
    a.I("v_min_u32 v104, v104, v107")
    a.I("s_nop 0")
    a.I("v_readfirstlane_b32 %s, v104" % sr(sKNOW))
    a.I("s_add_i32 %s, %s, -1" % (sr(sBUD), sr(sBUD)))
    a.I("s_cmp_lt_i32 %s, 0" % sr(sBUD))
    a.I("s_cbranch_scc1 L_FW_X")
    a.I("s_cmp_ge_u32 %s, %d" % (sr(sKNOW), STEP["PE"] + 1))
    a.I("s_cbranch_scc1 L_FW_X")
    a.I("s_sleep 1")
    a.I("s_branch L_FW")
    a.L("L_FW_X")
def fin_loads():
    a.I("s_mov_b32 %s, %s" % (sr(sT1), sr(sA0)))
    for k in range(8):
        a.I("buffer_load_dwordx4 %s, v5, %s, %s offen sc0 sc1" % (vr(32 + 4 * k, 4), sr(SWS, 4), sr(sT1)))
        if k < 7: a.I("s_add_u32 %s, %s, %d" % (sr(sT1), sr(sT1), SLAB_BYTES))
fin_loads()
a.I("v_and_b32 v6, 31, v1")
a.I("v_mul_u32_u24 v6, 1152, v6")
a.I("v_lshrrev_b32 v7, 5, v1")
a.I("v_lshl_add_u32 v6, v7, 3, v6")
a.I("v_and_b32 v7, 15, v1")
a.I("v_mul_u32_u24 v7, 1152, v7")
a.I("v_lshrrev_b32 v8, 4, v1")
a.I("v_lshl_add_u32 v7, v8, 3, v7")
sO = [8, 9, 10]; sR = [12, 13, 14]
for i in range(3):
    a.I("s_mul_i32 %s, %s, 3" % (sr(sT0), sr(sG)))
    a.I("s_add_u32 %s, %s, %d" % (sr(sT0), sr(sT0), i))
    a.I("s_bfe_u32 %s, %s, 0x20001" % (sr(sT1), sr(sT0)))
    a.I("s_lshl_b32 %s, %s, 3" % (sr(sT1), sr(sT1)))
    a.I("s_and_b32 %s, %s, 1" % (sr(sT2), sr(sT0)))
    a.I("s_lshl_b32 %s, %s, 1" % (sr(sT2), sr(sT2)))
    a.I("s_add_u32 %s, %s, %s" % (sr(sT1), sr(sT1), sr(sT2)))
    a.I("s_lshl_b32 %s, %s, 5" % (sr(sT2), sr(sW)))
    a.I("s_add_u32 %s, %s, %s" % (sr(sT1), sr(sT1), sr(sT2)))
    a.I("s_lshl_b32 %s, %s, 7" % (sr(sT2), sr(sJQ)))
    a.I("s_add_u32 %s, %s, %s" % (sr(sT1), sr(sT1), sr(sT2)))
    a.I("s_lshr_b32 %s, %s, 3" % (sr(sT2), sr(sT0)))
    a.I("s_and_b32 %s, %s, 1" % (sr(sT2), sr(sT2)))
    a.I("s_lshl_b32 %s, %s, 5" % (sr(sT2), sr(sT2)))
    a.I("s_lshl_b32 %s, %s, 6" % (sr(sO[i]), sr(sB)))
    a.I("s_add_u32 %s, %s, %s" % (sr(sT2), sr(sT2), sr(sO[i])))
    a.I("s_mul_i32 %s, %s, 1152" % (sr(sT2), sr(sT2)))
    a.I("s_lshl_b32 %s, %s, 1" % (sr(sT1), sr(sT1)))
    a.I("s_add_u32 %s, %s, %s" % (sr(sO[i]), sr(sT1), sr(sT2)))
    a.I("s_sub_u32 %s, %s, 16" % (sr(sT1), sr(sT0)))
    a.I("s_lshl_b32 %s, %s, 1" % (sr(sT1), sr(sT1)))
    a.I("s_lshl_b32 %s, %s, 4" % (sr(sT2), sr(sJQ)))
    a.I("s_add_u32 %s, %s, %s" % (sr(sT1), sr(sT1), sr(sT2)))
    a.I("s_add_u32 %s, %s, 512" % (sr(sT1), sr(sT1)))
    a.I("s_lshl_b32 %s, %s, 1" % (sr(sT1), sr(sT1)))
    a.I("s_lshl_b32 %s, %s, 4" % (sr(sT2), sr(sW)))
    a.I("s_lshl_b32 %s, %s, 6" % (sr(sR[i]), sr(sB)))
    a.I("s_add_u32 %s, %s, %s" % (sr(sT2), sr(sT2), sr(sR[i])))
    a.I("s_mul_i32 %s, %s, 1152" % (sr(sT2), sr(sT2)))
    a.I("s_add_u32 %s, %s, %s" % (sr(sT1), sr(sT1), sr(sT2)))
    a.I("s_cmp_ge_u32 %s, 16" % sr(sT0))
    a.I("s_cselect_b32 %s, %s, %s" % (sr(sO[i]), sr(sT1), sr(sO[i])))
    a.I("s_cselect_b32 %s, 1, 0" % sr(sR[i]))
a.I("s_branch L_FIN_CHK")
a.L("L_FIN_RETRY")
fin_loads()
a.L("L_FIN_CHK")
a.I("s_waitcnt vmcnt(0)")
a.I("v_xor_b32 v12, %s, v35" % sr(sTAG))
for k in range(1, 8):
    a.I("v_xor_b32 v13, %s, v%d" % (sr(sTAG), 35 + 4 * k))
    a.I("v_or_b32 v12, v13, v12")
a.I("v_cmp_ne_u32 vcc, 0, v12")
a.I("s_add_u32 %s, %s, 1" % (sr(sT3), sr(sT3)))
a.I("s_cmp_gt_u32 %s, 40000" % sr(sT3))
a.I("s_cbranch_scc1 L_FIN_GO")
a.I("s_cbranch_vccnz L_FIN_RETRY")
a.L("L_FIN_GO")
for i in range(3):
    acc = 64 + 2 * i
    for k in range(8):
        r = 32 + 4 * k + i
        if k == 0:
            a.I("v_lshlrev_b32 v%d, 16, v%d" % (acc, r))
            a.I("v_and_b32 v%d, 0xffff0000, v%d" % (acc + 1, r))
        else:
            t = 72 + 2 * ((k + i) % 3)
            a.I("v_lshlrev_b32 v%d, 16, v%d" % (t, r))
            a.I("v_and_b32 v%d, 0xffff0000, v%d" % (t + 1, r))
            a.I("v_pk_add_f32 v[%d:%d], v[%d:%d], v[%d:%d]" % (acc, acc + 1, acc, acc + 1, t, t + 1))
    a.I("v_cvt_pk_bf16_f32 v%d, v%d, v%d" % (80 + i, acc, acc + 1))
    a.I("s_cmp_eq_u32 %s, 1" % sr(sR[i]))
    a.I("s_cselect_b64 vcc, -1, 0")
    a.I("v_cndmask_b32 v%d, v6, v7, vcc" % (84 + i))
    a.I("buffer_store_dword v%d, v%d, %s, %s offen%s" % (80 + i, 84 + i, sr(SOUT, 4), sr(sO[i]), ["", " sc0 sc1", " nt"][OPT["outsc"]]))
a.I("s_and_b32 %s, %s, 31" % (sr(sT0), sr(sID)))
a.I("s_cmp_eq_u32 %s, 0" % sr(sT0))
a.I("s_cbranch_scc0 L_FIN_SKIP")
a.I("s_cmp_eq_u32 %s, 4" % sr(sWAVE))
a.I("s_cbranch_scc0 L_FIN_SKIP")
a.I("s_lshl_b32 %s, %s, 7" % (sr(sT0), sr(sB)))
a.I("v_mov_b32 v4, %s" % sr(sTAG))
a.I("v_mov_b32 v5, 0")
a.I("s_mov_b64 exec, 1")
a.I("buffer_store_dword v4, v5, %s, %s offen sc0 sc1" % (sr(SWS, 4), sr(sT0)))
a.I("s_mov_b64 exec, -1")
a.L("L_FIN_SKIP")
a.L("L_CEND")
if OPT["stamps"] == 4:
    a.I("s_cmp_lt_u32 %s, 4" % sr(sWAVE))
    a.I("s_cbranch_scc0 L_NOCST")
    a.I("s_waitcnt lgkmcnt(0)")
    for i in range(len(CST)):
        a.I("v_writelane_b32 v100, %s, %d" % (sr(CPAIRS[i]), i))
    a.I("s_lshl_b32 %s, %s, 2" % (sr(sT0), sr(sID)))
    a.I("s_add_u32 %s, %s, %s" % (sr(sT0), sr(sT0), sr(sWAVE)))
    a.I("s_lshl_b32 %s, %s, 8" % (sr(sT0), sr(sT0)))
    a.I("s_add_u32 %s, %s, 0x%x" % (sr(sT0), sr(sT0), WS_STAMP + 0x200000))
    a.I("v_lshlrev_b32 v103, 2, v1")
    a.I("buffer_store_dword v100, v103, %s, %s offen" % (sr(SWS, 4), sr(sT0)))
    a.L("L_NOCST")
if OPT["stamps"]:
    a.I("s_memrealtime %s" % sr(sSTAMP + 2 * 9, 2))
    a.I("s_waitcnt lgkmcnt(0) vmcnt(0)")
    a.I("s_lshl_b32 %s, %s, 3" % (sr(sT0), sr(sID)))
    a.I("s_add_u32 %s, %s, %s" % (sr(sT0), sr(sT0), sr(sWAVE)))
    a.I("s_lshl_b32 %s, %s, 6" % (sr(sT0), sr(sT0)))
    a.I("s_add_u32 %s, %s, 0x%x" % (sr(sT0), sr(sT0), WS_STAMP))
    a.I("v_mov_b32 v5, 0")
    a.I("s_mov_b64 exec, 1")
    for i in range(10):
        a.I("v_mov_b32 v4, %s" % sr(sSTAMP + 2 * i))
        a.I("buffer_store_dword v4, v5, %s, %s offen offset:%d" % (sr(SWS, 4), sr(sT0), i * 4))
    a.I("s_waitcnt vmcnt(0)")
a.L("L_END")
a.I("s_endpgm")
final_lines = a.lines

tail = """
.section .rodata,"a"
.p2align 6
.amdhsa_kernel %s
  .amdhsa_next_free_vgpr 256
  .amdhsa_next_free_sgpr 96
  .amdhsa_accum_offset 256
  .amdhsa_group_segment_fixed_size 0
  .amdhsa_kernarg_size 64
  .amdhsa_user_sgpr_count 2
  .amdhsa_user_sgpr_kernarg_segment_ptr 1
  .amdhsa_system_sgpr_workgroup_id_x 1
.end_amdhsa_kernel
""" % KNAME

probs = []
for nm, ls in (("compute", entry_lines + compute_lines + final_lines), ("loader", entry_lines + loader_lines + final_lines)):
    probs += check_hazards(ls, nm)
    probs += check_hazards([l for l in ls if ";slow" not in l], nm + "-fast")
for p in sorted(set(probs)): print("HAZARD", p)
out = "\n".join(hdr + entry_lines + loader_lines + compute_lines + final_lines) + "\n" + tail
if OPT["scx"] == 0: out = out.replace(" sc0 sc1", " sc1")
open(sys.argv[1], "w").write(out)
open(sys.argv[1] + ".bar", "w").write(",".join(n for n, _ in units))
open(sys.argv[1] + ".cst", "w").write(",".join(CST))
print("units", [(n, x) for n, x in units], "lines", out.count("\n"))
```

```python
import sys, struct
from asmlib import *

KNAME = "standalone__gqa_block_cached__near_ridge_kernel"
OPT = dict(dump=0, stamps=0, ntkv=1, ntw=0, ntx=0, ntwo=0, rot=1, tlb=1, pfwo=1, prio=1, lsleep=1, look=2, pk=1, pfa=0, dga=3, initat=4, nowait=0, noload=0, lonly=0, sel=0, spread=1, ntpf=1, pfat=0, nox=0, now=0, scx=0, light=1, dgp=2, finwait=1, oiord=1, tail1=1, outsc=0, lateflag=1, codepf=0, ktrot=0, e1plain=0)
for a_ in sys.argv[2:]:
    k, v = a_.split("="); OPT[k] = int(v)

WS_EPOCH = 0x0
WS_FLAG1 = 0x1000
WS_IMG   = 0x100000
WS_SLAB  = 0x800000
SLAB_BYTES = 24576
IMG_BYTES = 16384
WS_DUMP  = 0x2000000
WS_STAMP = 0x1800000
WS_SIZE  = 0x10000000

SX, SW, SK, SV, SWO, SWS, SOUT = 8, 12, 16, 20, 24, 28, 32
KARG = 36
sKS, sJQ, sB, sH, sWAVE, sLW, sTAG, sID = 52, 53, 54, 55, 56, 57, 58, 59
sT0, sT1, sT2, sT3 = 60, 61, 62, 63
sC = 64
sLW8K = 66
sA0, sA1, sA2, sA3, sA4 = 67, 68, 69, 70, 71
sSTAMP = 72
sKNOW = 92
sBUD = 93
sKNOW2 = 94
sI0, sI1, sI2 = 4, 5, 6

SLOT = lambda i: i * 16384
XB = 131072
MISC = 155648
F_LAND, F_PROG, F_QX, F_MX, F_OR, F_IMG, F_PX = 0, 16, 32, 48, 64, 80, 96
MXD = 1024; LD = 2048
LDS_BYTES = 163840
def f32bits(x): return struct.unpack("<I", struct.pack("<f", x))[0]
SCALE = (128 ** -0.5) * 1.4426950408889634

STEP = {}
for i in range(9): STEP["A%d" % i] = i
STEP["QS"] = 9
for t in range(8): STEP["K%d" % t] = 10 + t
for t in range(8): STEP["V%d" % t] = 18 + t
STEP["ORS"] = 26
for u in range(8): STEP["P%d" % u] = 27 + u
STEP["PE"] = 35
ADDR = {}; SIZE = {}
XG = [XB, XB + 8192, XB + 16384, SLOT(7), SLOT(7) + 8192, SLOT(6)]
for i in range(9):
    ADDR["W%d" % i] = SLOT(i % 6); ADDR["X%d" % i] = XG[i % 6]
for t, s_ in enumerate([3, 4, 7, 5, 6, 0, 2]): ADDR["K%d" % t] = SLOT(s_)
ADDR["K7"] = XB
ADDR["QS"] = SLOT(1)
for t, s_ in enumerate([1, 3, 4, 7, 5, 6, 0, 2]): ADDR["V%d" % t] = SLOT(s_)
for u, s_ in enumerate([1, 3, 4, 0, 1, 3, 7, 4]): ADDR["WO%d" % u] = SLOT(s_)
ADDR["WOR"] = XB
ADDR["ORS"] = SLOT(5)
IMG_ADDR = [SLOT(7), SLOT(2), SLOT(5), SLOT(6)]
alloc = []
def A_(name, addr, size, step): alloc.append((name, addr, size, step))
def need_of(addr, size, upto):
    n = 0
    for (nm, a0, s0, st) in alloc[:upto]:
        if a0 < addr + size and addr < a0 + s0: n = max(n, st + 1)
    return n
NEED = {}
def place(name, addr, size, step):
    NEED[name] = need_of(addr, size, len(alloc)); A_(name, addr, size, step)
for i in range(9):
    place("X%d" % i, ADDR["X%d" % i], 8192, STEP["A%d" % i]); place("W%d" % i, ADDR["W%d" % i], 16384, STEP["A%d" % i])
place("QS", ADDR["QS"], 16384, STEP["QS"])
for t in range(8): place("K%d" % t, ADDR["K%d" % t], 16384, STEP["K%d" % t])
for t in range(8): place("V%d" % t, ADDR["V%d" % t], 16384, STEP["V%d" % t])
place("WOR", ADDR["WOR"], 16384, STEP["P7"])
for u in range(4): place("WO%d" % u, ADDR["WO%d" % u], 16384, STEP["P%d" % u])
place("ORS", ADDR["ORS"], 32768, STEP["ORS"])
place("OI0", IMG_ADDR[0], 16384, STEP["P1"])
for n in range(1, 4): place("OI%d" % n, IMG_ADDR[n], 16384, STEP["P%d" % (2 * n + 1)])
for u in range(4, 8): place("WO%d" % u, ADDR["WO%d" % u], 16384, STEP["P%d" % u])
STEPNAME = {v: k for k, v in STEP.items()}
units = []
for i in range(9): units.append(("A%d" % i, max(NEED["X%d" % i], NEED["W%d" % i])))
for t in range(8): units.append(("K%d" % t, NEED["K%d" % t]))
for t in range(8): units.append(("V%d" % t, NEED["V%d" % t]))
if OPT["pfat"] == 0: units.append(("PF", 0))
else: units.insert(9, ("PF", 0))
units.append(("WOR", NEED["WOR"]))
if OPT["oiord"] == 0:
    for u in range(4): units.append(("WO%d" % u, NEED["WO%d" % u]))
    for n in range(1, 4): units.append(("OI%d" % n, NEED["OI%d" % n]))
    for u in range(4, 8): units.append(("WO%d" % u, NEED["WO%d" % u]))
else:
    for u in range(7): units.append(("WO%d" % u, NEED["WO%d" % u]))
    for n in range(1, 4): units.append(("OI%d" % n, NEED["OI%d" % n]))
    units.append(("WO7", NEED["WO7"]))
UIDX = {n: i for i, (n, _) in enumerate(units)}

hdr = ["; fused GQA kernel: Q-proj + attention + out-proj; 256 WGs x 512 threads (4 compute + 4 loader waves)",
       "; @launch grid=(256,1,1) block=(512,1,1) lds=%d" % LDS_BYTES,
       '.amdgcn_target "amdgcn-amd-amdhsa--gfx950"', ".text", ".globl %s" % KNAME, ".p2align 8",
       ".type %s,@function" % KNAME, "%s:" % KNAME]

a = Asm()
lbl = [0]
def newlbl(p):
    lbl[0] += 1; return "L_%s%d" % (p, lbl[0])
def stamp(idx):
    if OPT["stamps"] == 4 and idx >= 1: return
    if OPT["stamps"] == 3 and 1 <= idx <= 8:
        a.I("s_mov_b32 %s, %s" % (sr(sSTAMP + 2 * idx), sr(sBUD)))
    elif OPT["stamps"]:
        a.I("s_memrealtime %s" % sr(sSTAMP + 2 * idx, 2))
        a.I("s_waitcnt lgkmcnt(0)")

CST = []
CPAIRS = list(range(8, 28, 2)) + list(range(36, 52, 2)) + list(range(74, 92, 2))
def cst(name):
    if OPT["stamps"] == 4 and len(CST) < len(CPAIRS):
        a.I("s_memtime %s" % sr(CPAIRS[len(CST)], 2)); CST.append(name)
def spin(known, need, rd, nvals, vt, pre=None):
    ok = newlbl("OK"); sp = newlbl("SP")
    a.I("s_cmp_ge_u32 %s, %d" % (sr(known), need))
    a.I("s_cbranch_scc1 %s" % ok)
    n0 = len(a.lines)
    a.L(sp)
    a.I(rd)
    a.I("s_waitcnt lgkmcnt(0)")
    if nvals == 4:
        a.I("v_min3_u32 %s, %s, %s, %s" % (vr(vt), vr(vt), vr(vt + 1), vr(vt + 2)))
        a.I("v_min_u32 %s, %s, %s" % (vr(vt), vr(vt), vr(vt + 3)))
        a.I("s_nop 0")
    a.I("v_readfirstlane_b32 %s, %s" % (sr(known), vr(vt)))
    a.I("s_add_i32 %s, %s, -1" % (sr(sBUD), sr(sBUD)))
    a.I("s_cmp_lt_i32 %s, 0" % sr(sBUD))
    a.I("s_cbranch_scc1 %s" % ok)
    a.I("s_cmp_ge_u32 %s, %d" % (sr(known), need))
    a.I("s_cbranch_scc0 %s" % sp)
    for i in range(n0, len(a.lines)): a.lines[i] += " ;slow"
    a.L(ok)

a.I("s_cmp_ge_u32 s2, 256")
a.I("s_cbranch_scc1 L_END")
a.I("s_load_dwordx16 %s, s[0:1], 0" % sr(KARG, 16))
if OPT["stamps"]:
    a.I("s_memrealtime %s" % sr(sSTAMP, 2))
a.I("v_lshrrev_b32 v2, 6, v0")
a.I("v_and_b32 v1, 63, v0")
a.I("s_mov_b32 %s, s2" % sr(sID))
a.I("v_readfirstlane_b32 %s, v2" % sr(sWAVE))
a.I("s_and_b32 %s, s2, 7" % sr(sKS))
a.I("s_lshr_b32 %s, s2, 3" % sr(sJQ))
a.I("s_and_b32 %s, %s, 3" % (sr(sJQ), sr(sJQ)))
a.I("s_lshr_b32 %s, s2, 5" % sr(sB))
a.I("s_lshl_b32 %s, %s, 2" % (sr(sH), sr(sKS)))
a.I("s_add_u32 %s, %s, %s" % (sr(sH), sr(sH), sr(sJQ)))
a.I("v_lshrrev_b32 v2, 4, v1")
a.I("v_and_b32 v3, 15, v1")
a.I("s_mov_b32 %s, 0" % sr(sKNOW))
a.I("s_mov_b32 %s, 0" % sr(sKNOW2))
a.I("s_mov_b32 %s, 0x80000" % sr(sBUD))
a.I("s_cmp_lt_u32 %s, 4" % sr(sWAVE))
a.I("s_cbranch_scc1 L_COMPUTE")
entry_lines = a.lines

pX, pK, pV, pWQ, pWO, pOUT, pDBG, pWS = [KARG + 2 * i for i in range(8)]
def mk_srd(d, p, off_sgpr, size):
    if off_sgpr is None:
        a.I("s_mov_b32 %s, %s" % (sr(d), sr(p)))
        a.I("s_mov_b32 %s, %s" % (sr(d + 1), sr(p + 1)))
    else:
        a.I("s_add_u32 %s, %s, %s" % (sr(d), sr(p), sr(off_sgpr)))
        a.I("s_addc_u32 %s, %s, 0" % (sr(d + 1), sr(p + 1)))
    a.I("s_mov_b32 %s, 0x%x" % (sr(d + 2), size))
    a.I("s_mov_b32 %s, 0x00020000" % sr(d + 3))
def kv_srds():
    a.I("s_lshr_b32 %s, %s, 1" % (sr(sT0), sr(sH)))
    a.I("s_lshl_b32 %s, %s, 4" % (sr(sT1), sr(sB)))
    a.I("s_add_u32 %s, %s, %s" % (sr(sT0), sr(sT0), sr(sT1)))
    a.I("s_lshl_b32 %s, %s, 17" % (sr(sT0), sr(sT0)))
    mk_srd(SK, pK, sT0, 131072)
    mk_srd(SV, pV, sT0, 131072)
    a.I("s_mul_i32 %s, %s, 589824" % (sr(sT0), sr(sKS)))
    mk_srd(SWO, pWO, sT0, 589824)

a = Asm()
q = LdsQ(a)
def ds_read(kind, dst, n, addr, off):
    assert 0 <= off < 65536, off
    a.I("%s %s, %s offset:%d" % (kind, vr(dst, n), vr(addr), off))
    return q.issue()
def rd128(dst, addr, off): return ds_read("ds_read_b128", dst, 4, addr, off)
def rdtr(dst, addr, off): return ds_read("ds_read_b64_tr_b16", dst, 2, addr, off)
def ds_write(kind, addr, src, n, off):
    assert 0 <= off < 65536
    a.I("%s %s, %s offset:%d" % (kind, vr(addr), vr(src, n), off))
    return q.issue()
def mfma32(d, A, B, c0=False):
    a.I("v_mfma_f32_32x32x16_bf16 %s, %s, %s, %s" % (vr(d, 16), vr(A, 4), vr(B, 4), "0" if c0 else vr(d, 16)))
def mfma16(d, A, B, c0=False):
    a.I("v_mfma_f32_16x16x32_bf16 %s, %s, %s, %s" % (vr(d, 4), vr(A, 4), vr(B, 4), "0" if c0 else vr(d, 4)))

vFLP = 0; vFL = 2; vFLO = 3
aX = [4, 5, 6, 7]; aW = [8, 9]; aK = 10; aV = [11, 12, 13, 14]; aWO = [15, 16]; aOI = 17; aRA = 18; aRB = 19
tA, tB, tC, tD, tE, tF = 20, 21, 22, 23, 24, 25
vIMG, vL16 = 26, 27
vFT = 28
vM, vL, vP0, vP1 = 4, 5, 6, 7
LS = 8
RING = 32; QF = 64; KR = 96; OACC = 64; S = 128

def wait_land(unit):
    if OPT["nowait"] and not unit.startswith("OI"): return
    spin(sKNOW, UIDX[unit] + 1, "ds_read_b128 %s, %s offset:%d" % (vr(vFT, 4), vr(vFL), F_LAND), 4, vFT)
def wait_prog(step):
    spin(sKNOW2, STEP[step] + 1, "ds_read_b128 %s, %s offset:%d" % (vr(vFT, 4), vr(vFL), F_PROG), 4, vFT)
def set_prog(step):
    a.I("v_mov_b32 %s, %d" % (vr(vFT), STEP[step] + 1))
    a.I("s_mov_b64 exec, 1")
    ds_write("ds_write_b32", vFLO, vFT, 1, F_PROG)
    a.I("s_mov_b64 exec, -1")
def set_flag(off):
    a.I("v_mov_b32 %s, 1" % vr(vFT))
    a.I("s_mov_b64 exec, 1")
    ds_write("ds_write_b32", vFLO, vFT, 1, off)
    a.I("s_mov_b64 exec, -1")
def wait_partner(off):
    a.I("s_mov_b32 %s, 0" % sr(sT3))
    spin(sT3, 1, "ds_read_b32 %s, %s offset:%d" % (vr(vFT), vr(vFLP), off), 1, vFT)
def wait_all(off):
    a.I("s_mov_b32 %s, 0" % sr(sT3))
    spin(sT3, 1, "ds_read_b128 %s, %s offset:%d" % (vr(vFT, 4), vr(vFL), off), 4, vFT)

a.L("L_COMPUTE")
if OPT["codepf"]:
    a.I("s_cmp_eq_u32 %s, 3" % sr(sWAVE))
    a.I("s_cbranch_scc0 L_NOCPF")
    a.I("s_getpc_b64 s[4:5]")
    a.L("L_PCREF")
    a.I("s_lshr_b32 %s, %s, 3" % (sr(sT0), sr(sID)))
    a.I("s_mul_i32 %s, %s, %d" % (sr(sT0), sr(sT0), OPT["codepf"] * 128))
    a.I("s_add_u32 s4, s4, %s" % sr(sT0))
    a.I("s_addc_u32 s5, s5, 0")
    a.I("v_lshlrev_b32 v9, 7, v1")
    a.I("s_mov_b64 exec, 0x%x" % ((1 << OPT["codepf"]) - 1))
    a.I("global_load_dword v9, v9, s[4:5]")
    a.I("s_mov_b64 exec, -1")
    a.L("L_NOCPF")
if OPT["prio"]: a.I("s_setprio 1")
sQH = sA0
a.I("s_and_b32 %s, %s, 1" % (sr(sLW), sr(sWAVE)))
a.I("s_lshl_b32 %s, %s, 13" % (sr(sLW8K), sr(sLW)))
a.I("s_lshr_b32 %s, %s, 1" % (sr(sQH), sr(sWAVE)))
a.I("s_mov_b32 %s, 0x%x" % (sr(sC), f32bits(SCALE)))
a.I("s_mov_b32 %s, 0x%x" % (sr(sC + 1), f32bits(SCALE)))
hf, r_, c4, mh, l31, L4, L15 = 32, 33, 34, 35, 36, 43, 44
T1, T2, T3 = 37, 38, 39
a.I("v_mov_b32 %s, v2" % vr(L4))
a.I("v_mov_b32 %s, v3" % vr(L15))
a.I("v_lshrrev_b32 %s, 5, v1" % vr(hf))
a.I("v_lshrrev_b32 %s, 2, v3" % vr(r_))
a.I("v_and_b32 %s, 3, v1" % vr(c4))
a.I("v_and_b32 %s, 1, v2" % vr(mh))
a.I("v_and_b32 %s, 31, v1" % vr(l31))
a.I("s_waitcnt lgkmcnt(0)")
mk_srd(SWS, pWS, None, WS_SIZE)
mk_srd(SOUT, pOUT, None, 589824)
a.I("s_mul_i32 %s, %s, %d" % (sr(sA1), sr(sID), IMG_BYTES))
a.I("s_add_u32 %s, %s, 0x%x" % (sr(sA1), sr(sA1), WS_IMG))
a.I("s_mul_i32 %s, %s, %d" % (sr(sA2), sr(sID), SLAB_BYTES))
a.I("s_mul_i32 %s, %s, 6144" % (sr(sT0), sr(sWAVE)))
a.I("s_add_u32 %s, %s, %s" % (sr(sA2), sr(sA2), sr(sT0)))
a.I("s_add_u32 %s, %s, 0x%x" % (sr(sA2), sr(sA2), WS_SLAB))
a.I("s_lshl_b32 %s, %s, 7" % (sr(sT0), sr(sB)))
a.I("v_mov_b32 v31, %s" % sr(sT0))
a.I("buffer_load_dword v16, v31, %s, 0 offen sc1" % sr(SWS, 4))
if OPT["tlb"]:
    kv_srds()
    a.I("v_mov_b32 v254, 0")
    a.I("s_mov_b64 exec, 1")
    l0 = newlbl("TW"); l1 = newlbl("TW"); l2 = newlbl("TW"); le = newlbl("TW")
    a.I("s_cmp_eq_u32 %s, 0" % sr(sWAVE)); a.I("s_cbranch_scc0 %s" % l0)
    a.I("buffer_load_dword v9, v254, %s, 0 offen nt" % sr(SK, 4))
    a.I("buffer_load_dword v9, v254, %s, 0 offen" % sr(SOUT, 4))
    a.I("s_branch %s" % le)
    a.L(l0)
    a.I("s_cmp_eq_u32 %s, 1" % sr(sWAVE)); a.I("s_cbranch_scc0 %s" % l1)
    a.I("buffer_load_dword v9, v254, %s, 0 offen nt" % sr(SV, 4))
    a.I("buffer_load_dword v9, v254, %s, %s offen sc1" % (sr(SWS, 4), sr(sA1)))
    a.I("buffer_load_dword v9, v254, %s, 0 offen sc1" % sr(SWS, 4))
    a.I("s_branch %s" % le)
    a.L(l1)
    a.I("s_cmp_eq_u32 %s, 2" % sr(sWAVE)); a.I("s_cbranch_scc0 %s" % l2)
    a.I("buffer_load_dword v9, v254, %s, 0 offen" % sr(SWO, 4))
    a.I("s_mov_b32 %s, 589820" % sr(sT0))
    a.I("buffer_load_dword v9, v254, %s, %s offen" % (sr(SWO, 4), sr(sT0)))
    a.I("s_branch %s" % le)
    a.L(l2)
    a.I("s_andn2_b32 %s, %s, 7" % (sr(sT1), sr(sID)))
    a.I("s_mul_i32 %s, %s, %d" % (sr(sT1), sr(sT1), SLAB_BYTES))
    a.I("s_add_u32 %s, %s, 0x%x" % (sr(sT1), sr(sT1), WS_SLAB))
    a.I("buffer_load_dword v9, v254, %s, %s offen sc1" % (sr(SWS, 4), sr(sT1)))
    a.I("s_add_u32 %s, %s, %d" % (sr(sT1), sr(sT1), SLAB_BYTES * 8 - 4))
    a.I("buffer_load_dword v9, v254, %s, %s offen sc1" % (sr(SWS, 4), sr(sT1)))
    a.L(le)
    a.I("s_mov_b64 exec, -1")
a.I("v_lshlrev_b32 %s, 7, %s" % (vr(T1), vr(l31)))
a.I("v_add_u32 %s, 0x%x, %s" % (vr(T1), XB, vr(T1)))
a.I("v_bfe_u32 %s, %s, 1, 3" % (vr(T2), vr(l31)))
a.I("v_xor_b32 %s, %s, %s" % (vr(T2), vr(hf), vr(T2)))
a.I("v_lshlrev_b32 %s, 4, %s" % (vr(T2), vr(T2)))
a.I("v_add_u32 %s, %s, %s" % (vr(aX[0]), vr(T1), vr(T2)))
for s in range(1, 4):
    a.I("v_xor_b32 %s, %d, %s" % (vr(aX[s]), 32 * s, vr(aX[0])))
swp = 40
a.I("v_and_b32 %s, 1, %s" % (vr(T1), vr(c4)))
a.I("v_lshlrev_b32 %s, 1, %s" % (vr(T1), vr(T1)))
a.I("v_lshrrev_b32 %s, 1, %s" % (vr(T2), vr(c4)))
a.I("v_or_b32 %s, %s, %s" % (vr(swp), vr(T1), vr(T2)))
def tr_addr(dst, rowlane, cq, blk, extra_sgpr=None):
    a.I("v_xor_b32 %s, %s, %s" % (vr(T1), blk, vr(r_)))
    a.I("v_lshlrev_b32 %s, 6, %s" % (vr(T1), vr(T1)))
    a.I("v_lshrrev_b32 %s, 1, %s" % (vr(T2), vr(cq)))
    a.I("v_lshl_add_u32 %s, %s, 1, %s" % (vr(T2), vr(mh), vr(T2)))
    a.I("v_lshl_add_u32 %s, %s, 4, %s" % (vr(T1), vr(T2), vr(T1)))
    a.I("v_and_b32 %s, 1, %s" % (vr(T2), vr(cq)))
    a.I("v_lshl_add_u32 %s, %s, 3, %s" % (vr(T1), vr(T2), vr(T1)))
    a.I("v_lshl_add_u32 %s, %s, 8, %s" % (vr(dst), vr(rowlane), vr(T1)))
    if extra_sgpr is not None:
        a.I("v_add_u32 %s, %s, %s" % (vr(dst), sr(extra_sgpr), vr(dst)))
rowA = 41
a.I("v_lshl_add_u32 %s, %s, 3, %s" % (vr(rowA), vr(hf), vr(r_)))
tr_addr(aW[0], rowA, swp, sr(sWAVE))
a.I("v_xor_b32 %s, %s, %s" % (vr(T1), vr(hf), vr(L15)))
a.I("v_lshlrev_b32 %s, 4, %s" % (vr(T1), vr(T1)))
a.I("v_lshl_add_u32 %s, %s, 8, %s" % (vr(aK), vr(l31), vr(T1)))
a.I("v_add_u32 %s, %s, %s" % (vr(aK), sr(sLW8K), vr(aK)))
rowB = 42
a.I("v_lshl_add_u32 %s, %s, 2, %s" % (vr(rowB), vr(hf), vr(r_)))
for i in range(4):
    a.I("s_lshl_b32 %s, %s, 1" % (sr(sT0), sr(sLW)))
    a.I("s_xor_b32 %s, %s, %d" % (sr(sT0), sr(sT0), i))
    tr_addr(aV[i], rowB, c4, sr(sT0), sLW8K)
tr_addr(aWO[0], rowB, c4, sr(sWAVE))
a.I("v_lshlrev_b32 %s, 4, v1" % vr(vL16))
a.I("s_lshl_b32 %s, %s, 13" % (sr(sT0), sr(sQH)))
a.I("v_add_u32 %s, %s, %s" % (vr(aOI), sr(sT0), vr(vL16)))
a.I("v_lshrrev_b32 %s, 1, %s" % (vr(T1), vr(L4)))
a.I("v_lshlrev_b32 %s, 4, %s" % (vr(T1), vr(T1)))
a.I("v_lshl_add_u32 %s, %s, 2, %s" % (vr(T1), vr(mh), vr(T1)))
a.I("v_add_u32 %s, %s, %s" % (vr(T1), vr(T1), vr(r_)))
a.I("v_lshlrev_b32 %s, 5, %s" % (vr(T1), vr(T1)))
a.I("v_lshl_add_u32 %s, %s, 3, %s" % (vr(T1), vr(c4), vr(T1)))
a.I("v_add_u32 %s, 0x%x, %s" % (vr(aRA), ADDR["WOR"], vr(T1)))
a.I("v_lshrrev_b32 %s, 1, %s" % (vr(T1), vr(L4)))
a.I("v_lshlrev_b32 %s, 10, %s" % (vr(T1), vr(T1)))
a.I("v_lshl_add_u32 %s, %s, 5, %s" % (vr(T2), vr(mh), vr(L15)))
a.I("v_lshl_add_u32 %s, %s, 4, %s" % (vr(T1), vr(T2), vr(T1)))
a.I("s_lshl_b32 %s, %s, 13" % (sr(sT0), sr(sQH)))
a.I("s_lshl_b32 %s, %s, 8" % (sr(sT1), sr(sLW)))
a.I("s_add_u32 %s, %s, %s" % (sr(sT0), sr(sT0), sr(sT1)))
a.I("v_add_u32 %s, %s, %s" % (vr(aRB), sr(sT0), vr(T1)))
a.I("s_lshl_b32 %s, %s, 12" % (sr(sT0), sr(sLW)))
a.I("v_add_u32 %s, %s, %s" % (vr(vIMG), sr(sT0), vr(aOI)))
a.I("v_mov_b32 %s, 0x%x" % (vr(vFL), MISC))
a.I("s_lshl_b32 %s, %s, 2" % (sr(sT0), sr(sWAVE)))
a.I("s_add_u32 %s, %s, 0x%x" % (sr(sT0), sr(sT0), MISC))
a.I("v_mov_b32 %s, %s" % (vr(vFLO), sr(sT0)))
a.I("s_xor_b32 %s, %s, 4" % (sr(sT0), sr(sT0)))
a.I("v_mov_b32 %s, %s" % (vr(vFLP), sr(sT0)))
a.I("v_add_u32 %s, 0x%x, %s" % (vr(tA), SLOT(3), vr(aW[0])))
aX2 = [tC, tD, tE, tF]
for s_ in range(4):
    a.I("v_subrev_u32 %s, 0x%x, %s" % (vr(aX2[s_]), XB - SLOT(6), vr(aX[s_])))
a.I("s_barrier")
if OPT["lonly"]:
    a.I("v_mov_b32 %s, 1000" % vr(vFT))
    a.I("ds_write_b32 %s, %s offset:%d" % (vr(vFLO), vr(vFT), F_PROG))
    a.I("s_waitcnt lgkmcnt(0) vmcnt(0)")
    a.I("s_endpgm")
stamp(1)

def dump_regs(base, n, slot_index):
    a.I("s_lshl_b32 %s, %s, 2" % (sr(sT0), sr(sID)))
    a.I("s_add_u32 %s, %s, %s" % (sr(sT0), sr(sT0), sr(sWAVE)))
    a.I("s_mul_i32 %s, %s, %d" % (sr(sT0), sr(sT0), n * 256))
    a.I("s_add_u32 %s, %s, 0x%x" % (sr(sT0), sr(sT0), WS_DUMP + slot_index * 0x2000000))
    for j in range(0, n, 4):
        a.I("buffer_store_dwordx4 %s, %s, %s, %s offen" % (vr(base + j, 4), vr(vL16), sr(SWS, 4), sr(sT0)))
        a.I("s_add_u32 %s, %s, 1024" % (sr(sT0), sr(sT0)))
    a.I("s_waitcnt vmcnt(0)")

a.C("==== phase A ====")
QACC = 128; BR = KR; NG = 36
tick = {}
def a_reads(n, part):
    i, s = divmod(n, 4)
    xa = ADDR["X%d" % i]; wo_ = ADDR["W%d" % i]
    if xa >= XB: xo = xa - XB; ax = aX
    else: xo = xa - SLOT(6); ax = aX2
    hi = wo_ >= SLOT(3)
    aw = tA if hi else aW[0]
    if hi: wo_ -= SLOT(3)
    if part == 0:
        if s == 0:
            wait_land("A%d" % i)
            if i % 2 == 0: cst("A%d" % i)
        base = RING + 4 * (n % 4); o = wo_ + 4096 * s
        rdtr(base, aw, o)
        rdtr(base + 2, aw, o + 1024)
        tick[(n, 0)] = rd128(BR + 8 * (n % 4), ax[s], xo)
    else:
        tick[(n, 1)] = rd128(BR + 8 * (n % 4) + 4, ax[s], xo + 4096)
        if s == 3: set_prog("A%d" % i)
DG = OPT["dga"]
for n in range(DG):
    a_reads(n, 0); a_reads(n, 1)
for n in range(NG):
    q.wait(tick[(n, 0)])
    mfma32(QACC, RING + 4 * (n % 4), BR + 8 * (n % 4), c0=(n == 0))
    if n + DG < NG: a_reads(n + DG, 0)
    q.wait(tick[(n, 1)])
    mfma32(QACC + 16, RING + 4 * (n % 4), BR + 8 * (n % 4) + 4, c0=(n == 0))
    if n + DG < NG: a_reads(n + DG, 1)
stamp(2)
cst("Aend")
a.I("s_lshl_b32 %s, %s, 11" % (sr(sT0), sr(sWAVE)))
a.I("s_add_u32 %s, %s, %d" % (sr(sT0), sr(sT0), ADDR["QS"]))
a.I("v_add_u32 %s, %s, %s" % (vr(tA), sr(sT0), vr(vL16)))
a.I("v_add_u32 %s, 0x%x, %s" % (vr(tB), ADDR["QS"], vr(aOI)))
wait_prog(STEPNAME[NEED["QS"] - 1])
a.nop(6)
if OPT["dump"] == 1: dump_regs(QACC, 32, 0)
QP = 32
for t in range(2):
    for j in range(8):
        a.I("v_cvt_pk_bf16_f32 %s, %s, %s" % (vr(QP + 8 * t + j), vr(QACC + 16 * t + 2 * j), vr(QACC + 16 * t + 2 * j + 1)))
    for j in range(2):
        ds_write("ds_write_b128", tA, QP + 8 * t + 4 * j, 4, t * 8192 + j * 1024)
set_flag(F_QX)
a.I("v_mov_b32 %s, 0xff800000" % vr(vM))

a.C("==== phase K ====")
D = 7
tick = {}
def max_ops(t):
    return ["v_max3_f32 %s, %s, %s, %s" % (vr(vM), vr(S + 16 * t + 2 * j), vr(S + 16 * t + 2 * j + 1), vr(vM)) for j in range(8)]
pend = []
for n in range(64 + D):
    m = n - D
    if m == 0:
        wait_all(F_QX)
        qtk = [rd128(QF + 4 * sgm, tB, sgm * 1024) for sgm in range(8)]
        set_prog("QS")
    if m >= 0:
        t, s = divmod(m, 8)
        q.wait(tick[m])
        if m < 8: q.wait(qtk[m])
        mfma32(S + 16 * t, KR + 4 * (m % 8), QF + 4 * s, c0=(s == 0))
        if s == 2 and t >= 1: pend = max_ops(t - 1)
        if s >= 3 and pend:
            a.I(pend.pop(0)); a.I(pend.pop(0))
    if n < 64:
        t, s = divmod(n, 8)
        if s == 0:
            wait_land("K%d" % t)
            if t % 4 == 0 or t == 7: cst("K%d" % t)
            a.I("v_add_u32 %s, 0x%x, %s" % (vr(tC), ADDR["K%d" % t], vr(aK)))
        tmp = tD if n % 2 == 0 else tE
        if s == 0:
            tick[n] = rd128(KR + 4 * (n % 8), tC, 0)
        else:
            a.I("v_xor_b32 %s, %d, %s" % (vr(tmp), 32 * s, vr(tC)))
            tick[n] = rd128(KR + 4 * (n % 8), tmp, 0)
        if s == 7: set_prog("K%d" % t)
assert not pend
stamp(3)
cst("Kend")
a.I("s_waitcnt vmcnt(0)")
a.I("v_readfirstlane_b32 %s, v16" % sr(sTAG))
a.I("s_lshl_b32 %s, %s, 8" % (sr(sT0), sr(sWAVE)))
a.I("s_add_u32 %s, %s, %d" % (sr(sT0), sr(sT0), MISC + MXD))
a.I("v_lshlrev_b32 %s, 2, v1" % vr(tA))
a.I("v_add_u32 %s, %s, %s" % (vr(tA), sr(sT0), vr(tA)))
a.I("v_xor_b32 %s, 0x100, %s" % (vr(tB), vr(tA)))
a.nop(8)
for s_ in max_ops(7): a.I(s_)
if OPT["dump"] == 2: dump_regs(S, 128, 0)

a.C("==== softmax ====")
a.I("s_add_u32 %s, %s, 1" % (sr(sTAG), sr(sTAG)))
a.I("v_mov_b32 %s, %s" % (vr(tC), vr(vM)))
a.nop(2)
a.I("v_permlane32_swap_b32 %s, %s" % (vr(tC), vr(vM)))
a.I("v_max_f32 %s, %s, %s" % (vr(vM), vr(tC), vr(vM)))
ds_write("ds_write_b32", tA, vM, 1, 0)
a.I("v_mov_b32 %s, 0" % vr(LS))
a.I("v_mov_b32 %s, 0" % vr(LS + 1))
a.I("v_mul_f32 %s, %s, %s" % (vr(vP0), sr(sC), vr(vM)))
a.I("v_sub_f32 %s, 0, %s" % (vr(vP0), vr(vP0)))
a.I("v_mov_b32 %s, %s" % (vr(vP1), vr(vP0)))
for t in range(8):
    b0 = S + 16 * t
    for j in range(8):
        a.I("v_pk_fma_f32 %s, %s, %s, %s" % (vr(b0 + 2 * j, 2), vr(b0 + 2 * j, 2), sr(sC, 2), vr(vP0, 2)))
    for j in range(16):
        a.I("v_exp_f32 %s, %s" % (vr(b0 + j), vr(b0 + j)))
    a.I("s_nop 0")
    for j in range(8):
        a.I("v_pk_add_f32 %s, %s, %s" % (vr(LS, 2), vr(LS, 2), vr(b0 + 2 * j, 2)))
    for j in range(8):
        a.I("v_cvt_pk_bf16_f32 %s, %s, %s" % (vr(b0 + j), vr(b0 + 2 * j), vr(b0 + 2 * j + 1)))
a.I("v_add_f32 %s, %s, %s" % (vr(vL), vr(LS), vr(LS + 1)))
a.I("v_mov_b32 %s, %s" % (vr(tC), vr(vL)))
a.nop(2)
a.I("v_permlane32_swap_b32 %s, %s" % (vr(tC), vr(vL)))
a.I("v_add_f32 %s, %s, %s" % (vr(vL), vr(tC), vr(vL)))
ds_write("ds_write_b32", tA, vL, 1, LD - MXD)
stamp(4)
cst("SMend")

a.C("==== phase V ====")
tick = {}
tV = [tC, tD, tE, tF]
for n in range(64 + D):
    m = n - D
    if m >= 0:
        t, rem = divmod(m, 8); u, ai = divmod(rem, 4)
        q.wait(tick[m])
        mfma32(OACC + 16 * ai, RING + 4 * (m % 8), S + 16 * t + 4 * u, c0=(m < 4))
    if n < 64:
        t, rem = divmod(n, 8); u, ai = divmod(rem, 4)
        if rem == 0:
            wait_land("V%d" % t)
            if t % 4 == 0 or t == 7: cst("V%d" % t)
            for i in range(4):
                a.I("v_add_u32 %s, 0x%x, %s" % (vr(tV[i]), ADDR["V%d" % t], vr(aV[i])))
        o = 4096 * u
        rdtr(RING + 4 * (n % 8), tV[ai], o)
        tick[n] = rdtr(RING + 4 * (n % 8) + 2, tV[ai], o + 2048)
        if rem == 7: set_prog("V%d" % t)
stamp(5)
cst("Vend")
a.C("==== O reduce ====")
a.I("s_lshl_b32 %s, %s, 13" % (sr(sT0), sr(sWAVE)))
a.I("s_add_u32 %s, %s, %d" % (sr(sT0), sr(sT0), ADDR["ORS"]))
a.I("v_add_u32 %s, %s, %s" % (vr(tA), sr(sT0), vr(vL16)))
a.I("v_xor_b32 %s, 0x2000, %s" % (vr(tA + 0 + 5 - 5 + 4), vr(tA)))
a.I("v_add_u32 %s, 0x%x, %s" % (vr(tC), IMG_ADDR[0], vr(vIMG)))
assert (ADDR["ORS"] // 8192) % 2 == 0
wait_prog(STEPNAME[max(NEED["ORS"], NEED["OI0"]) - 1])
a.nop(8)
for j in range(8):
    ds_write("ds_write_b128", tA, OACC + 32 + 4 * j, 4, j * 1024)
set_flag(F_OR)
wait_partner(F_OR)
cst("ORp")
tk = []
tkm = ds_read("ds_read_b32", vP0, 1, tB, 0)
tkl = ds_read("ds_read_b32", vP1, 1, tB, LD - MXD)
for j in range(8):
    tk.append(rd128(RING + 4 * j, tE, j * 1024))
set_prog("ORS")
q.wait(tkl)
a.I("v_max_f32 %s, %s, %s" % (vr(tD), vr(vP0), vr(vM)))
a.I("v_sub_f32 %s, %s, %s" % (vr(vM), vr(vM), vr(tD)))
a.I("v_sub_f32 %s, %s, %s" % (vr(vP0), vr(vP0), vr(tD)))
a.I("v_mul_f32 %s, %s, %s" % (vr(vM), sr(sC), vr(vM)))
a.I("v_mul_f32 %s, %s, %s" % (vr(vP0), sr(sC), vr(vP0)))
a.I("v_exp_f32 %s, %s" % (vr(vM), vr(vM)))
a.I("v_exp_f32 %s, %s" % (vr(vP0), vr(vP0)))
a.I("s_nop 0")
a.I("v_mul_f32 %s, %s, %s" % (vr(vL), vr(vL), vr(vM)))
a.I("v_fma_f32 %s, %s, %s, %s" % (vr(vL), vr(vP1), vr(vP0), vr(vL)))
a.I("v_rcp_f32 %s, %s" % (vr(vL), vr(vL)))
a.I("s_nop 0")
a.I("v_mul_f32 %s, %s, %s" % (vr(LS), vr(vP0), vr(vL)))
a.I("v_mul_f32 %s, %s, %s" % (vr(vP0), vr(vM), vr(vL)))
a.I("v_mov_b32 %s, %s" % (vr(LS + 1), vr(LS)))
a.I("v_mov_b32 %s, %s" % (vr(vP1), vr(vP0)))
PK = 96
for j in range(8):
    q.wait(tk[j])
    for h2 in range(2):
        d = OACC + 4 * j + 2 * h2
        a.I("v_pk_mul_f32 %s, %s, %s" % (vr(d, 2), vr(d, 2), vr(vP0, 2)))
        a.I("v_pk_fma_f32 %s, %s, %s, %s" % (vr(d, 2), vr(RING + 4 * j + 2 * h2, 2), vr(LS, 2), vr(d, 2)))
    for h2 in range(2):
        d = OACC + 4 * j + 2 * h2
        a.I("v_cvt_pk_bf16_f32 %s, %s, %s" % (vr(PK + 2 * j + h2), vr(d), vr(d + 1)))
    if j % 2 == 1:
        jj = j // 2
        a.I("buffer_store_dwordx4 %s, %s, %s, %s offen offset:%d%s" % (vr(PK + 4 * jj, 4), vr(vIMG), sr(SWS, 4), sr(sA1), jj * 1024, "" if OPT["e1plain"] else " sc0 sc1"))
        ds_write("ds_write_b128", tC, PK + 4 * jj, 4, jj * 1024)
set_flag(F_IMG)
def flag1():
    a.I("s_lshl_b32 %s, %s, 7" % (sr(sT0), sr(sID)))
    a.I("s_lshl_b32 %s, %s, 2" % (sr(sT1), sr(sWAVE)))
    a.I("s_add_u32 %s, %s, %s" % (sr(sT0), sr(sT0), sr(sT1)))
    a.I("s_add_u32 %s, %s, 0x%x" % (sr(sT0), sr(sT0), WS_FLAG1))
    a.I("v_mov_b32 %s, %s" % (vr(tA), sr(sTAG)))
    a.I("v_mov_b32 %s, 0" % vr(tB))
    a.I("s_waitcnt vmcnt(0)")
    a.I("s_mov_b64 exec, 1")
    a.I("buffer_store_dword %s, %s, %s, %s offen%s" % (vr(tA), vr(tB), sr(SWS, 4), sr(sT0), "" if OPT["e1plain"] else " sc0 sc1"))
    a.I("s_mov_b64 exec, -1")
if not OPT["lateflag"]: flag1()
if OPT["dump"] == 3: dump_regs(OACC, 32, 0)
stamp(6)
cst("ORend")

a.C("==== phase P ====")
tick = {}
tWO = tC; tOI = tE; tRB = tF
PACC = 160; RACC = 192; RA = [196, 200]; RB = [204, 208]
BRP = 96
def p_reads(n, part):
    step, kk = divmod(n, 4)
    hn, hh = divmod(step, 2)
    blk = 2 * hh + (kk >> 1); u = kk & 1
    wt = "WO%d" % step
    if part == 0:
        if kk == 0:
            if step == 0:
                wait_all(F_IMG)
                wait_land("WO0")
            else:
                if step == 2 and OPT["lateflag"]: flag1()
                wait_land(wt)
            if hh == 0 and hn > 0: wait_land("OI%d" % hn)
            cst("P%d" % step)
            a.I("v_add_u32 %s, 0x%x, %s" % (vr(tWO), ADDR[wt], vr(aWO[0])))
            if hh == 0:
                a.I("v_add_u32 %s, 0x%x, %s" % (vr(tOI), IMG_ADDR[hn], vr(vL16)))
                a.I("v_add_u32 %s, 0x%x, %s" % (vr(tRB), IMG_ADDR[hn], vr(aRB)))
        base = RING + 4 * (n % 4); o = 8192 * (kk >> 1) + 4096 * u
        rdtr(base, tWO, o)
        rdtr(base + 2, tWO, o + 2048)
        tick[(n, 0)] = rd128(BRP + 8 * (n % 4), tOI, (blk * 2 + u) * 1024)
    else:
        tick[(n, 1)] = rd128(BRP + 8 * (n % 4) + 4, tOI, 8192 + (blk * 2 + u) * 1024)
        if u == 0:
            ri = (n // 2) % 2
            o = hn * 4096 + blk * 1024
            rdtr(RA[ri], aRA, o)
            rdtr(RA[ri] + 2, aRA, o + 256)
            tick[(n, 2)] = rd128(RB[ri], tRB, blk * 2048)
        if kk == 3 and step < 3: set_prog("P%d" % step)
DG = OPT["dgp"]; NG = 32
for n in range(DG):
    p_reads(n, 0); p_reads(n, 1)
for n in range(NG):
    q.wait(tick[(n, 0)])
    mfma32(PACC, RING + 4 * (n % 4), BRP + 8 * (n % 4), c0=(n == 0))
    if n + DG < NG: p_reads(n + DG, 0)
    q.wait(tick[(n, 1)])
    mfma32(PACC + 16, RING + 4 * (n % 4), BRP + 8 * (n % 4) + 4, c0=(n == 0))
    if n % 2 == 0:
        q.wait(tick[(n, 2)])
        ri = (n // 2) % 2
        mfma16(RACC, RA[ri], RB[ri], c0=(n == 0))
    if n + DG < NG: p_reads(n + DG, 1)
stamp(7)
cst("Pend")
GS = 64
for g in range(6): a.I("v_mov_b32 %s, %s" % (vr(GS + 4 * g + 3), sr(sTAG)))
a.I("s_add_u32 %s, %s, 4096" % (sr(sT2), sr(sA2)))
a.nop(5)
def spos(d): return GS + 4 * (d // 3) + (d % 3)
srcs = [(PACC + 2 * j, PACC + 2 * j + 1) for j in range(16)] + [(RACC, RACC + 1), (RACC + 2, RACC + 3)]
for d, (x0, x1) in enumerate(srcs):
    a.I("v_cvt_pk_bf16_f32 %s, %s, %s" % (vr(spos(d)), vr(x0), vr(x1)))
    if d % 3 == 2:
        g = d // 3
        a.I("buffer_store_dwordx4 %s, %s, %s, %s offen offset:%d sc0 sc1" % (vr(GS + 4 * g, 4), vr(vL16), sr(SWS, 4), sr(sA2 if g < 4 else sT2), (g % 4) * 1024))
set_prog("PE")
stamp(8)
a.I("s_branch L_CEND")
compute_lines = a.lines

a = Asm()
a.L("L_LOADER")
T1, T2 = 30, 31
vX = [4, 5]; vW = [6, 7, 8, 9]; vK = [10, 11, 12, 13]; vV = 14; vWO = [15, 16, 17, 18]; vWOR = [19, 20, 21, 22]; vLn = 23
vFLl = 24; vFLOl = 25
vFTl = 104
sL4 = sLW
a.I("s_sub_u32 %s, %s, 4" % (sr(sL4), sr(sWAVE)))
a.I("s_lshl_b32 %s, %s, 12" % (sr(sLW8K), sr(sL4)))
a.I("v_lshlrev_b32 %s, 2, v1" % vr(T1))
a.I("v_add_u32 %s, 0x%x, %s" % (vr(T1), MISC, vr(T1)))
a.I("v_mov_b32 %s, 0" % vr(T2))
a.I("s_cmp_eq_u32 %s, 0" % sr(sL4))
a.I("s_cbranch_scc0 L_NOINIT")
a.I("ds_write_b32 %s, %s" % (vr(T1), vr(T2)))
a.L("L_NOINIT")
for i in range(2):
    a.I("v_lshrrev_b32 %s, 3, v1" % vr(T1))
    a.I("v_mul_u32_u24 %s, 1152, %s" % (vr(T1), vr(T1)))
    a.I("v_and_b32 %s, 7, v1" % vr(T2))
    a.I("v_xor_b32 %s, %s, v2" % (vr(T2), vr(T2)))
    if i & 1: a.I("v_xor_b32 %s, 4, %s" % (vr(T2), vr(T2)))
    a.I("v_lshl_add_u32 %s, %s, 4, %s" % (vr(T1), vr(T2), vr(T1)))
    a.I("v_add_u32 %s, %d, %s" % (vr(vX[i]), i * 8192, vr(T1)))
a.I("v_lshlrev_b32 %s, 2, v2" % vr(T2))
a.I("v_xor_b32 %s, %s, v3" % (vr(T2), vr(T2)))
a.I("v_lshlrev_b32 %s, 4, %s" % (vr(T2), vr(T2)))
a.I("v_lshl_add_u32 %s, v2, 13, %s" % (vr(T1), vr(T2)))
for i in range(4):
    a.I("v_add_u32 %s, %d, %s" % (vr(vW[i]), i * 31744, vr(T1)))
a.I("s_mul_i32 s7, %s, %d" % (sr(sJQ), OPT["ktrot"]))
a.I("s_add_u32 s7, s7, %s" % sr(sB))
a.I("s_cmp_ge_u32 s7, 9")
a.I("s_cselect_b32 %s, 9, 0" % sr(sT1))
a.I("s_sub_u32 s7, s7, %s" % sr(sT1))
a.I("s_mul_i32 %s, %s, 18432" % (sr(sA0), sr(sL4)))
a.I("s_lshl_b32 %s, %s, 17" % (sr(sA1), sr(sL4)))
a.I("s_waitcnt lgkmcnt(0)")
a.I("s_mul_i32 %s, %s, 73728" % (sr(sT0), sr(sB)))
mk_srd(SX, pX, sT0, 73728)
a.I("s_lshl_b32 %s, %s, 8" % (sr(sT0), sr(sH)))
mk_srd(SW, pWQ, sT0, 575 * 8192 + 256)
issued = []
published = [0]
if OPT["pfa"]:
    a.I("s_lshl_b32 %s, %s, 2" % (sr(sT0), sr(sJQ)))
    a.I("s_add_u32 %s, %s, %s" % (sr(sT0), sr(sT0), sr(sL4)))
    a.I("s_mul_i32 %s, %s, %d" % (sr(sT0), sr(sT0), 36 * 128))
    a.I("v_lshlrev_b32 v40, 7, v1")
    a.I("v_lshrrev_b32 v42, 1, v1")
    a.I("v_lshlrev_b32 v42, 13, v42")
    a.I("v_and_b32 v43, 1, v1")
    a.I("v_lshl_add_u32 v42, v43, 7, v42")
    a.I("s_mul_i32 %s, %s, 72" % (sr(sT1), sr(sB)))
    a.I("s_mul_i32 %s, %s, 18" % (sr(sT2), sr(sL4)))
    a.I("s_add_u32 %s, %s, %s" % (sr(sT1), sr(sT1), sr(sT2)))
    a.I("s_lshl_b32 %s, %s, 13" % (sr(sT1), sr(sT1)))
    a.I("s_mov_b32 exec_lo, -1"); a.I("s_mov_b32 exec_hi, 0xf")
    if OPT["pfa"] == 1:
        a.I("buffer_load_dword v41, v42, %s, %s offen%s" % (sr(SW, 4), sr(sT1), " nt" if OPT["ntpf"] else ""))
    if OPT["pfa"] == 3:
        a.I("s_mov_b32 %s, %s" % (sr(sI2), sr(sT0)))
    else:
        a.I("buffer_load_dword v41, v40, %s, %s offen%s" % (sr(SX, 4), sr(sT0), " nt" if OPT["ntpf"] else ""))
    a.I("s_mov_b64 exec, -1")
if OPT["pk"]:
    a.I("s_and_b32 %s, %s, 1" % (sr(sT0), sr(sJQ)))
    a.I("s_cmp_eq_u32 %s, 1" % sr(sT0))
    a.I("s_cbranch_scc0 L_NOPK")
    a.I("s_lshr_b32 %s, %s, 1" % (sr(sT0), sr(sH)))
    a.I("s_lshl_b32 %s, %s, 4" % (sr(sT1), sr(sB)))
    a.I("s_add_u32 %s, %s, %s" % (sr(sT0), sr(sT0), sr(sT1)))
    a.I("s_lshl_b32 %s, %s, 17" % (sr(sT0), sr(sT0)))
    mk_srd(SK, pK, sT0, 131072)
    a.I("v_lshlrev_b32 v40, 7, v1")
    a.I("s_lshl_b32 %s, %s, 14" % (sr(sT0), sr(sL4)))
    if OPT["pk"] == 2:
        a.I("s_lshl_b32 %s, %s, 1" % (sr(sT0), sr(sT0)))
    elif OPT["rot"]:
        a.I("s_add_u32 %s, %s, 65536" % (sr(sT0), sr(sT0)))
    for j in range(OPT["pk"] * 2):
        a.I("buffer_load_dword v41, v40, %s, %s offen%s" % (sr(SK, 4), sr(sT0), " nt" if OPT["ntkv"] else ""))
        a.I("s_add_u32 %s, %s, 8192" % (sr(sT0), sr(sT0)))
    a.L("L_NOPK")
def dma(voff, srd, soff, imm, flags=""):
    if OPT["noload"]:
        a.I("s_nop 0"); return
    a.I("buffer_load_dwordx4 %s, %s, %s offen offset:%d%s lds" % (vr(voff), sr(srd, 4), sr(soff), imm, flags))
def late_setup():
    a.I("v_lshl_add_u32 %s, v2, 8, %s" % (vr(vV), vr(T2)))
    a.I("v_mul_u32_u24 %s, 1152, v2" % vr(T1))
    a.I("v_add_u32 %s, %s, %s" % (vr(T1), vr(T1), vr(T2)))
    for i in range(4):
        a.I("v_add_u32 %s, %d, %s" % (vr(vWO[i]), i * 3584, vr(T1)))
    for i in range(4):
        a.I("v_add_u32 %s, %d, v2" % (vr(T1), 4 * i))
        a.I("v_xor_b32 %s, %s, v3" % (vr(T1), vr(T1)))
        a.I("v_lshlrev_b32 %s, 4, %s" % (vr(T1), vr(T1)))
        a.I("v_lshl_add_u32 %s, v2, 8, %s" % (vr(vK[i]), vr(T1)))
    a.I("v_lshrrev_b32 %s, 1, v1" % vr(T1))
    a.I("v_mul_u32_u24 %s, 1152, %s" % (vr(T1), vr(T1)))
    a.I("v_and_b32 %s, 1, v1" % vr(T2))
    a.I("v_lshl_add_u32 %s, %s, 4, %s" % (vr(T1), vr(T2), vr(T1)))
    for i in range(4):
        a.I("v_add_u32 %s, %d, %s" % (vr(vWOR[i]), i * 35840, vr(T1)))
    a.I("v_lshlrev_b32 %s, 4, v1" % vr(vLn))
    kv_srds()
    mk_srd(SOUT, pOUT, None, 589824)
    if OPT["rot"]:
        a.I("s_and_b32 %s, %s, 1" % (sr(sT0), sr(sJQ)))
        a.I("s_lshl_b32 %s, %s, 16" % (sr(sT0), sr(sT0)))
        a.I("s_add_u32 %s, %s, %s" % (sr(sA3), sr(sT0), sr(sLW8K)))
    else:
        a.I("s_mov_b32 %s, %s" % (sr(sA3), sr(sLW8K)))
    a.I("s_xor_b32 %s, %s, 0x10000" % (sr(sA4), sr(sA3)))
    a.I("v_mov_b32 %s, 0x%x" % (vr(vFLl), MISC))
    a.I("s_lshl_b32 %s, %s, 2" % (sr(sT0), sr(sL4)))
    a.I("s_add_u32 %s, %s, 0x%x" % (sr(sT0), sr(sT0), MISC + F_LAND))
    a.I("v_mov_b32 %s, %s" % (vr(vFLOl), sr(sT0)))
def init_setup():
    mk_srd(SWS, pWS, None, WS_SIZE)
    a.I("s_lshl_b32 %s, %s, 7" % (sr(sT0), sr(sB)))
    a.I("v_mov_b32 v38, %s" % sr(sT0))
    a.I("buffer_load_dword v39, v38, %s, 0 offen sc1" % sr(SWS, 4)); issued.append("EPOCH")
def issue(unit):
    a.C("issue " + unit)
    if unit[0] == "A":
        i = int(unit[1:])
        a.I("s_add_u32 %s, s7, %d" % (sr(sT0), i))
        a.I("s_cmp_ge_u32 %s, 9" % sr(sT0))
        a.I("s_cselect_b32 %s, 9, 0" % sr(sT1))
        a.I("s_sub_u32 %s, %s, %s" % (sr(sA2), sr(sT0), sr(sT1)))
        a.I("s_lshl_b32 %s, %s, 7" % (sr(sT0), sr(sA2)))
        a.I("s_lshr_b32 %s, %s, 1" % (sr(sT1), sr(sLW8K)))
        a.I("s_add_u32 m0, %s, %d" % (sr(sT1), ADDR["X%d" % i]))
        a.I("s_add_u32 %s, %s, %s" % (sr(sT0), sr(sT0), sr(sA0)))
        for j in range(2):
            if OPT["nox"]: continue
            dma(vX[j], SX, sT0, j * 1024, " nt" if OPT["ntx"] else ""); issued.append(unit)
        a.I("s_lshl_b32 %s, %s, 19" % (sr(sT0), sr(sA2)))
        a.I("s_add_u32 m0, %s, %d" % (sr(sLW8K), ADDR["W%d" % i]))
        a.I("s_add_u32 %s, %s, %s" % (sr(sT0), sr(sT0), sr(sA1)))
        for j in range(4):
            if OPT["now"]: continue
            dma(vW[j], SW, sT0, j * 1024, " nt" if OPT["ntw"] else ""); issued.append(unit)
    elif unit.startswith("OI"):
        n = int(unit[2:])
        a.I("s_add_u32 m0, %s, %d" % (sr(sLW8K), IMG_ADDR[n]))
        a.I("s_nop 0")
        for j in range(4):
            dma(vLn, SWS, [sA1, sA3, sA4][n - 1], j * 1024, " sc0 sc1"); issued.append(unit)
    elif unit == "PF":
        if OPT["pfwo"]:
            a.I("s_lshl_b32 %s, %s, 2" % (sr(sT0), sr(sB)))
            a.I("s_add_u32 %s, %s, %s" % (sr(sT0), sr(sT0), sr(sJQ)))
            a.I("s_lshl_b32 %s, %s, 2" % (sr(sT0), sr(sT0)))
            a.I("s_add_u32 %s, %s, %s" % (sr(sT0), sr(sT0), sr(sL4)))
            a.I("s_mul_i32 %s, %s, %d" % (sr(sT0), sr(sT0), 36 * 128))
            a.I("v_lshlrev_b32 v40, 7, v1")
            a.I("s_mov_b32 exec_lo, -1"); a.I("s_mov_b32 exec_hi, 0xf")
            a.I("buffer_load_dword v41, v40, %s, %s offen%s" % (sr(SWO, 4), sr(sT0), " nt" if OPT["ntpf"] else "")); issued.append(unit)
            a.I("s_mov_b64 exec, -1")
    elif unit == "WOR":
        a.I("s_add_u32 %s, %s, %s" % (sr(sT0), sr(sL4), sr(sJQ)))
        a.I("s_and_b32 %s, %s, 3" % (sr(sT0), sr(sT0)))
        a.I("s_mul_i32 %s, %s, %d" % (sr(sT0), sr(sT0), 128 * 1152))
        a.I("s_lshl_b32 %s, %s, 5" % (sr(sT1), sr(sJQ)))
        a.I("s_add_u32 %s, %s, %s" % (sr(sT0), sr(sT0), sr(sT1)))
        a.I("s_add_u32 m0, %s, %d" % (sr(sLW8K), ADDR["WOR"]))
        a.I("s_add_u32 %s, %s, 1024" % (sr(sT0), sr(sT0)))
        for j in range(4):
            dma(vWOR[j], SWO, sT0, j * 1024, " nt" if OPT["ntwo"] else ""); issued.append(unit)
    elif unit[0:2] == "WO":
        u = int(unit[2:])
        a.I("s_lshl_b32 %s, %s, 1" % (sr(sT0), sr(sJQ)))
        a.I("s_add_u32 %s, %s, %d" % (sr(sT0), sr(sT0), u))
        a.I("s_and_b32 %s, %s, 7" % (sr(sT0), sr(sT0)))
        a.I("s_mul_i32 %s, %s, 73728" % (sr(sT0), sr(sT0)))
        a.I("s_add_u32 %s, %s, %s" % (sr(sT0), sr(sT0), sr(sA0)))
        a.I("s_lshl_b32 %s, %s, 8" % (sr(sT1), sr(sJQ)))
        a.I("s_add_u32 m0, %s, %d" % (sr(sLW8K), ADDR[unit]))
        a.I("s_add_u32 %s, %s, %s" % (sr(sT0), sr(sT0), sr(sT1)))
        for j in range(4):
            dma(vWO[j], SWO, sT0, j * 1024, " nt" if OPT["ntwo"] else ""); issued.append(unit)
    elif unit[0] in "KV":
        t = int(unit[1:])
        base = sA3 if t < 4 else sA4
        a.I("s_add_u32 m0, %s, %d" % (sr(sLW8K), ADDR[unit]))
        a.I("s_add_u32 %s, %s, %d" % (sr(sT0), sr(base), (t & 3) * 16384))
        for j in range(4):
            if unit[0] == "K": dma(vK[j], SK, sT0, j * 1024, " nt" if OPT["ntkv"] else "")
            else: dma(vV, SV, sT0, j * 1024, " nt" if OPT["ntkv"] else "")
            issued.append(unit)
    else:
        raise Exception(unit)
def publish(count):
    if count <= published[0]: return
    names = set(n for n, _ in units[:count])
    idxs = [i for i, t in enumerate(issued) if t in names]
    if idxs:
        n = len(issued) - 1 - max(idxs)
        a.I("s_waitcnt vmcnt(%d)" % min(n, 63))
    a.I("v_mov_b32 %s, %d" % (vr(vFTl), count))
    a.I("s_mov_b64 exec, 1")
    a.I("ds_max_u32 %s, %s" % (vr(vFLOl), vr(vFTl)))
    a.I("s_mov_b64 exec, -1")
    published[0] = count
def lstamp(i):
    if OPT["sel"] and units[i][0] not in ("A1", "A8", "K3", "K7", "V3", "V7", "WO3", "WO7"): return
    if OPT["stamps"] == 2:
        a.I("s_memrealtime s[90:91]"); a.I("s_waitcnt lgkmcnt(0)"); a.I("v_writelane_b32 v100, s90, %d" % i)
LOOK = OPT["look"]
proven = 0
for ui, (unit, need) in enumerate(units):
    if ui == 1:
        if OPT["pfa"] == 3:
            a.I("s_mov_b32 exec_lo, -1"); a.I("s_mov_b32 exec_hi, 0xf")
            a.I("buffer_load_dword v41, v40, %s, %s offen%s" % (sr(SX, 4), sr(sI2), " nt" if OPT["ntpf"] else "")); issued.append("PFX")
            a.I("s_mov_b64 exec, -1")
        a.I("v_mov_b32 %s, 0x%x" % (vr(vFLl), MISC))
        a.I("s_lshl_b32 %s, %s, 2" % (sr(sT0), sr(sL4)))
        a.I("s_add_u32 %s, %s, 0x%x" % (sr(sT0), sr(sT0), MISC + F_LAND))
        a.I("v_mov_b32 %s, %s" % (vr(vFLOl), sr(sT0)))
        a.I("s_waitcnt lgkmcnt(0)")
        a.I("s_barrier")
    if ui == 2:
        init_setup(); late_setup()

    if need > proven:
        save_pub = published[0]
        ok = newlbl("OK"); sp = newlbl("SP")
        a.I("s_cmp_ge_u32 %s, %d" % (sr(sKNOW), need))
        a.I("s_cbranch_scc1 %s" % ok)
        a.L(sp)
        a.I("ds_read_b128 %s, %s offset:%d" % (vr(vFTl, 4), vr(vFLl), F_PROG))
        a.I("s_waitcnt lgkmcnt(0)")
        a.I("v_min3_u32 %s, %s, %s, %s" % (vr(vFTl), vr(vFTl), vr(vFTl + 1), vr(vFTl + 2)))
        a.I("v_min_u32 %s, %s, %s" % (vr(vFTl), vr(vFTl), vr(vFTl + 3)))
        a.I("s_nop 0")
        a.I("v_readfirstlane_b32 %s, %s" % (sr(sKNOW), vr(vFTl)))
        a.I("s_add_i32 %s, %s, -1" % (sr(sBUD), sr(sBUD)))
        a.I("s_cmp_lt_i32 %s, 0" % sr(sBUD))
        a.I("s_cbranch_scc1 %s" % ok)
        a.I("s_cmp_ge_u32 %s, %d" % (sr(sKNOW), need))
        a.I("s_cbranch_scc1 %s" % ok)
        if OPT["lsleep"]: a.I("s_sleep %d" % OPT["lsleep"])
        a.I("s_branch %s" % sp)
        a.L(ok)
        proven = need
    if unit.startswith("OI") and OPT["lonly"]: continue
    if unit.startswith("OI"):
        n = int(unit[2:])
        lp = "L_POLL%d" % n
        if n == 1:
            publish(ui)
            a.I("s_mov_b32 %s, 0" % sr(sT3))
        else:
            a.I("s_and_b32 %s, %s, 0x%x" % (sr(sT0), sr(sA2), 0xF << (4 * (n - 1))))
            a.I("s_cbranch_scc0 %s_X" % lp)
            a.I("s_waitcnt vmcnt(0)")
            a.I("v_mov_b32 %s, %d" % (vr(vFTl), ui))
            a.I("s_mov_b64 exec, 1")
            a.I("ds_max_u32 %s, %s" % (vr(vFLOl), vr(vFTl)))
            a.I("s_mov_b64 exec, -1")
        a.L(lp)
        a.I("s_mov_b64 exec, 0xfff")
        a.I("buffer_load_dword v42, v43, %s, 0 offen sc0 sc1" % sr(SWS, 4))
        a.I("s_waitcnt vmcnt(0)")
        a.I("v_cmp_ne_u32 vcc, %s, v42" % sr(sTAG))
        a.I("s_mov_b64 exec, -1")
        a.I("s_add_u32 %s, %s, 1" % (sr(sT3), sr(sT3)))
        a.I("s_mov_b32 %s, vcc_lo" % sr(sA2))
        a.I("s_cmp_gt_u32 %s, 40000" % sr(sT3))
        a.I("s_cbranch_scc1 %s_X" % lp)
        a.I("s_and_b32 %s, %s, 0x%x" % (sr(sT0), sr(sA2), 0xF << (4 * (n - 1))))
        a.I("s_cbranch_scc1 %s" % lp)
        a.L(lp + "_X")
    if ui >= 1: a.I("ds_read_b128 %s, %s offset:%d" % (vr(vFTl + 4, 4), vr(vFLl), F_PROG))
    issue(unit)
    pub_emitted = [False]
    lk = 1 if (OPT["tail1"] and (unit.startswith("OI") or unit in ("WO7", "K0", "V0", "PF"))) else LOOK
    if ui - lk + 1 > 0:
        before = published[0]
        publish(ui - lk + 1)
        pub_emitted[0] = published[0] != before
    if ui >= 1:
        LS_ = {"A1": 1, "A5": 2, "K0": 3, "K4": 4, "V0": 5, "V4": 6, "WOR": 7, "WO6": 8}
        if OPT["stamps"] == 1 and unit in LS_:
            a.I("s_memrealtime %s" % sr(sSTAMP + 2 * LS_[unit], 2))
            a.I("s_waitcnt lgkmcnt(0)")
        else:
            a.I("s_waitcnt lgkmcnt(%d)" % (1 if (ui - LOOK + 1 > 0 and pub_emitted[0]) else 0))
        a.I("v_min3_u32 %s, %s, %s, %s" % (vr(vFTl + 4), vr(vFTl + 4), vr(vFTl + 5), vr(vFTl + 6)))
        a.I("v_min_u32 %s, %s, %s" % (vr(vFTl + 4), vr(vFTl + 4), vr(vFTl + 7)))
        a.I("s_nop 0")
        a.I("v_readfirstlane_b32 %s, %s" % (sr(sKNOW), vr(vFTl + 4)))
    lstamp(ui)
    if unit == "V0":
        a.I("v_readfirstlane_b32 %s, v39" % sr(sTAG))
        a.I("s_nop 0")
        a.I("s_add_u32 %s, %s, 1" % (sr(sTAG), sr(sTAG)))
    if unit == "V7":
        a.I("v_lshrrev_b32 v43, 2, v1")
        a.I("v_add_u32 v43, %s, v43" % sr(sJQ))
        a.I("v_add_u32 v43, 1, v43")
        a.I("v_and_b32 v43, 3, v43")
        a.I("v_lshlrev_b32 v43, 3, v43")
        a.I("s_andn2_b32 %s, %s, 0x18" % (sr(sT1), sr(sID)))
        a.I("v_or_b32 v43, %s, v43" % sr(sT1))
        a.I("v_lshlrev_b32 v43, 7, v43")
        a.I("v_and_b32 v44, 3, v1")
        a.I("v_lshl_add_u32 v43, v44, 2, v43")
        a.I("v_add_u32 v43, 0x%x, v43" % WS_FLAG1)
        for n in range(1, 4):
            a.I("s_add_u32 %s, %s, %d" % (sr(sT0), sr(sJQ), n))
            a.I("s_and_b32 %s, %s, 3" % (sr(sT0), sr(sT0)))
            a.I("s_lshl_b32 %s, %s, 3" % (sr(sT0), sr(sT0)))
            a.I("s_andn2_b32 %s, %s, 0x18" % (sr(sT1), sr(sID)))
            a.I("s_or_b32 %s, %s, %s" % (sr(sT0), sr(sT0), sr(sT1)))
            a.I("s_mul_i32 %s, %s, %d" % (sr(sT0), sr(sT0), IMG_BYTES))
            a.I("s_add_u32 %s, %s, %s" % (sr(sT0), sr(sT0), sr(sLW8K)))
            a.I("s_add_u32 %s, %s, 0x%x" % (sr([sA1, sA3, sA4][n - 1]), sr(sT0), WS_IMG))
publish(len(units))
if OPT["stamps"] == 2:
    a.I("v_writelane_b32 v100, %s, 63" % sr(sSTAMP))
    a.I("s_lshl_b32 %s, %s, 2" % (sr(sT0), sr(sID)))
    a.I("s_add_u32 %s, %s, %s" % (sr(sT0), sr(sT0), sr(sLW)))
    a.I("s_lshl_b32 %s, %s, 8" % (sr(sT0), sr(sT0)))
    a.I("s_add_u32 %s, %s, 0x%x" % (sr(sT0), sr(sT0), WS_STAMP + 0x100000))
    a.I("v_lshlrev_b32 v103, 2, v1")
    a.I("buffer_store_dword v100, v103, %s, %s offen" % (sr(SWS, 4), sr(sT0)))
if OPT["lonly"]:
    a.I("s_waitcnt vmcnt(0)")
    a.I("s_endpgm")
a.I("s_branch L_FINAL")
loader_lines = a.lines

a = Asm()
a.L("L_FINAL")
a.I("s_cmp_ge_u32 %s, 7" % sr(sWAVE))
a.I("s_cbranch_scc1 L_FIN_SKIP")
sP, sW, sG = sA1, sA2, sA3
a.I("s_mul_i32 %s, %s, 3" % (sr(sP), sr(sKS)))
a.I("s_add_u32 %s, %s, %s" % (sr(sP), sr(sP), sr(sLW)))
a.I("s_mul_i32 %s, %s, 43" % (sr(sW), sr(sP)))
a.I("s_lshr_b32 %s, %s, 8" % (sr(sW), sr(sW)))
a.I("s_mul_i32 %s, %s, 6" % (sr(sT0), sr(sW)))
a.I("s_sub_u32 %s, %s, %s" % (sr(sG), sr(sP), sr(sT0)))
a.I("s_mul_i32 %s, %s, 6144" % (sr(sT0), sr(sW)))
a.I("s_lshl_b32 %s, %s, 10" % (sr(sT1), sr(sG)))
a.I("s_add_u32 %s, %s, %s" % (sr(sT0), sr(sT0), sr(sT1)))
a.I("s_andn2_b32 %s, %s, 7" % (sr(sT1), sr(sID)))
a.I("s_mul_i32 %s, %s, %d" % (sr(sT1), sr(sT1), SLAB_BYTES))
a.I("s_add_u32 %s, %s, %s" % (sr(sT1), sr(sT1), sr(sT0)))
a.I("s_add_u32 %s, %s, 0x%x" % (sr(sA0), sr(sT1), WS_SLAB))
a.I("v_lshlrev_b32 v5, 4, v1")
a.I("s_mov_b32 %s, 0" % sr(sT3))
if OPT["finwait"]:
    a.L("L_FW")
    a.I("ds_read_b128 v[104:107], v24 offset:%d" % F_PROG)
    a.I("s_waitcnt lgkmcnt(0)")
    a.I("v_min3_u32 v104, v104, v105, v106")
    a.I("v_min_u32 v104, v104, v107")
    a.I("s_nop 0")
    a.I("v_readfirstlane_b32 %s, v104" % sr(sKNOW))
    a.I("s_add_i32 %s, %s, -1" % (sr(sBUD), sr(sBUD)))
    a.I("s_cmp_lt_i32 %s, 0" % sr(sBUD))
    a.I("s_cbranch_scc1 L_FW_X")
    a.I("s_cmp_ge_u32 %s, %d" % (sr(sKNOW), STEP["PE"] + 1))
    a.I("s_cbranch_scc1 L_FW_X")
    a.I("s_sleep 1")
    a.I("s_branch L_FW")
    a.L("L_FW_X")
def fin_loads():
    a.I("s_mov_b32 %s, %s" % (sr(sT1), sr(sA0)))
    for k in range(8):
        a.I("buffer_load_dwordx4 %s, v5, %s, %s offen sc0 sc1" % (vr(32 + 4 * k, 4), sr(SWS, 4), sr(sT1)))
        if k < 7: a.I("s_add_u32 %s, %s, %d" % (sr(sT1), sr(sT1), SLAB_BYTES))
fin_loads()
a.I("v_and_b32 v6, 31, v1")
a.I("v_mul_u32_u24 v6, 1152, v6")
a.I("v_lshrrev_b32 v7, 5, v1")
a.I("v_lshl_add_u32 v6, v7, 3, v6")
a.I("v_and_b32 v7, 15, v1")
a.I("v_mul_u32_u24 v7, 1152, v7")
a.I("v_lshrrev_b32 v8, 4, v1")
a.I("v_lshl_add_u32 v7, v8, 3, v7")
sO = [8, 9, 10]; sR = [12, 13, 14]
for i in range(3):
    a.I("s_mul_i32 %s, %s, 3" % (sr(sT0), sr(sG)))
    a.I("s_add_u32 %s, %s, %d" % (sr(sT0), sr(sT0), i))
    a.I("s_bfe_u32 %s, %s, 0x20001" % (sr(sT1), sr(sT0)))
    a.I("s_lshl_b32 %s, %s, 3" % (sr(sT1), sr(sT1)))
    a.I("s_and_b32 %s, %s, 1" % (sr(sT2), sr(sT0)))
    a.I("s_lshl_b32 %s, %s, 1" % (sr(sT2), sr(sT2)))
    a.I("s_add_u32 %s, %s, %s" % (sr(sT1), sr(sT1), sr(sT2)))
    a.I("s_lshl_b32 %s, %s, 5" % (sr(sT2), sr(sW)))
    a.I("s_add_u32 %s, %s, %s" % (sr(sT1), sr(sT1), sr(sT2)))
    a.I("s_lshl_b32 %s, %s, 7" % (sr(sT2), sr(sJQ)))
    a.I("s_add_u32 %s, %s, %s" % (sr(sT1), sr(sT1), sr(sT2)))
    a.I("s_lshr_b32 %s, %s, 3" % (sr(sT2), sr(sT0)))
    a.I("s_and_b32 %s, %s, 1" % (sr(sT2), sr(sT2)))
    a.I("s_lshl_b32 %s, %s, 5" % (sr(sT2), sr(sT2)))
    a.I("s_lshl_b32 %s, %s, 6" % (sr(sO[i]), sr(sB)))
    a.I("s_add_u32 %s, %s, %s" % (sr(sT2), sr(sT2), sr(sO[i])))
    a.I("s_mul_i32 %s, %s, 1152" % (sr(sT2), sr(sT2)))
    a.I("s_lshl_b32 %s, %s, 1" % (sr(sT1), sr(sT1)))
    a.I("s_add_u32 %s, %s, %s" % (sr(sO[i]), sr(sT1), sr(sT2)))
    a.I("s_sub_u32 %s, %s, 16" % (sr(sT1), sr(sT0)))
    a.I("s_lshl_b32 %s, %s, 1" % (sr(sT1), sr(sT1)))
    a.I("s_lshl_b32 %s, %s, 4" % (sr(sT2), sr(sJQ)))
    a.I("s_add_u32 %s, %s, %s" % (sr(sT1), sr(sT1), sr(sT2)))
    a.I("s_add_u32 %s, %s, 512" % (sr(sT1), sr(sT1)))
    a.I("s_lshl_b32 %s, %s, 1" % (sr(sT1), sr(sT1)))
    a.I("s_lshl_b32 %s, %s, 4" % (sr(sT2), sr(sW)))
    a.I("s_lshl_b32 %s, %s, 6" % (sr(sR[i]), sr(sB)))
    a.I("s_add_u32 %s, %s, %s" % (sr(sT2), sr(sT2), sr(sR[i])))
    a.I("s_mul_i32 %s, %s, 1152" % (sr(sT2), sr(sT2)))
    a.I("s_add_u32 %s, %s, %s" % (sr(sT1), sr(sT1), sr(sT2)))
    a.I("s_cmp_ge_u32 %s, 16" % sr(sT0))
    a.I("s_cselect_b32 %s, %s, %s" % (sr(sO[i]), sr(sT1), sr(sO[i])))
    a.I("s_cselect_b32 %s, 1, 0" % sr(sR[i]))
a.I("s_branch L_FIN_CHK")
a.L("L_FIN_RETRY")
fin_loads()
a.L("L_FIN_CHK")
a.I("s_waitcnt vmcnt(0)")
a.I("v_xor_b32 v12, %s, v35" % sr(sTAG))
for k in range(1, 8):
    a.I("v_xor_b32 v13, %s, v%d" % (sr(sTAG), 35 + 4 * k))
    a.I("v_or_b32 v12, v13, v12")
a.I("v_cmp_ne_u32 vcc, 0, v12")
a.I("s_add_u32 %s, %s, 1" % (sr(sT3), sr(sT3)))
a.I("s_cmp_gt_u32 %s, 40000" % sr(sT3))
a.I("s_cbranch_scc1 L_FIN_GO")
a.I("s_cbranch_vccnz L_FIN_RETRY")
a.L("L_FIN_GO")
for i in range(3):
    acc = 64 + 2 * i
    for k in range(8):
        r = 32 + 4 * k + i
        if k == 0:
            a.I("v_lshlrev_b32 v%d, 16, v%d" % (acc, r))
            a.I("v_and_b32 v%d, 0xffff0000, v%d" % (acc + 1, r))
        else:
            t = 72 + 2 * ((k + i) % 3)
            a.I("v_lshlrev_b32 v%d, 16, v%d" % (t, r))
            a.I("v_and_b32 v%d, 0xffff0000, v%d" % (t + 1, r))
            a.I("v_pk_add_f32 v[%d:%d], v[%d:%d], v[%d:%d]" % (acc, acc + 1, acc, acc + 1, t, t + 1))
    a.I("v_cvt_pk_bf16_f32 v%d, v%d, v%d" % (80 + i, acc, acc + 1))
    a.I("s_cmp_eq_u32 %s, 1" % sr(sR[i]))
    a.I("s_cselect_b64 vcc, -1, 0")
    a.I("v_cndmask_b32 v%d, v6, v7, vcc" % (84 + i))
    a.I("buffer_store_dword v%d, v%d, %s, %s offen%s" % (80 + i, 84 + i, sr(SOUT, 4), sr(sO[i]), ["", " sc0 sc1", " nt"][OPT["outsc"]]))
a.I("s_and_b32 %s, %s, 31" % (sr(sT0), sr(sID)))
a.I("s_cmp_eq_u32 %s, 0" % sr(sT0))
a.I("s_cbranch_scc0 L_FIN_SKIP")
a.I("s_cmp_eq_u32 %s, 4" % sr(sWAVE))
a.I("s_cbranch_scc0 L_FIN_SKIP")
a.I("s_lshl_b32 %s, %s, 7" % (sr(sT0), sr(sB)))
a.I("v_mov_b32 v4, %s" % sr(sTAG))
a.I("v_mov_b32 v5, 0")
a.I("s_mov_b64 exec, 1")
a.I("buffer_store_dword v4, v5, %s, %s offen sc0 sc1" % (sr(SWS, 4), sr(sT0)))
a.I("s_mov_b64 exec, -1")
a.L("L_FIN_SKIP")
a.L("L_CEND")
if OPT["stamps"] == 4:
    a.I("s_cmp_lt_u32 %s, 4" % sr(sWAVE))
    a.I("s_cbranch_scc0 L_NOCST")
    a.I("s_waitcnt lgkmcnt(0)")
    for i in range(len(CST)):
        a.I("v_writelane_b32 v100, %s, %d" % (sr(CPAIRS[i]), i))
    a.I("s_lshl_b32 %s, %s, 2" % (sr(sT0), sr(sID)))
    a.I("s_add_u32 %s, %s, %s" % (sr(sT0), sr(sT0), sr(sWAVE)))
    a.I("s_lshl_b32 %s, %s, 8" % (sr(sT0), sr(sT0)))
    a.I("s_add_u32 %s, %s, 0x%x" % (sr(sT0), sr(sT0), WS_STAMP + 0x200000))
    a.I("v_lshlrev_b32 v103, 2, v1")
    a.I("buffer_store_dword v100, v103, %s, %s offen" % (sr(SWS, 4), sr(sT0)))
    a.L("L_NOCST")
if OPT["stamps"]:
    a.I("s_memrealtime %s" % sr(sSTAMP + 2 * 9, 2))
    a.I("s_waitcnt lgkmcnt(0) vmcnt(0)")
    a.I("s_lshl_b32 %s, %s, 3" % (sr(sT0), sr(sID)))
    a.I("s_add_u32 %s, %s, %s" % (sr(sT0), sr(sT0), sr(sWAVE)))
    a.I("s_lshl_b32 %s, %s, 6" % (sr(sT0), sr(sT0)))
    a.I("s_add_u32 %s, %s, 0x%x" % (sr(sT0), sr(sT0), WS_STAMP))
    a.I("v_mov_b32 v5, 0")
    a.I("s_mov_b64 exec, 1")
    for i in range(10):
        a.I("v_mov_b32 v4, %s" % sr(sSTAMP + 2 * i))
        a.I("buffer_store_dword v4, v5, %s, %s offen offset:%d" % (sr(SWS, 4), sr(sT0), i * 4))
    a.I("s_waitcnt vmcnt(0)")
a.L("L_END")
a.I("s_endpgm")
final_lines = a.lines

tail = """
.section .rodata,"a"
.p2align 6
.amdhsa_kernel %s
  .amdhsa_next_free_vgpr 256
  .amdhsa_next_free_sgpr 96
  .amdhsa_accum_offset 256
  .amdhsa_group_segment_fixed_size 0
  .amdhsa_kernarg_size 64
  .amdhsa_user_sgpr_count 2
  .amdhsa_user_sgpr_kernarg_segment_ptr 1
  .amdhsa_system_sgpr_workgroup_id_x 1
.end_amdhsa_kernel
""" % KNAME

probs = []
for nm, ls in (("compute", entry_lines + compute_lines + final_lines), ("loader", entry_lines + loader_lines + final_lines)):
    probs += check_hazards(ls, nm)
    probs += check_hazards([l for l in ls if ";slow" not in l], nm + "-fast")
for p in sorted(set(probs)): print("HAZARD", p)
out = "\n".join(hdr + entry_lines + loader_lines + compute_lines + final_lines) + "\n" + tail
if OPT["scx"] == 0: out = out.replace(" sc0 sc1", " sc1")
open(sys.argv[1], "w").write(out)
open(sys.argv[1] + ".bar", "w").write(",".join(n for n, _ in units))
open(sys.argv[1] + ".cst", "w").write(",".join(CST))
print("units", [(n, x) for n, x in units], "lines", out.count("\n"))
```

```python
import sys, struct
from asmlib import *

KNAME = "standalone__gqa_block_cached__near_ridge_kernel"
OPT = dict(dump=0, stamps=0, ntkv=1, ntw=0, ntx=0, ntwo=0, rot=1, tlb=1, pfwo=1, prio=1, lsleep=1, look=2, pk=1, pfa=0, dga=3, initat=4, nowait=0, noload=0, lonly=0, sel=0, spread=1, ntpf=1, pfat=0, nox=0, now=0, scx=0, light=1, dgp=2, finwait=1, oiord=1, tail1=1, outsc=0, lateflag=1, codepf=0, ktrot=0, e1plain=0, kearly=0, kpos=7)
for a_ in sys.argv[2:]:
    k, v = a_.split("="); OPT[k] = int(v)

WS_EPOCH = 0x0
WS_FLAG1 = 0x1000
WS_IMG   = 0x100000
WS_SLAB  = 0x800000
SLAB_BYTES = 24576
IMG_BYTES = 16384
WS_DUMP  = 0x2000000
WS_STAMP = 0x1800000
WS_SIZE  = 0x10000000

SX, SW, SK, SV, SWO, SWS, SOUT = 8, 12, 16, 20, 24, 28, 32
KARG = 36
sKS, sJQ, sB, sH, sWAVE, sLW, sTAG, sID = 52, 53, 54, 55, 56, 57, 58, 59
sT0, sT1, sT2, sT3 = 60, 61, 62, 63
sC = 64
sLW8K = 66
sA0, sA1, sA2, sA3, sA4 = 67, 68, 69, 70, 71
sSTAMP = 72
sKNOW = 92
sBUD = 93
sKNOW2 = 94
sI0, sI1, sI2 = 4, 5, 6

SLOT = lambda i: i * 16384
XB = 131072
MISC = 155648
F_LAND, F_PROG, F_QX, F_MX, F_OR, F_IMG, F_PX = 0, 16, 32, 48, 64, 80, 96
MXD = 1024; LD = 2048
LDS_BYTES = 163840
def f32bits(x): return struct.unpack("<I", struct.pack("<f", x))[0]
SCALE = (128 ** -0.5) * 1.4426950408889634

STEP = {}
for i in range(9): STEP["A%d" % i] = i
STEP["QS"] = 9
for t in range(8): STEP["K%d" % t] = 10 + t
for t in range(8): STEP["V%d" % t] = 18 + t
STEP["ORS"] = 26
for u in range(8): STEP["P%d" % u] = 27 + u
STEP["PE"] = 35
ADDR = {}; SIZE = {}
XG = [XB, XB + 8192, XB + 16384, SLOT(7), SLOT(7) + 8192, SLOT(6)]
for i in range(9):
    ADDR["W%d" % i] = SLOT(i % 6); ADDR["X%d" % i] = XG[i % 6]
for t, s_ in enumerate([3, 4, 7, 5, 6, 0, 2]): ADDR["K%d" % t] = SLOT(s_)
ADDR["K7"] = XB
ADDR["QS"] = SLOT(1)
for t, s_ in enumerate([1, 3, 4, 7, 5, 6, 0, 2]): ADDR["V%d" % t] = SLOT(s_)
for u, s_ in enumerate([1, 3, 4, 0, 1, 3, 7, 4]): ADDR["WO%d" % u] = SLOT(s_)
ADDR["WOR"] = XB
ADDR["ORS"] = SLOT(5)
IMG_ADDR = [SLOT(7), SLOT(2), SLOT(5), SLOT(6)]
alloc = []
def A_(name, addr, size, step): alloc.append((name, addr, size, step))
def need_of(addr, size, upto):
    n = 0
    for (nm, a0, s0, st) in alloc[:upto]:
        if a0 < addr + size and addr < a0 + s0: n = max(n, st + 1)
    return n
NEED = {}
def place(name, addr, size, step):
    NEED[name] = need_of(addr, size, len(alloc)); A_(name, addr, size, step)
for i in range(9):
    place("X%d" % i, ADDR["X%d" % i], 8192, STEP["A%d" % i]); place("W%d" % i, ADDR["W%d" % i], 16384, STEP["A%d" % i])
place("QS", ADDR["QS"], 16384, STEP["QS"])
for t in range(8): place("K%d" % t, ADDR["K%d" % t], 16384, STEP["K%d" % t])
for t in range(8): place("V%d" % t, ADDR["V%d" % t], 16384, STEP["V%d" % t])
place("WOR", ADDR["WOR"], 16384, STEP["P7"])
for u in range(4): place("WO%d" % u, ADDR["WO%d" % u], 16384, STEP["P%d" % u])
place("ORS", ADDR["ORS"], 32768, STEP["ORS"])
place("OI0", IMG_ADDR[0], 16384, STEP["P1"])
for n in range(1, 4): place("OI%d" % n, IMG_ADDR[n], 16384, STEP["P%d" % (2 * n + 1)])
for u in range(4, 8): place("WO%d" % u, ADDR["WO%d" % u], 16384, STEP["P%d" % u])
STEPNAME = {v: k for k, v in STEP.items()}
units = []
for i in range(9): units.append(("A%d" % i, max(NEED["X%d" % i], NEED["W%d" % i])))
for t in range(8): units.append(("K%d" % t, NEED["K%d" % t]))
if OPT["kearly"]:
    ks_ = [u for u in units if u[0] in ["K%d" % t for t in range(OPT["kearly"])]]
    units = [u for u in units if u not in ks_]
    pos = [n for n, _ in units].index("A%d" % OPT["kpos"])
    units = units[:pos] + ks_ + units[pos:]
for t in range(8): units.append(("V%d" % t, NEED["V%d" % t]))
if OPT["pfat"] == 0: units.append(("PF", 0))
else: units.insert(9, ("PF", 0))
units.append(("WOR", NEED["WOR"]))
if OPT["oiord"] == 0:
    for u in range(4): units.append(("WO%d" % u, NEED["WO%d" % u]))
    for n in range(1, 4): units.append(("OI%d" % n, NEED["OI%d" % n]))
    for u in range(4, 8): units.append(("WO%d" % u, NEED["WO%d" % u]))
else:
    for u in range(7): units.append(("WO%d" % u, NEED["WO%d" % u]))
    for n in range(1, 4): units.append(("OI%d" % n, NEED["OI%d" % n]))
    units.append(("WO7", NEED["WO7"]))
UIDX = {n: i for i, (n, _) in enumerate(units)}

hdr = ["; Fused GQA block (Q projection + attention + output projection) for gfx950, generated by a hand-written generator.",
       "; 256 workgroups (one per CU), WG id -> ks = id&7, jq = (id>>3)&3, b = id>>5, head h = 4*ks + jq.",
       "; 8 waves: waves 0-3 compute (MFMA / softmax), waves 4-7 stream tiles into LDS with LDS-DMA (one FIFO, LDS flags).",
       ";   A: Q^T = wq_h^T x_b^T ; K: S^T = K Q^T ; softmax with the true (per key-half) max, halves merged exactly;",
       ";   V: O^T = V^T P^T ; O images (bf16) exchanged between the 4 heads of a k-slice through d_ws (epoch-tagged flags);",
       ";   P: partial out^T over the 512-wide k-slice ; partials exchanged (tagged granules) and summed by 8 reducers.",
       "; d_ws word b*128 holds a per-batch epoch that only tells this launch's hand-offs from earlier ones.",
       "; @launch grid=(256,1,1) block=(512,1,1) lds=%d" % LDS_BYTES,
       '.amdgcn_target "amdgcn-amd-amdhsa--gfx950"', ".text", ".globl %s" % KNAME, ".p2align 8",
       ".type %s,@function" % KNAME, "%s:" % KNAME]

a = Asm()
lbl = [0]
def newlbl(p):
    lbl[0] += 1; return "L_%s%d" % (p, lbl[0])
def stamp(idx):
    if OPT["stamps"] == 4 and idx >= 1: return
    if OPT["stamps"] == 3 and 1 <= idx <= 8:
        a.I("s_mov_b32 %s, %s" % (sr(sSTAMP + 2 * idx), sr(sBUD)))
    elif OPT["stamps"]:
        a.I("s_memrealtime %s" % sr(sSTAMP + 2 * idx, 2))
        a.I("s_waitcnt lgkmcnt(0)")

CST = []
CPAIRS = list(range(8, 28, 2)) + list(range(36, 52, 2)) + list(range(74, 92, 2))
def cst(name):
    if OPT["stamps"] == 4 and len(CST) < len(CPAIRS):
        a.I("s_memtime %s" % sr(CPAIRS[len(CST)], 2)); CST.append(name)
def spin(known, need, rd, nvals, vt, pre=None):
    ok = newlbl("OK"); sp = newlbl("SP")
    a.I("s_cmp_ge_u32 %s, %d" % (sr(known), need))
    a.I("s_cbranch_scc1 %s" % ok)
    n0 = len(a.lines)
    a.L(sp)
    a.I(rd)
    a.I("s_waitcnt lgkmcnt(0)")
    if nvals == 4:
        a.I("v_min3_u32 %s, %s, %s, %s" % (vr(vt), vr(vt), vr(vt + 1), vr(vt + 2)))
        a.I("v_min_u32 %s, %s, %s" % (vr(vt), vr(vt), vr(vt + 3)))
        a.I("s_nop 0")
    a.I("v_readfirstlane_b32 %s, %s" % (sr(known), vr(vt)))
    a.I("s_add_i32 %s, %s, -1" % (sr(sBUD), sr(sBUD)))
    a.I("s_cmp_lt_i32 %s, 0" % sr(sBUD))
    a.I("s_cbranch_scc1 %s" % ok)
    a.I("s_cmp_ge_u32 %s, %d" % (sr(known), need))
    a.I("s_cbranch_scc0 %s" % sp)
    for i in range(n0, len(a.lines)): a.lines[i] += " ;slow"
    a.L(ok)

a.I("s_cmp_ge_u32 s2, 256")
a.I("s_cbranch_scc1 L_END")
a.I("s_load_dwordx16 %s, s[0:1], 0" % sr(KARG, 16))
if OPT["stamps"]:
    a.I("s_memrealtime %s" % sr(sSTAMP, 2))
a.I("v_lshrrev_b32 v2, 6, v0")
a.I("v_and_b32 v1, 63, v0")
a.I("s_mov_b32 %s, s2" % sr(sID))
a.I("v_readfirstlane_b32 %s, v2" % sr(sWAVE))
a.I("s_and_b32 %s, s2, 7" % sr(sKS))
a.I("s_lshr_b32 %s, s2, 3" % sr(sJQ))
a.I("s_and_b32 %s, %s, 3" % (sr(sJQ), sr(sJQ)))
a.I("s_lshr_b32 %s, s2, 5" % sr(sB))
a.I("s_lshl_b32 %s, %s, 2" % (sr(sH), sr(sKS)))
a.I("s_add_u32 %s, %s, %s" % (sr(sH), sr(sH), sr(sJQ)))
a.I("v_lshrrev_b32 v2, 4, v1")
a.I("v_and_b32 v3, 15, v1")
a.I("s_mov_b32 %s, 0" % sr(sKNOW))
a.I("s_mov_b32 %s, 0" % sr(sKNOW2))
a.I("s_mov_b32 %s, 0x80000" % sr(sBUD))
a.I("s_cmp_lt_u32 %s, 4" % sr(sWAVE))
a.I("s_cbranch_scc1 L_COMPUTE")
entry_lines = a.lines

pX, pK, pV, pWQ, pWO, pOUT, pDBG, pWS = [KARG + 2 * i for i in range(8)]
def mk_srd(d, p, off_sgpr, size):
    if off_sgpr is None:
        a.I("s_mov_b32 %s, %s" % (sr(d), sr(p)))
        a.I("s_mov_b32 %s, %s" % (sr(d + 1), sr(p + 1)))
    else:
        a.I("s_add_u32 %s, %s, %s" % (sr(d), sr(p), sr(off_sgpr)))
        a.I("s_addc_u32 %s, %s, 0" % (sr(d + 1), sr(p + 1)))
    a.I("s_mov_b32 %s, 0x%x" % (sr(d + 2), size))
    a.I("s_mov_b32 %s, 0x00020000" % sr(d + 3))
def kv_srds():
    a.I("s_lshr_b32 %s, %s, 1" % (sr(sT0), sr(sH)))
    a.I("s_lshl_b32 %s, %s, 4" % (sr(sT1), sr(sB)))
    a.I("s_add_u32 %s, %s, %s" % (sr(sT0), sr(sT0), sr(sT1)))
    a.I("s_lshl_b32 %s, %s, 17" % (sr(sT0), sr(sT0)))
    mk_srd(SK, pK, sT0, 131072)
    mk_srd(SV, pV, sT0, 131072)
    a.I("s_mul_i32 %s, %s, 589824" % (sr(sT0), sr(sKS)))
    mk_srd(SWO, pWO, sT0, 589824)

a = Asm()
q = LdsQ(a)
def ds_read(kind, dst, n, addr, off):
    assert 0 <= off < 65536, off
    a.I("%s %s, %s offset:%d" % (kind, vr(dst, n), vr(addr), off))
    return q.issue()
def rd128(dst, addr, off): return ds_read("ds_read_b128", dst, 4, addr, off)
def rdtr(dst, addr, off): return ds_read("ds_read_b64_tr_b16", dst, 2, addr, off)
def ds_write(kind, addr, src, n, off):
    assert 0 <= off < 65536
    a.I("%s %s, %s offset:%d" % (kind, vr(addr), vr(src, n), off))
    return q.issue()
def mfma32(d, A, B, c0=False):
    a.I("v_mfma_f32_32x32x16_bf16 %s, %s, %s, %s" % (vr(d, 16), vr(A, 4), vr(B, 4), "0" if c0 else vr(d, 16)))
def mfma16(d, A, B, c0=False):
    a.I("v_mfma_f32_16x16x32_bf16 %s, %s, %s, %s" % (vr(d, 4), vr(A, 4), vr(B, 4), "0" if c0 else vr(d, 4)))

vFLP = 0; vFL = 2; vFLO = 3
aX = [4, 5, 6, 7]; aW = [8, 9]; aK = 10; aV = [11, 12, 13, 14]; aWO = [15, 16]; aOI = 17; aRA = 18; aRB = 19
tA, tB, tC, tD, tE, tF = 20, 21, 22, 23, 24, 25
vIMG, vL16 = 26, 27
vFT = 28
vM, vL, vP0, vP1 = 4, 5, 6, 7
LS = 8
RING = 32; QF = 64; KR = 96; OACC = 64; S = 128

def wait_land(unit):
    if OPT["nowait"] and not unit.startswith("OI"): return
    spin(sKNOW, UIDX[unit] + 1, "ds_read_b128 %s, %s offset:%d" % (vr(vFT, 4), vr(vFL), F_LAND), 4, vFT)
def wait_prog(step):
    spin(sKNOW2, STEP[step] + 1, "ds_read_b128 %s, %s offset:%d" % (vr(vFT, 4), vr(vFL), F_PROG), 4, vFT)
def set_prog(step):
    a.I("v_mov_b32 %s, %d" % (vr(vFT), STEP[step] + 1))
    a.I("s_mov_b64 exec, 1")
    ds_write("ds_write_b32", vFLO, vFT, 1, F_PROG)
    a.I("s_mov_b64 exec, -1")
def set_flag(off):
    a.I("v_mov_b32 %s, 1" % vr(vFT))
    a.I("s_mov_b64 exec, 1")
    ds_write("ds_write_b32", vFLO, vFT, 1, off)
    a.I("s_mov_b64 exec, -1")
def wait_partner(off):
    a.I("s_mov_b32 %s, 0" % sr(sT3))
    spin(sT3, 1, "ds_read_b32 %s, %s offset:%d" % (vr(vFT), vr(vFLP), off), 1, vFT)
def wait_all(off):
    a.I("s_mov_b32 %s, 0" % sr(sT3))
    spin(sT3, 1, "ds_read_b128 %s, %s offset:%d" % (vr(vFT, 4), vr(vFL), off), 4, vFT)

a.L("L_COMPUTE")
if OPT["codepf"]:
    a.I("s_cmp_eq_u32 %s, 3" % sr(sWAVE))
    a.I("s_cbranch_scc0 L_NOCPF")
    a.I("s_getpc_b64 s[4:5]")
    a.L("L_PCREF")
    a.I("s_lshr_b32 %s, %s, 3" % (sr(sT0), sr(sID)))
    a.I("s_mul_i32 %s, %s, %d" % (sr(sT0), sr(sT0), OPT["codepf"] * 128))
    a.I("s_add_u32 s4, s4, %s" % sr(sT0))
    a.I("s_addc_u32 s5, s5, 0")
    a.I("v_lshlrev_b32 v9, 7, v1")
    a.I("s_mov_b64 exec, 0x%x" % ((1 << OPT["codepf"]) - 1))
    a.I("global_load_dword v9, v9, s[4:5]")
    a.I("s_mov_b64 exec, -1")
    a.L("L_NOCPF")
if OPT["prio"]: a.I("s_setprio 1")
sQH = sA0
a.I("s_and_b32 %s, %s, 1" % (sr(sLW), sr(sWAVE)))
a.I("s_lshl_b32 %s, %s, 13" % (sr(sLW8K), sr(sLW)))
a.I("s_lshr_b32 %s, %s, 1" % (sr(sQH), sr(sWAVE)))
a.I("s_mov_b32 %s, 0x%x" % (sr(sC), f32bits(SCALE)))
a.I("s_mov_b32 %s, 0x%x" % (sr(sC + 1), f32bits(SCALE)))
hf, r_, c4, mh, l31, L4, L15 = 32, 33, 34, 35, 36, 43, 44
T1, T2, T3 = 37, 38, 39
a.I("v_mov_b32 %s, v2" % vr(L4))
a.I("v_mov_b32 %s, v3" % vr(L15))
a.I("v_lshrrev_b32 %s, 5, v1" % vr(hf))
a.I("v_lshrrev_b32 %s, 2, v3" % vr(r_))
a.I("v_and_b32 %s, 3, v1" % vr(c4))
a.I("v_and_b32 %s, 1, v2" % vr(mh))
a.I("v_and_b32 %s, 31, v1" % vr(l31))
a.I("s_waitcnt lgkmcnt(0)")
mk_srd(SWS, pWS, None, WS_SIZE)
mk_srd(SOUT, pOUT, None, 589824)
a.I("s_mul_i32 %s, %s, %d" % (sr(sA1), sr(sID), IMG_BYTES))
a.I("s_add_u32 %s, %s, 0x%x" % (sr(sA1), sr(sA1), WS_IMG))
a.I("s_mul_i32 %s, %s, %d" % (sr(sA2), sr(sID), SLAB_BYTES))
a.I("s_mul_i32 %s, %s, 6144" % (sr(sT0), sr(sWAVE)))
a.I("s_add_u32 %s, %s, %s" % (sr(sA2), sr(sA2), sr(sT0)))
a.I("s_add_u32 %s, %s, 0x%x" % (sr(sA2), sr(sA2), WS_SLAB))
a.I("s_lshl_b32 %s, %s, 7" % (sr(sT0), sr(sB)))
a.I("v_mov_b32 v31, %s" % sr(sT0))
a.I("buffer_load_dword v16, v31, %s, 0 offen sc1" % sr(SWS, 4))
if OPT["tlb"]:
    kv_srds()
    a.I("v_mov_b32 v254, 0")
    a.I("s_mov_b64 exec, 1")
    l0 = newlbl("TW"); l1 = newlbl("TW"); l2 = newlbl("TW"); le = newlbl("TW")
    a.I("s_cmp_eq_u32 %s, 0" % sr(sWAVE)); a.I("s_cbranch_scc0 %s" % l0)
    a.I("buffer_load_dword v9, v254, %s, 0 offen nt" % sr(SK, 4))
    a.I("buffer_load_dword v9, v254, %s, 0 offen" % sr(SOUT, 4))
    a.I("s_branch %s" % le)
    a.L(l0)
    a.I("s_cmp_eq_u32 %s, 1" % sr(sWAVE)); a.I("s_cbranch_scc0 %s" % l1)
    a.I("buffer_load_dword v9, v254, %s, 0 offen nt" % sr(SV, 4))
    a.I("buffer_load_dword v9, v254, %s, %s offen sc1" % (sr(SWS, 4), sr(sA1)))
    a.I("buffer_load_dword v9, v254, %s, 0 offen sc1" % sr(SWS, 4))
    a.I("s_branch %s" % le)
    a.L(l1)
    a.I("s_cmp_eq_u32 %s, 2" % sr(sWAVE)); a.I("s_cbranch_scc0 %s" % l2)
    a.I("buffer_load_dword v9, v254, %s, 0 offen" % sr(SWO, 4))
    a.I("s_mov_b32 %s, 589820" % sr(sT0))
    a.I("buffer_load_dword v9, v254, %s, %s offen" % (sr(SWO, 4), sr(sT0)))
    a.I("s_branch %s" % le)
    a.L(l2)
    a.I("s_andn2_b32 %s, %s, 7" % (sr(sT1), sr(sID)))
    a.I("s_mul_i32 %s, %s, %d" % (sr(sT1), sr(sT1), SLAB_BYTES))
    a.I("s_add_u32 %s, %s, 0x%x" % (sr(sT1), sr(sT1), WS_SLAB))
    a.I("buffer_load_dword v9, v254, %s, %s offen sc1" % (sr(SWS, 4), sr(sT1)))
    a.I("s_add_u32 %s, %s, %d" % (sr(sT1), sr(sT1), SLAB_BYTES * 8 - 4))
    a.I("buffer_load_dword v9, v254, %s, %s offen sc1" % (sr(SWS, 4), sr(sT1)))
    a.L(le)
    a.I("s_mov_b64 exec, -1")
a.I("v_lshlrev_b32 %s, 7, %s" % (vr(T1), vr(l31)))
a.I("v_add_u32 %s, 0x%x, %s" % (vr(T1), XB, vr(T1)))
a.I("v_bfe_u32 %s, %s, 1, 3" % (vr(T2), vr(l31)))
a.I("v_xor_b32 %s, %s, %s" % (vr(T2), vr(hf), vr(T2)))
a.I("v_lshlrev_b32 %s, 4, %s" % (vr(T2), vr(T2)))
a.I("v_add_u32 %s, %s, %s" % (vr(aX[0]), vr(T1), vr(T2)))
for s in range(1, 4):
    a.I("v_xor_b32 %s, %d, %s" % (vr(aX[s]), 32 * s, vr(aX[0])))
swp = 40
a.I("v_and_b32 %s, 1, %s" % (vr(T1), vr(c4)))
a.I("v_lshlrev_b32 %s, 1, %s" % (vr(T1), vr(T1)))
a.I("v_lshrrev_b32 %s, 1, %s" % (vr(T2), vr(c4)))
a.I("v_or_b32 %s, %s, %s" % (vr(swp), vr(T1), vr(T2)))
def tr_addr(dst, rowlane, cq, blk, extra_sgpr=None):
    a.I("v_xor_b32 %s, %s, %s" % (vr(T1), blk, vr(r_)))
    a.I("v_lshlrev_b32 %s, 6, %s" % (vr(T1), vr(T1)))
    a.I("v_lshrrev_b32 %s, 1, %s" % (vr(T2), vr(cq)))
    a.I("v_lshl_add_u32 %s, %s, 1, %s" % (vr(T2), vr(mh), vr(T2)))
    a.I("v_lshl_add_u32 %s, %s, 4, %s" % (vr(T1), vr(T2), vr(T1)))
    a.I("v_and_b32 %s, 1, %s" % (vr(T2), vr(cq)))
    a.I("v_lshl_add_u32 %s, %s, 3, %s" % (vr(T1), vr(T2), vr(T1)))
    a.I("v_lshl_add_u32 %s, %s, 8, %s" % (vr(dst), vr(rowlane), vr(T1)))
    if extra_sgpr is not None:
        a.I("v_add_u32 %s, %s, %s" % (vr(dst), sr(extra_sgpr), vr(dst)))
rowA = 41
a.I("v_lshl_add_u32 %s, %s, 3, %s" % (vr(rowA), vr(hf), vr(r_)))
tr_addr(aW[0], rowA, swp, sr(sWAVE))
a.I("v_xor_b32 %s, %s, %s" % (vr(T1), vr(hf), vr(L15)))
a.I("v_lshlrev_b32 %s, 4, %s" % (vr(T1), vr(T1)))
a.I("v_lshl_add_u32 %s, %s, 8, %s" % (vr(aK), vr(l31), vr(T1)))
a.I("v_add_u32 %s, %s, %s" % (vr(aK), sr(sLW8K), vr(aK)))
rowB = 42
a.I("v_lshl_add_u32 %s, %s, 2, %s" % (vr(rowB), vr(hf), vr(r_)))
for i in range(4):
    a.I("s_lshl_b32 %s, %s, 1" % (sr(sT0), sr(sLW)))
    a.I("s_xor_b32 %s, %s, %d" % (sr(sT0), sr(sT0), i))
    tr_addr(aV[i], rowB, c4, sr(sT0), sLW8K)
tr_addr(aWO[0], rowB, c4, sr(sWAVE))
a.I("v_lshlrev_b32 %s, 4, v1" % vr(vL16))
a.I("s_lshl_b32 %s, %s, 13" % (sr(sT0), sr(sQH)))
a.I("v_add_u32 %s, %s, %s" % (vr(aOI), sr(sT0), vr(vL16)))
a.I("v_lshrrev_b32 %s, 1, %s" % (vr(T1), vr(L4)))
a.I("v_lshlrev_b32 %s, 4, %s" % (vr(T1), vr(T1)))
a.I("v_lshl_add_u32 %s, %s, 2, %s" % (vr(T1), vr(mh), vr(T1)))
a.I("v_add_u32 %s, %s, %s" % (vr(T1), vr(T1), vr(r_)))
a.I("v_lshlrev_b32 %s, 5, %s" % (vr(T1), vr(T1)))
a.I("v_lshl_add_u32 %s, %s, 3, %s" % (vr(T1), vr(c4), vr(T1)))
a.I("v_add_u32 %s, 0x%x, %s" % (vr(aRA), ADDR["WOR"], vr(T1)))
a.I("v_lshrrev_b32 %s, 1, %s" % (vr(T1), vr(L4)))
a.I("v_lshlrev_b32 %s, 10, %s" % (vr(T1), vr(T1)))
a.I("v_lshl_add_u32 %s, %s, 5, %s" % (vr(T2), vr(mh), vr(L15)))
a.I("v_lshl_add_u32 %s, %s, 4, %s" % (vr(T1), vr(T2), vr(T1)))
a.I("s_lshl_b32 %s, %s, 13" % (sr(sT0), sr(sQH)))
a.I("s_lshl_b32 %s, %s, 8" % (sr(sT1), sr(sLW)))
a.I("s_add_u32 %s, %s, %s" % (sr(sT0), sr(sT0), sr(sT1)))
a.I("v_add_u32 %s, %s, %s" % (vr(aRB), sr(sT0), vr(T1)))
a.I("s_lshl_b32 %s, %s, 12" % (sr(sT0), sr(sLW)))
a.I("v_add_u32 %s, %s, %s" % (vr(vIMG), sr(sT0), vr(aOI)))
a.I("v_mov_b32 %s, 0x%x" % (vr(vFL), MISC))
a.I("s_lshl_b32 %s, %s, 2" % (sr(sT0), sr(sWAVE)))
a.I("s_add_u32 %s, %s, 0x%x" % (sr(sT0), sr(sT0), MISC))
a.I("v_mov_b32 %s, %s" % (vr(vFLO), sr(sT0)))
a.I("s_xor_b32 %s, %s, 4" % (sr(sT0), sr(sT0)))
a.I("v_mov_b32 %s, %s" % (vr(vFLP), sr(sT0)))
a.I("v_add_u32 %s, 0x%x, %s" % (vr(tA), SLOT(3), vr(aW[0])))
aX2 = [tC, tD, tE, tF]
for s_ in range(4):
    a.I("v_subrev_u32 %s, 0x%x, %s" % (vr(aX2[s_]), XB - SLOT(6), vr(aX[s_])))
a.I("s_barrier")
if OPT["lonly"]:
    a.I("v_mov_b32 %s, 1000" % vr(vFT))
    a.I("ds_write_b32 %s, %s offset:%d" % (vr(vFLO), vr(vFT), F_PROG))
    a.I("s_waitcnt lgkmcnt(0) vmcnt(0)")
    a.I("s_endpgm")
stamp(1)

def dump_regs(base, n, slot_index):
    a.I("s_lshl_b32 %s, %s, 2" % (sr(sT0), sr(sID)))
    a.I("s_add_u32 %s, %s, %s" % (sr(sT0), sr(sT0), sr(sWAVE)))
    a.I("s_mul_i32 %s, %s, %d" % (sr(sT0), sr(sT0), n * 256))
    a.I("s_add_u32 %s, %s, 0x%x" % (sr(sT0), sr(sT0), WS_DUMP + slot_index * 0x2000000))
    for j in range(0, n, 4):
        a.I("buffer_store_dwordx4 %s, %s, %s, %s offen" % (vr(base + j, 4), vr(vL16), sr(SWS, 4), sr(sT0)))
        a.I("s_add_u32 %s, %s, 1024" % (sr(sT0), sr(sT0)))
    a.I("s_waitcnt vmcnt(0)")

a.C("==== phase A ====")
QACC = 128; BR = KR; NG = 36
tick = {}
def a_reads(n, part):
    i, s = divmod(n, 4)
    xa = ADDR["X%d" % i]; wo_ = ADDR["W%d" % i]
    if xa >= XB: xo = xa - XB; ax = aX
    else: xo = xa - SLOT(6); ax = aX2
    hi = wo_ >= SLOT(3)
    aw = tA if hi else aW[0]
    if hi: wo_ -= SLOT(3)
    if part == 0:
        if s == 0:
            wait_land("A%d" % i)
            if i % 2 == 0: cst("A%d" % i)
        base = RING + 4 * (n % 4); o = wo_ + 4096 * s
        rdtr(base, aw, o)
        rdtr(base + 2, aw, o + 1024)
        tick[(n, 0)] = rd128(BR + 8 * (n % 4), ax[s], xo)
    else:
        tick[(n, 1)] = rd128(BR + 8 * (n % 4) + 4, ax[s], xo + 4096)
        if s == 3: set_prog("A%d" % i)
DG = OPT["dga"]
for n in range(DG):
    a_reads(n, 0); a_reads(n, 1)
for n in range(NG):
    q.wait(tick[(n, 0)])
    mfma32(QACC, RING + 4 * (n % 4), BR + 8 * (n % 4), c0=(n == 0))
    if n + DG < NG: a_reads(n + DG, 0)
    q.wait(tick[(n, 1)])
    mfma32(QACC + 16, RING + 4 * (n % 4), BR + 8 * (n % 4) + 4, c0=(n == 0))
    if n + DG < NG: a_reads(n + DG, 1)
stamp(2)
cst("Aend")
a.I("s_lshl_b32 %s, %s, 11" % (sr(sT0), sr(sWAVE)))
a.I("s_add_u32 %s, %s, %d" % (sr(sT0), sr(sT0), ADDR["QS"]))
a.I("v_add_u32 %s, %s, %s" % (vr(tA), sr(sT0), vr(vL16)))
a.I("v_add_u32 %s, 0x%x, %s" % (vr(tB), ADDR["QS"], vr(aOI)))
wait_prog(STEPNAME[NEED["QS"] - 1])
a.nop(6)
if OPT["dump"] == 1: dump_regs(QACC, 32, 0)
QP = 32
for t in range(2):
    for j in range(8):
        a.I("v_cvt_pk_bf16_f32 %s, %s, %s" % (vr(QP + 8 * t + j), vr(QACC + 16 * t + 2 * j), vr(QACC + 16 * t + 2 * j + 1)))
    for j in range(2):
        ds_write("ds_write_b128", tA, QP + 8 * t + 4 * j, 4, t * 8192 + j * 1024)
set_flag(F_QX)
a.I("v_mov_b32 %s, 0xff800000" % vr(vM))

a.C("==== phase K ====")
D = 7
tick = {}
def max_ops(t):
    return ["v_max3_f32 %s, %s, %s, %s" % (vr(vM), vr(S + 16 * t + 2 * j), vr(S + 16 * t + 2 * j + 1), vr(vM)) for j in range(8)]
pend = []
for n in range(64 + D):
    m = n - D
    if m == 0:
        wait_all(F_QX)
        qtk = [rd128(QF + 4 * sgm, tB, sgm * 1024) for sgm in range(8)]
        set_prog("QS")
    if m >= 0:
        t, s = divmod(m, 8)
        q.wait(tick[m])
        if m < 8: q.wait(qtk[m])
        mfma32(S + 16 * t, KR + 4 * (m % 8), QF + 4 * s, c0=(s == 0))
        if s == 2 and t >= 1: pend = max_ops(t - 1)
        if s >= 3 and pend:
            a.I(pend.pop(0)); a.I(pend.pop(0))
    if n < 64:
        t, s = divmod(n, 8)
        if s == 0:
            wait_land("K%d" % t)
            if t % 4 == 0 or t == 7: cst("K%d" % t)
            a.I("v_add_u32 %s, 0x%x, %s" % (vr(tC), ADDR["K%d" % t], vr(aK)))
        tmp = tD if n % 2 == 0 else tE
        if s == 0:
            tick[n] = rd128(KR + 4 * (n % 8), tC, 0)
        else:
            a.I("v_xor_b32 %s, %d, %s" % (vr(tmp), 32 * s, vr(tC)))
            tick[n] = rd128(KR + 4 * (n % 8), tmp, 0)
        if s == 7: set_prog("K%d" % t)
assert not pend
stamp(3)
cst("Kend")
a.I("s_waitcnt vmcnt(0)")
a.I("v_readfirstlane_b32 %s, v16" % sr(sTAG))
a.I("s_lshl_b32 %s, %s, 8" % (sr(sT0), sr(sWAVE)))
a.I("s_add_u32 %s, %s, %d" % (sr(sT0), sr(sT0), MISC + MXD))
a.I("v_lshlrev_b32 %s, 2, v1" % vr(tA))
a.I("v_add_u32 %s, %s, %s" % (vr(tA), sr(sT0), vr(tA)))
a.I("v_xor_b32 %s, 0x100, %s" % (vr(tB), vr(tA)))
a.nop(8)
for s_ in max_ops(7): a.I(s_)
if OPT["dump"] == 2: dump_regs(S, 128, 0)

a.C("==== softmax ====")
a.I("s_add_u32 %s, %s, 1" % (sr(sTAG), sr(sTAG)))
a.I("v_mov_b32 %s, %s" % (vr(tC), vr(vM)))
a.nop(2)
a.I("v_permlane32_swap_b32 %s, %s" % (vr(tC), vr(vM)))
a.I("v_max_f32 %s, %s, %s" % (vr(vM), vr(tC), vr(vM)))
ds_write("ds_write_b32", tA, vM, 1, 0)
a.I("v_mov_b32 %s, 0" % vr(LS))
a.I("v_mov_b32 %s, 0" % vr(LS + 1))
a.I("v_mul_f32 %s, %s, %s" % (vr(vP0), sr(sC), vr(vM)))
a.I("v_sub_f32 %s, 0, %s" % (vr(vP0), vr(vP0)))
a.I("v_mov_b32 %s, %s" % (vr(vP1), vr(vP0)))
for t in range(8):
    b0 = S + 16 * t
    for j in range(8):
        a.I("v_pk_fma_f32 %s, %s, %s, %s" % (vr(b0 + 2 * j, 2), vr(b0 + 2 * j, 2), sr(sC, 2), vr(vP0, 2)))
    for j in range(16):
        a.I("v_exp_f32 %s, %s" % (vr(b0 + j), vr(b0 + j)))
    a.I("s_nop 0")
    for j in range(8):
        a.I("v_pk_add_f32 %s, %s, %s" % (vr(LS, 2), vr(LS, 2), vr(b0 + 2 * j, 2)))
    for j in range(8):
        a.I("v_cvt_pk_bf16_f32 %s, %s, %s" % (vr(b0 + j), vr(b0 + 2 * j), vr(b0 + 2 * j + 1)))
a.I("v_add_f32 %s, %s, %s" % (vr(vL), vr(LS), vr(LS + 1)))
a.I("v_mov_b32 %s, %s" % (vr(tC), vr(vL)))
a.nop(2)
a.I("v_permlane32_swap_b32 %s, %s" % (vr(tC), vr(vL)))
a.I("v_add_f32 %s, %s, %s" % (vr(vL), vr(tC), vr(vL)))
ds_write("ds_write_b32", tA, vL, 1, LD - MXD)
stamp(4)
cst("SMend")

a.C("==== phase V ====")
tick = {}
tV = [tC, tD, tE, tF]
for n in range(64 + D):
    m = n - D
    if m >= 0:
        t, rem = divmod(m, 8); u, ai = divmod(rem, 4)
        q.wait(tick[m])
        mfma32(OACC + 16 * ai, RING + 4 * (m % 8), S + 16 * t + 4 * u, c0=(m < 4))
    if n < 64:
        t, rem = divmod(n, 8); u, ai = divmod(rem, 4)
        if rem == 0:
            wait_land("V%d" % t)
            if t % 4 == 0 or t == 7: cst("V%d" % t)
            for i in range(4):
                a.I("v_add_u32 %s, 0x%x, %s" % (vr(tV[i]), ADDR["V%d" % t], vr(aV[i])))
        o = 4096 * u
        rdtr(RING + 4 * (n % 8), tV[ai], o)
        tick[n] = rdtr(RING + 4 * (n % 8) + 2, tV[ai], o + 2048)
        if rem == 7: set_prog("V%d" % t)
stamp(5)
cst("Vend")
a.C("==== O reduce ====")
a.I("s_lshl_b32 %s, %s, 13" % (sr(sT0), sr(sWAVE)))
a.I("s_add_u32 %s, %s, %d" % (sr(sT0), sr(sT0), ADDR["ORS"]))
a.I("v_add_u32 %s, %s, %s" % (vr(tA), sr(sT0), vr(vL16)))
a.I("v_xor_b32 %s, 0x2000, %s" % (vr(tA + 0 + 5 - 5 + 4), vr(tA)))
a.I("v_add_u32 %s, 0x%x, %s" % (vr(tC), IMG_ADDR[0], vr(vIMG)))
assert (ADDR["ORS"] // 8192) % 2 == 0
wait_prog(STEPNAME[max(NEED["ORS"], NEED["OI0"]) - 1])
a.nop(8)
for j in range(8):
    ds_write("ds_write_b128", tA, OACC + 32 + 4 * j, 4, j * 1024)
set_flag(F_OR)
wait_partner(F_OR)
cst("ORp")
tk = []
tkm = ds_read("ds_read_b32", vP0, 1, tB, 0)
tkl = ds_read("ds_read_b32", vP1, 1, tB, LD - MXD)
for j in range(8):
    tk.append(rd128(RING + 4 * j, tE, j * 1024))
set_prog("ORS")
q.wait(tkl)
a.I("v_max_f32 %s, %s, %s" % (vr(tD), vr(vP0), vr(vM)))
a.I("v_sub_f32 %s, %s, %s" % (vr(vM), vr(vM), vr(tD)))
a.I("v_sub_f32 %s, %s, %s" % (vr(vP0), vr(vP0), vr(tD)))
a.I("v_mul_f32 %s, %s, %s" % (vr(vM), sr(sC), vr(vM)))
a.I("v_mul_f32 %s, %s, %s" % (vr(vP0), sr(sC), vr(vP0)))
a.I("v_exp_f32 %s, %s" % (vr(vM), vr(vM)))
a.I("v_exp_f32 %s, %s" % (vr(vP0), vr(vP0)))
a.I("s_nop 0")
a.I("v_mul_f32 %s, %s, %s" % (vr(vL), vr(vL), vr(vM)))
a.I("v_fma_f32 %s, %s, %s, %s" % (vr(vL), vr(vP1), vr(vP0), vr(vL)))
a.I("v_rcp_f32 %s, %s" % (vr(vL), vr(vL)))
a.I("s_nop 0")
a.I("v_mul_f32 %s, %s, %s" % (vr(LS), vr(vP0), vr(vL)))
a.I("v_mul_f32 %s, %s, %s" % (vr(vP0), vr(vM), vr(vL)))
a.I("v_mov_b32 %s, %s" % (vr(LS + 1), vr(LS)))
a.I("v_mov_b32 %s, %s" % (vr(vP1), vr(vP0)))
PK = 96
for j in range(8):
    q.wait(tk[j])
    for h2 in range(2):
        d = OACC + 4 * j + 2 * h2
        a.I("v_pk_mul_f32 %s, %s, %s" % (vr(d, 2), vr(d, 2), vr(vP0, 2)))
        a.I("v_pk_fma_f32 %s, %s, %s, %s" % (vr(d, 2), vr(RING + 4 * j + 2 * h2, 2), vr(LS, 2), vr(d, 2)))
    for h2 in range(2):
        d = OACC + 4 * j + 2 * h2
        a.I("v_cvt_pk_bf16_f32 %s, %s, %s" % (vr(PK + 2 * j + h2), vr(d), vr(d + 1)))
    if j % 2 == 1:
        jj = j // 2
        a.I("buffer_store_dwordx4 %s, %s, %s, %s offen offset:%d%s" % (vr(PK + 4 * jj, 4), vr(vIMG), sr(SWS, 4), sr(sA1), jj * 1024, "" if OPT["e1plain"] else " sc0 sc1"))
        ds_write("ds_write_b128", tC, PK + 4 * jj, 4, jj * 1024)
set_flag(F_IMG)
def flag1():
    a.I("s_lshl_b32 %s, %s, 7" % (sr(sT0), sr(sID)))
    a.I("s_lshl_b32 %s, %s, 2" % (sr(sT1), sr(sWAVE)))
    a.I("s_add_u32 %s, %s, %s" % (sr(sT0), sr(sT0), sr(sT1)))
    a.I("s_add_u32 %s, %s, 0x%x" % (sr(sT0), sr(sT0), WS_FLAG1))
    a.I("v_mov_b32 %s, %s" % (vr(tA), sr(sTAG)))
    a.I("v_mov_b32 %s, 0" % vr(tB))
    a.I("s_waitcnt vmcnt(0)")
    a.I("s_mov_b64 exec, 1")
    a.I("buffer_store_dword %s, %s, %s, %s offen%s" % (vr(tA), vr(tB), sr(SWS, 4), sr(sT0), "" if OPT["e1plain"] else " sc0 sc1"))
    a.I("s_mov_b64 exec, -1")
if not OPT["lateflag"]: flag1()
if OPT["dump"] == 3: dump_regs(OACC, 32, 0)
stamp(6)
cst("ORend")

a.C("==== phase P ====")
tick = {}
tWO = tC; tOI = tE; tRB = tF
PACC = 160; RACC = 192; RA = [196, 200]; RB = [204, 208]
BRP = 96
def p_reads(n, part):
    step, kk = divmod(n, 4)
    hn, hh = divmod(step, 2)
    blk = 2 * hh + (kk >> 1); u = kk & 1
    wt = "WO%d" % step
    if part == 0:
        if kk == 0:
            if step == 0:
                wait_all(F_IMG)
                wait_land("WO0")
            else:
                if step == 2 and OPT["lateflag"]: flag1()
                wait_land(wt)
            if hh == 0 and hn > 0: wait_land("OI%d" % hn)
            cst("P%d" % step)
            a.I("v_add_u32 %s, 0x%x, %s" % (vr(tWO), ADDR[wt], vr(aWO[0])))
            if hh == 0:
                a.I("v_add_u32 %s, 0x%x, %s" % (vr(tOI), IMG_ADDR[hn], vr(vL16)))
                a.I("v_add_u32 %s, 0x%x, %s" % (vr(tRB), IMG_ADDR[hn], vr(aRB)))
        base = RING + 4 * (n % 4); o = 8192 * (kk >> 1) + 4096 * u
        rdtr(base, tWO, o)
        rdtr(base + 2, tWO, o + 2048)
        tick[(n, 0)] = rd128(BRP + 8 * (n % 4), tOI, (blk * 2 + u) * 1024)
    else:
        tick[(n, 1)] = rd128(BRP + 8 * (n % 4) + 4, tOI, 8192 + (blk * 2 + u) * 1024)
        if u == 0:
            ri = (n // 2) % 2
            o = hn * 4096 + blk * 1024
            rdtr(RA[ri], aRA, o)
            rdtr(RA[ri] + 2, aRA, o + 256)
            tick[(n, 2)] = rd128(RB[ri], tRB, blk * 2048)
        if kk == 3 and step < 3: set_prog("P%d" % step)
DG = OPT["dgp"]; NG = 32
for n in range(DG):
    p_reads(n, 0); p_reads(n, 1)
for n in range(NG):
    q.wait(tick[(n, 0)])
    mfma32(PACC, RING + 4 * (n % 4), BRP + 8 * (n % 4), c0=(n == 0))
    if n + DG < NG: p_reads(n + DG, 0)
    q.wait(tick[(n, 1)])
    mfma32(PACC + 16, RING + 4 * (n % 4), BRP + 8 * (n % 4) + 4, c0=(n == 0))
    if n % 2 == 0:
        q.wait(tick[(n, 2)])
        ri = (n // 2) % 2
        mfma16(RACC, RA[ri], RB[ri], c0=(n == 0))
    if n + DG < NG: p_reads(n + DG, 1)
stamp(7)
cst("Pend")
GS = 64
for g in range(6): a.I("v_mov_b32 %s, %s" % (vr(GS + 4 * g + 3), sr(sTAG)))
a.I("s_add_u32 %s, %s, 4096" % (sr(sT2), sr(sA2)))
a.nop(5)
def spos(d): return GS + 4 * (d // 3) + (d % 3)
srcs = [(PACC + 2 * j, PACC + 2 * j + 1) for j in range(16)] + [(RACC, RACC + 1), (RACC + 2, RACC + 3)]
for d, (x0, x1) in enumerate(srcs):
    a.I("v_cvt_pk_bf16_f32 %s, %s, %s" % (vr(spos(d)), vr(x0), vr(x1)))
    if d % 3 == 2:
        g = d // 3
        a.I("buffer_store_dwordx4 %s, %s, %s, %s offen offset:%d sc0 sc1" % (vr(GS + 4 * g, 4), vr(vL16), sr(SWS, 4), sr(sA2 if g < 4 else sT2), (g % 4) * 1024))
set_prog("PE")
stamp(8)
a.I("s_branch L_CEND")
compute_lines = a.lines

a = Asm()
a.L("L_LOADER")
T1, T2 = 30, 31
vX = [4, 5]; vW = [6, 7, 8, 9]; vK = [10, 11, 12, 13]; vV = 14; vWO = [15, 16, 17, 18]; vWOR = [19, 20, 21, 22]; vLn = 23
vFLl = 24; vFLOl = 25
vFTl = 104
sL4 = sLW
a.I("s_sub_u32 %s, %s, 4" % (sr(sL4), sr(sWAVE)))
a.I("s_lshl_b32 %s, %s, 12" % (sr(sLW8K), sr(sL4)))
a.I("v_lshlrev_b32 %s, 2, v1" % vr(T1))
a.I("v_add_u32 %s, 0x%x, %s" % (vr(T1), MISC, vr(T1)))
a.I("v_mov_b32 %s, 0" % vr(T2))
a.I("s_cmp_eq_u32 %s, 0" % sr(sL4))
a.I("s_cbranch_scc0 L_NOINIT")
a.I("ds_write_b32 %s, %s" % (vr(T1), vr(T2)))
a.L("L_NOINIT")
for i in range(2):
    a.I("v_lshrrev_b32 %s, 3, v1" % vr(T1))
    a.I("v_mul_u32_u24 %s, 1152, %s" % (vr(T1), vr(T1)))
    a.I("v_and_b32 %s, 7, v1" % vr(T2))
    a.I("v_xor_b32 %s, %s, v2" % (vr(T2), vr(T2)))
    if i & 1: a.I("v_xor_b32 %s, 4, %s" % (vr(T2), vr(T2)))
    a.I("v_lshl_add_u32 %s, %s, 4, %s" % (vr(T1), vr(T2), vr(T1)))
    a.I("v_add_u32 %s, %d, %s" % (vr(vX[i]), i * 8192, vr(T1)))
a.I("v_lshlrev_b32 %s, 2, v2" % vr(T2))
a.I("v_xor_b32 %s, %s, v3" % (vr(T2), vr(T2)))
a.I("v_lshlrev_b32 %s, 4, %s" % (vr(T2), vr(T2)))
a.I("v_lshl_add_u32 %s, v2, 13, %s" % (vr(T1), vr(T2)))
for i in range(4):
    a.I("v_add_u32 %s, %d, %s" % (vr(vW[i]), i * 31744, vr(T1)))
a.I("s_mul_i32 s7, %s, %d" % (sr(sJQ), OPT["ktrot"]))
a.I("s_add_u32 s7, s7, %s" % sr(sB))
a.I("s_cmp_ge_u32 s7, 9")
a.I("s_cselect_b32 %s, 9, 0" % sr(sT1))
a.I("s_sub_u32 s7, s7, %s" % sr(sT1))
a.I("s_mul_i32 %s, %s, 18432" % (sr(sA0), sr(sL4)))
a.I("s_lshl_b32 %s, %s, 17" % (sr(sA1), sr(sL4)))
a.I("s_waitcnt lgkmcnt(0)")
a.I("s_mul_i32 %s, %s, 73728" % (sr(sT0), sr(sB)))
mk_srd(SX, pX, sT0, 73728)
a.I("s_lshl_b32 %s, %s, 8" % (sr(sT0), sr(sH)))
mk_srd(SW, pWQ, sT0, 575 * 8192 + 256)
issued = []
published = [0]
if OPT["pfa"]:
    a.I("s_lshl_b32 %s, %s, 2" % (sr(sT0), sr(sJQ)))
    a.I("s_add_u32 %s, %s, %s" % (sr(sT0), sr(sT0), sr(sL4)))
    a.I("s_mul_i32 %s, %s, %d" % (sr(sT0), sr(sT0), 36 * 128))
    a.I("v_lshlrev_b32 v40, 7, v1")
    a.I("v_lshrrev_b32 v42, 1, v1")
    a.I("v_lshlrev_b32 v42, 13, v42")
    a.I("v_and_b32 v43, 1, v1")
    a.I("v_lshl_add_u32 v42, v43, 7, v42")
    a.I("s_mul_i32 %s, %s, 72" % (sr(sT1), sr(sB)))
    a.I("s_mul_i32 %s, %s, 18" % (sr(sT2), sr(sL4)))
    a.I("s_add_u32 %s, %s, %s" % (sr(sT1), sr(sT1), sr(sT2)))
    a.I("s_lshl_b32 %s, %s, 13" % (sr(sT1), sr(sT1)))
    a.I("s_mov_b32 exec_lo, -1"); a.I("s_mov_b32 exec_hi, 0xf")
    if OPT["pfa"] == 1:
        a.I("buffer_load_dword v41, v42, %s, %s offen%s" % (sr(SW, 4), sr(sT1), " nt" if OPT["ntpf"] else ""))
    if OPT["pfa"] == 3:
        a.I("s_mov_b32 %s, %s" % (sr(sI2), sr(sT0)))
    else:
        a.I("buffer_load_dword v41, v40, %s, %s offen%s" % (sr(SX, 4), sr(sT0), " nt" if OPT["ntpf"] else ""))
    a.I("s_mov_b64 exec, -1")
if OPT["pk"]:
    a.I("s_and_b32 %s, %s, 1" % (sr(sT0), sr(sJQ)))
    a.I("s_cmp_eq_u32 %s, 1" % sr(sT0))
    a.I("s_cbranch_scc0 L_NOPK")
    a.I("s_lshr_b32 %s, %s, 1" % (sr(sT0), sr(sH)))
    a.I("s_lshl_b32 %s, %s, 4" % (sr(sT1), sr(sB)))
    a.I("s_add_u32 %s, %s, %s" % (sr(sT0), sr(sT0), sr(sT1)))
    a.I("s_lshl_b32 %s, %s, 17" % (sr(sT0), sr(sT0)))
    mk_srd(SK, pK, sT0, 131072)
    a.I("v_lshlrev_b32 v40, 7, v1")
    a.I("s_lshl_b32 %s, %s, 14" % (sr(sT0), sr(sL4)))
    if OPT["pk"] == 2:
        a.I("s_lshl_b32 %s, %s, 1" % (sr(sT0), sr(sT0)))
    elif OPT["rot"]:
        a.I("s_add_u32 %s, %s, 65536" % (sr(sT0), sr(sT0)))
    for j in range(OPT["pk"] * 2):
        a.I("buffer_load_dword v41, v40, %s, %s offen%s" % (sr(SK, 4), sr(sT0), " nt" if OPT["ntkv"] else ""))
        a.I("s_add_u32 %s, %s, 8192" % (sr(sT0), sr(sT0)))
    a.L("L_NOPK")
def dma(voff, srd, soff, imm, flags=""):
    if OPT["noload"]:
        a.I("s_nop 0"); return
    a.I("buffer_load_dwordx4 %s, %s, %s offen offset:%d%s lds" % (vr(voff), sr(srd, 4), sr(soff), imm, flags))
def late_setup():
    a.I("v_lshl_add_u32 %s, v2, 8, %s" % (vr(vV), vr(T2)))
    a.I("v_mul_u32_u24 %s, 1152, v2" % vr(T1))
    a.I("v_add_u32 %s, %s, %s" % (vr(T1), vr(T1), vr(T2)))
    for i in range(4):
        a.I("v_add_u32 %s, %d, %s" % (vr(vWO[i]), i * 3584, vr(T1)))
    for i in range(4):
        a.I("v_add_u32 %s, %d, v2" % (vr(T1), 4 * i))
        a.I("v_xor_b32 %s, %s, v3" % (vr(T1), vr(T1)))
        a.I("v_lshlrev_b32 %s, 4, %s" % (vr(T1), vr(T1)))
        a.I("v_lshl_add_u32 %s, v2, 8, %s" % (vr(vK[i]), vr(T1)))
    a.I("v_lshrrev_b32 %s, 1, v1" % vr(T1))
    a.I("v_mul_u32_u24 %s, 1152, %s" % (vr(T1), vr(T1)))
    a.I("v_and_b32 %s, 1, v1" % vr(T2))
    a.I("v_lshl_add_u32 %s, %s, 4, %s" % (vr(T1), vr(T2), vr(T1)))
    for i in range(4):
        a.I("v_add_u32 %s, %d, %s" % (vr(vWOR[i]), i * 35840, vr(T1)))
    a.I("v_lshlrev_b32 %s, 4, v1" % vr(vLn))
    kv_srds()
    mk_srd(SOUT, pOUT, None, 589824)
    if OPT["rot"]:
        a.I("s_and_b32 %s, %s, 1" % (sr(sT0), sr(sJQ)))
        a.I("s_lshl_b32 %s, %s, 16" % (sr(sT0), sr(sT0)))
        a.I("s_add_u32 %s, %s, %s" % (sr(sA3), sr(sT0), sr(sLW8K)))
    else:
        a.I("s_mov_b32 %s, %s" % (sr(sA3), sr(sLW8K)))
    a.I("s_xor_b32 %s, %s, 0x10000" % (sr(sA4), sr(sA3)))
    a.I("v_mov_b32 %s, 0x%x" % (vr(vFLl), MISC))
    a.I("s_lshl_b32 %s, %s, 2" % (sr(sT0), sr(sL4)))
    a.I("s_add_u32 %s, %s, 0x%x" % (sr(sT0), sr(sT0), MISC + F_LAND))
    a.I("v_mov_b32 %s, %s" % (vr(vFLOl), sr(sT0)))
def init_setup():
    mk_srd(SWS, pWS, None, WS_SIZE)
    a.I("s_lshl_b32 %s, %s, 7" % (sr(sT0), sr(sB)))
    a.I("v_mov_b32 v38, %s" % sr(sT0))
    a.I("buffer_load_dword v39, v38, %s, 0 offen sc1" % sr(SWS, 4)); issued.append("EPOCH")
def issue(unit):
    a.C("issue " + unit)
    if unit[0] == "A":
        i = int(unit[1:])
        a.I("s_add_u32 %s, s7, %d" % (sr(sT0), i))
        a.I("s_cmp_ge_u32 %s, 9" % sr(sT0))
        a.I("s_cselect_b32 %s, 9, 0" % sr(sT1))
        a.I("s_sub_u32 %s, %s, %s" % (sr(sA2), sr(sT0), sr(sT1)))
        a.I("s_lshl_b32 %s, %s, 7" % (sr(sT0), sr(sA2)))
        a.I("s_lshr_b32 %s, %s, 1" % (sr(sT1), sr(sLW8K)))
        a.I("s_add_u32 m0, %s, %d" % (sr(sT1), ADDR["X%d" % i]))
        a.I("s_add_u32 %s, %s, %s" % (sr(sT0), sr(sT0), sr(sA0)))
        for j in range(2):
            if OPT["nox"]: continue
            dma(vX[j], SX, sT0, j * 1024, " nt" if OPT["ntx"] else ""); issued.append(unit)
        a.I("s_lshl_b32 %s, %s, 19" % (sr(sT0), sr(sA2)))
        a.I("s_add_u32 m0, %s, %d" % (sr(sLW8K), ADDR["W%d" % i]))
        a.I("s_add_u32 %s, %s, %s" % (sr(sT0), sr(sT0), sr(sA1)))
        for j in range(4):
            if OPT["now"]: continue
            dma(vW[j], SW, sT0, j * 1024, " nt" if OPT["ntw"] else ""); issued.append(unit)
    elif unit.startswith("OI"):
        n = int(unit[2:])
        a.I("s_add_u32 m0, %s, %d" % (sr(sLW8K), IMG_ADDR[n]))
        a.I("s_nop 0")
        for j in range(4):
            dma(vLn, SWS, [sA1, sA3, sA4][n - 1], j * 1024, " sc0 sc1"); issued.append(unit)
    elif unit == "PF":
        if OPT["pfwo"]:
            a.I("s_lshl_b32 %s, %s, 2" % (sr(sT0), sr(sB)))
            a.I("s_add_u32 %s, %s, %s" % (sr(sT0), sr(sT0), sr(sJQ)))
            a.I("s_lshl_b32 %s, %s, 2" % (sr(sT0), sr(sT0)))
            a.I("s_add_u32 %s, %s, %s" % (sr(sT0), sr(sT0), sr(sL4)))
            a.I("s_mul_i32 %s, %s, %d" % (sr(sT0), sr(sT0), 36 * 128))
            a.I("v_lshlrev_b32 v40, 7, v1")
            a.I("s_mov_b32 exec_lo, -1"); a.I("s_mov_b32 exec_hi, 0xf")
            a.I("buffer_load_dword v41, v40, %s, %s offen%s" % (sr(SWO, 4), sr(sT0), " nt" if OPT["ntpf"] else "")); issued.append(unit)
            a.I("s_mov_b64 exec, -1")
    elif unit == "WOR":
        a.I("s_add_u32 %s, %s, %s" % (sr(sT0), sr(sL4), sr(sJQ)))
        a.I("s_and_b32 %s, %s, 3" % (sr(sT0), sr(sT0)))
        a.I("s_mul_i32 %s, %s, %d" % (sr(sT0), sr(sT0), 128 * 1152))
        a.I("s_lshl_b32 %s, %s, 5" % (sr(sT1), sr(sJQ)))
        a.I("s_add_u32 %s, %s, %s" % (sr(sT0), sr(sT0), sr(sT1)))
        a.I("s_add_u32 m0, %s, %d" % (sr(sLW8K), ADDR["WOR"]))
        a.I("s_add_u32 %s, %s, 1024" % (sr(sT0), sr(sT0)))
        for j in range(4):
            dma(vWOR[j], SWO, sT0, j * 1024, " nt" if OPT["ntwo"] else ""); issued.append(unit)
    elif unit[0:2] == "WO":
        u = int(unit[2:])
        a.I("s_lshl_b32 %s, %s, 1" % (sr(sT0), sr(sJQ)))
        a.I("s_add_u32 %s, %s, %d" % (sr(sT0), sr(sT0), u))
        a.I("s_and_b32 %s, %s, 7" % (sr(sT0), sr(sT0)))
        a.I("s_mul_i32 %s, %s, 73728" % (sr(sT0), sr(sT0)))
        a.I("s_add_u32 %s, %s, %s" % (sr(sT0), sr(sT0), sr(sA0)))
        a.I("s_lshl_b32 %s, %s, 8" % (sr(sT1), sr(sJQ)))
        a.I("s_add_u32 m0, %s, %d" % (sr(sLW8K), ADDR[unit]))
        a.I("s_add_u32 %s, %s, %s" % (sr(sT0), sr(sT0), sr(sT1)))
        for j in range(4):
            dma(vWO[j], SWO, sT0, j * 1024, " nt" if OPT["ntwo"] else ""); issued.append(unit)
    elif unit[0] in "KV":
        t = int(unit[1:])
        base = sA3 if t < 4 else sA4
        a.I("s_add_u32 m0, %s, %d" % (sr(sLW8K), ADDR[unit]))
        a.I("s_add_u32 %s, %s, %d" % (sr(sT0), sr(base), (t & 3) * 16384))
        for j in range(4):
            if unit[0] == "K": dma(vK[j], SK, sT0, j * 1024, " nt" if OPT["ntkv"] else "")
            else: dma(vV, SV, sT0, j * 1024, " nt" if OPT["ntkv"] else "")
            issued.append(unit)
    else:
        raise Exception(unit)
def publish(count):
    if count <= published[0]: return
    names = set(n for n, _ in units[:count])
    idxs = [i for i, t in enumerate(issued) if t in names]
    if idxs:
        n = len(issued) - 1 - max(idxs)
        a.I("s_waitcnt vmcnt(%d)" % min(n, 63))
    a.I("v_mov_b32 %s, %d" % (vr(vFTl), count))
    a.I("s_mov_b64 exec, 1")
    a.I("ds_max_u32 %s, %s" % (vr(vFLOl), vr(vFTl)))
    a.I("s_mov_b64 exec, -1")
    published[0] = count
def lstamp(i):
    if OPT["sel"] and units[i][0] not in ("A1", "A8", "K3", "K7", "V3", "V7", "WO3", "WO7"): return
    if OPT["stamps"] == 2:
        a.I("s_memrealtime s[90:91]"); a.I("s_waitcnt lgkmcnt(0)"); a.I("v_writelane_b32 v100, s90, %d" % i)
LOOK = OPT["look"]
proven = 0
for ui, (unit, need) in enumerate(units):
    if ui == 1:
        if OPT["pfa"] == 3:
            a.I("s_mov_b32 exec_lo, -1"); a.I("s_mov_b32 exec_hi, 0xf")
            a.I("buffer_load_dword v41, v40, %s, %s offen%s" % (sr(SX, 4), sr(sI2), " nt" if OPT["ntpf"] else "")); issued.append("PFX")
            a.I("s_mov_b64 exec, -1")
        a.I("v_mov_b32 %s, 0x%x" % (vr(vFLl), MISC))
        a.I("s_lshl_b32 %s, %s, 2" % (sr(sT0), sr(sL4)))
        a.I("s_add_u32 %s, %s, 0x%x" % (sr(sT0), sr(sT0), MISC + F_LAND))
        a.I("v_mov_b32 %s, %s" % (vr(vFLOl), sr(sT0)))
        a.I("s_waitcnt lgkmcnt(0)")
        a.I("s_barrier")
    if ui == 2:
        init_setup(); late_setup()

    if need > proven:
        save_pub = published[0]
        ok = newlbl("OK"); sp = newlbl("SP")
        a.I("s_cmp_ge_u32 %s, %d" % (sr(sKNOW), need))
        a.I("s_cbranch_scc1 %s" % ok)
        a.L(sp)
        a.I("ds_read_b128 %s, %s offset:%d" % (vr(vFTl, 4), vr(vFLl), F_PROG))
        a.I("s_waitcnt lgkmcnt(0)")
        a.I("v_min3_u32 %s, %s, %s, %s" % (vr(vFTl), vr(vFTl), vr(vFTl + 1), vr(vFTl + 2)))
        a.I("v_min_u32 %s, %s, %s" % (vr(vFTl), vr(vFTl), vr(vFTl + 3)))
        a.I("s_nop 0")
        a.I("v_readfirstlane_b32 %s, %s" % (sr(sKNOW), vr(vFTl)))
        a.I("s_add_i32 %s, %s, -1" % (sr(sBUD), sr(sBUD)))
        a.I("s_cmp_lt_i32 %s, 0" % sr(sBUD))
        a.I("s_cbranch_scc1 %s" % ok)
        a.I("s_cmp_ge_u32 %s, %d" % (sr(sKNOW), need))
        a.I("s_cbranch_scc1 %s" % ok)
        if OPT["lsleep"]: a.I("s_sleep %d" % OPT["lsleep"])
        a.I("s_branch %s" % sp)
        a.L(ok)
        proven = need
    if unit.startswith("OI") and OPT["lonly"]: continue
    if unit.startswith("OI"):
        n = int(unit[2:])
        lp = "L_POLL%d" % n
        if n == 1:
            publish(ui)
            a.I("s_mov_b32 %s, 0" % sr(sT3))
        else:
            a.I("s_and_b32 %s, %s, 0x%x" % (sr(sT0), sr(sA2), 0xF << (4 * (n - 1))))
            a.I("s_cbranch_scc0 %s_X" % lp)
            a.I("s_waitcnt vmcnt(0)")
            a.I("v_mov_b32 %s, %d" % (vr(vFTl), ui))
            a.I("s_mov_b64 exec, 1")
            a.I("ds_max_u32 %s, %s" % (vr(vFLOl), vr(vFTl)))
            a.I("s_mov_b64 exec, -1")
        a.L(lp)
        a.I("s_mov_b64 exec, 0xfff")
        a.I("buffer_load_dword v42, v43, %s, 0 offen sc0 sc1" % sr(SWS, 4))
        a.I("s_waitcnt vmcnt(0)")
        a.I("v_cmp_ne_u32 vcc, %s, v42" % sr(sTAG))
        a.I("s_mov_b64 exec, -1")
        a.I("s_add_u32 %s, %s, 1" % (sr(sT3), sr(sT3)))
        a.I("s_mov_b32 %s, vcc_lo" % sr(sA2))
        a.I("s_cmp_gt_u32 %s, 40000" % sr(sT3))
        a.I("s_cbranch_scc1 %s_X" % lp)
        a.I("s_and_b32 %s, %s, 0x%x" % (sr(sT0), sr(sA2), 0xF << (4 * (n - 1))))
        a.I("s_cbranch_scc1 %s" % lp)
        a.L(lp + "_X")
    if ui >= 1: a.I("ds_read_b128 %s, %s offset:%d" % (vr(vFTl + 4, 4), vr(vFLl), F_PROG))
    issue(unit)
    pub_emitted = [False]
    lk = 1 if (OPT["tail1"] and (unit.startswith("OI") or unit in ("WO7", "K%d" % OPT["kearly"], "V0", "PF"))) else LOOK
    if ui - lk + 1 > 0:
        before = published[0]
        publish(ui - lk + 1)
        pub_emitted[0] = published[0] != before
    if ui >= 1:
        LS_ = {"A1": 1, "A5": 2, "K0": 3, "K4": 4, "V0": 5, "V4": 6, "WOR": 7, "WO6": 8}
        if OPT["stamps"] == 1 and unit in LS_:
            a.I("s_memrealtime %s" % sr(sSTAMP + 2 * LS_[unit], 2))
            a.I("s_waitcnt lgkmcnt(0)")
        else:
            a.I("s_waitcnt lgkmcnt(%d)" % (1 if (ui - LOOK + 1 > 0 and pub_emitted[0]) else 0))
        a.I("v_min3_u32 %s, %s, %s, %s" % (vr(vFTl + 4), vr(vFTl + 4), vr(vFTl + 5), vr(vFTl + 6)))
        a.I("v_min_u32 %s, %s, %s" % (vr(vFTl + 4), vr(vFTl + 4), vr(vFTl + 7)))
        a.I("s_nop 0")
        a.I("v_readfirstlane_b32 %s, %s" % (sr(sKNOW), vr(vFTl + 4)))
    lstamp(ui)
    if unit == "V0":
        a.I("v_readfirstlane_b32 %s, v39" % sr(sTAG))
        a.I("s_nop 0")
        a.I("s_add_u32 %s, %s, 1" % (sr(sTAG), sr(sTAG)))
    if unit == "V7":
        a.I("v_lshrrev_b32 v43, 2, v1")
        a.I("v_add_u32 v43, %s, v43" % sr(sJQ))
        a.I("v_add_u32 v43, 1, v43")
        a.I("v_and_b32 v43, 3, v43")
        a.I("v_lshlrev_b32 v43, 3, v43")
        a.I("s_andn2_b32 %s, %s, 0x18" % (sr(sT1), sr(sID)))
        a.I("v_or_b32 v43, %s, v43" % sr(sT1))
        a.I("v_lshlrev_b32 v43, 7, v43")
        a.I("v_and_b32 v44, 3, v1")
        a.I("v_lshl_add_u32 v43, v44, 2, v43")
        a.I("v_add_u32 v43, 0x%x, v43" % WS_FLAG1)
        for n in range(1, 4):
            a.I("s_add_u32 %s, %s, %d" % (sr(sT0), sr(sJQ), n))
            a.I("s_and_b32 %s, %s, 3" % (sr(sT0), sr(sT0)))
            a.I("s_lshl_b32 %s, %s, 3" % (sr(sT0), sr(sT0)))
            a.I("s_andn2_b32 %s, %s, 0x18" % (sr(sT1), sr(sID)))
            a.I("s_or_b32 %s, %s, %s" % (sr(sT0), sr(sT0), sr(sT1)))
            a.I("s_mul_i32 %s, %s, %d" % (sr(sT0), sr(sT0), IMG_BYTES))
            a.I("s_add_u32 %s, %s, %s" % (sr(sT0), sr(sT0), sr(sLW8K)))
            a.I("s_add_u32 %s, %s, 0x%x" % (sr([sA1, sA3, sA4][n - 1]), sr(sT0), WS_IMG))
publish(len(units))
if OPT["stamps"] == 2:
    a.I("v_writelane_b32 v100, %s, 63" % sr(sSTAMP))
    a.I("s_lshl_b32 %s, %s, 2" % (sr(sT0), sr(sID)))
    a.I("s_add_u32 %s, %s, %s" % (sr(sT0), sr(sT0), sr(sLW)))
    a.I("s_lshl_b32 %s, %s, 8" % (sr(sT0), sr(sT0)))
    a.I("s_add_u32 %s, %s, 0x%x" % (sr(sT0), sr(sT0), WS_STAMP + 0x100000))
    a.I("v_lshlrev_b32 v103, 2, v1")
    a.I("buffer_store_dword v100, v103, %s, %s offen" % (sr(SWS, 4), sr(sT0)))
if OPT["lonly"]:
    a.I("s_waitcnt vmcnt(0)")
    a.I("s_endpgm")
a.I("s_branch L_FINAL")
loader_lines = a.lines

a = Asm()
a.L("L_FINAL")
a.I("s_cmp_ge_u32 %s, 7" % sr(sWAVE))
a.I("s_cbranch_scc1 L_FIN_SKIP")
sP, sW, sG = sA1, sA2, sA3
a.I("s_mul_i32 %s, %s, 3" % (sr(sP), sr(sKS)))
a.I("s_add_u32 %s, %s, %s" % (sr(sP), sr(sP), sr(sLW)))
a.I("s_mul_i32 %s, %s, 43" % (sr(sW), sr(sP)))
a.I("s_lshr_b32 %s, %s, 8" % (sr(sW), sr(sW)))
a.I("s_mul_i32 %s, %s, 6" % (sr(sT0), sr(sW)))
a.I("s_sub_u32 %s, %s, %s" % (sr(sG), sr(sP), sr(sT0)))
a.I("s_mul_i32 %s, %s, 6144" % (sr(sT0), sr(sW)))
a.I("s_lshl_b32 %s, %s, 10" % (sr(sT1), sr(sG)))
a.I("s_add_u32 %s, %s, %s" % (sr(sT0), sr(sT0), sr(sT1)))
a.I("s_andn2_b32 %s, %s, 7" % (sr(sT1), sr(sID)))
a.I("s_mul_i32 %s, %s, %d" % (sr(sT1), sr(sT1), SLAB_BYTES))
a.I("s_add_u32 %s, %s, %s" % (sr(sT1), sr(sT1), sr(sT0)))
a.I("s_add_u32 %s, %s, 0x%x" % (sr(sA0), sr(sT1), WS_SLAB))
a.I("v_lshlrev_b32 v5, 4, v1")
a.I("s_mov_b32 %s, 0" % sr(sT3))
if OPT["finwait"]:
    a.L("L_FW")
    a.I("ds_read_b128 v[104:107], v24 offset:%d" % F_PROG)
    a.I("s_waitcnt lgkmcnt(0)")
    a.I("v_min3_u32 v104, v104, v105, v106")
    a.I("v_min_u32 v104, v104, v107")
    a.I("s_nop 0")
    a.I("v_readfirstlane_b32 %s, v104" % sr(sKNOW))
    a.I("s_add_i32 %s, %s, -1" % (sr(sBUD), sr(sBUD)))
    a.I("s_cmp_lt_i32 %s, 0" % sr(sBUD))
    a.I("s_cbranch_scc1 L_FW_X")
    a.I("s_cmp_ge_u32 %s, %d" % (sr(sKNOW), STEP["PE"] + 1))
    a.I("s_cbranch_scc1 L_FW_X")
    a.I("s_sleep 1")
    a.I("s_branch L_FW")
    a.L("L_FW_X")
def fin_loads():
    a.I("s_mov_b32 %s, %s" % (sr(sT1), sr(sA0)))
    for k in range(8):
        a.I("buffer_load_dwordx4 %s, v5, %s, %s offen sc0 sc1" % (vr(32 + 4 * k, 4), sr(SWS, 4), sr(sT1)))
        if k < 7: a.I("s_add_u32 %s, %s, %d" % (sr(sT1), sr(sT1), SLAB_BYTES))
fin_loads()
a.I("v_and_b32 v6, 31, v1")
a.I("v_mul_u32_u24 v6, 1152, v6")
a.I("v_lshrrev_b32 v7, 5, v1")
a.I("v_lshl_add_u32 v6, v7, 3, v6")
a.I("v_and_b32 v7, 15, v1")
a.I("v_mul_u32_u24 v7, 1152, v7")
a.I("v_lshrrev_b32 v8, 4, v1")
a.I("v_lshl_add_u32 v7, v8, 3, v7")
sO = [8, 9, 10]; sR = [12, 13, 14]
for i in range(3):
    a.I("s_mul_i32 %s, %s, 3" % (sr(sT0), sr(sG)))
    a.I("s_add_u32 %s, %s, %d" % (sr(sT0), sr(sT0), i))
    a.I("s_bfe_u32 %s, %s, 0x20001" % (sr(sT1), sr(sT0)))
    a.I("s_lshl_b32 %s, %s, 3" % (sr(sT1), sr(sT1)))
    a.I("s_and_b32 %s, %s, 1" % (sr(sT2), sr(sT0)))
    a.I("s_lshl_b32 %s, %s, 1" % (sr(sT2), sr(sT2)))
    a.I("s_add_u32 %s, %s, %s" % (sr(sT1), sr(sT1), sr(sT2)))
    a.I("s_lshl_b32 %s, %s, 5" % (sr(sT2), sr(sW)))
    a.I("s_add_u32 %s, %s, %s" % (sr(sT1), sr(sT1), sr(sT2)))
    a.I("s_lshl_b32 %s, %s, 7" % (sr(sT2), sr(sJQ)))
    a.I("s_add_u32 %s, %s, %s" % (sr(sT1), sr(sT1), sr(sT2)))
    a.I("s_lshr_b32 %s, %s, 3" % (sr(sT2), sr(sT0)))
    a.I("s_and_b32 %s, %s, 1" % (sr(sT2), sr(sT2)))
    a.I("s_lshl_b32 %s, %s, 5" % (sr(sT2), sr(sT2)))
    a.I("s_lshl_b32 %s, %s, 6" % (sr(sO[i]), sr(sB)))
    a.I("s_add_u32 %s, %s, %s" % (sr(sT2), sr(sT2), sr(sO[i])))
    a.I("s_mul_i32 %s, %s, 1152" % (sr(sT2), sr(sT2)))
    a.I("s_lshl_b32 %s, %s, 1" % (sr(sT1), sr(sT1)))
    a.I("s_add_u32 %s, %s, %s" % (sr(sO[i]), sr(sT1), sr(sT2)))
    a.I("s_sub_u32 %s, %s, 16" % (sr(sT1), sr(sT0)))
    a.I("s_lshl_b32 %s, %s, 1" % (sr(sT1), sr(sT1)))
    a.I("s_lshl_b32 %s, %s, 4" % (sr(sT2), sr(sJQ)))
    a.I("s_add_u32 %s, %s, %s" % (sr(sT1), sr(sT1), sr(sT2)))
    a.I("s_add_u32 %s, %s, 512" % (sr(sT1), sr(sT1)))
    a.I("s_lshl_b32 %s, %s, 1" % (sr(sT1), sr(sT1)))
    a.I("s_lshl_b32 %s, %s, 4" % (sr(sT2), sr(sW)))
    a.I("s_lshl_b32 %s, %s, 6" % (sr(sR[i]), sr(sB)))
    a.I("s_add_u32 %s, %s, %s" % (sr(sT2), sr(sT2), sr(sR[i])))
    a.I("s_mul_i32 %s, %s, 1152" % (sr(sT2), sr(sT2)))
    a.I("s_add_u32 %s, %s, %s" % (sr(sT1), sr(sT1), sr(sT2)))
    a.I("s_cmp_ge_u32 %s, 16" % sr(sT0))
    a.I("s_cselect_b32 %s, %s, %s" % (sr(sO[i]), sr(sT1), sr(sO[i])))
    a.I("s_cselect_b32 %s, 1, 0" % sr(sR[i]))
a.I("s_branch L_FIN_CHK")
a.L("L_FIN_RETRY")
fin_loads()
a.L("L_FIN_CHK")
a.I("s_waitcnt vmcnt(0)")
a.I("v_xor_b32 v12, %s, v35" % sr(sTAG))
for k in range(1, 8):
    a.I("v_xor_b32 v13, %s, v%d" % (sr(sTAG), 35 + 4 * k))
    a.I("v_or_b32 v12, v13, v12")
a.I("v_cmp_ne_u32 vcc, 0, v12")
a.I("s_add_u32 %s, %s, 1" % (sr(sT3), sr(sT3)))
a.I("s_cmp_gt_u32 %s, 40000" % sr(sT3))
a.I("s_cbranch_scc1 L_FIN_GO")
a.I("s_cbranch_vccnz L_FIN_RETRY")
a.L("L_FIN_GO")
for i in range(3):
    acc = 64 + 2 * i
    for k in range(8):
        r = 32 + 4 * k + i
        if k == 0:
            a.I("v_lshlrev_b32 v%d, 16, v%d" % (acc, r))
            a.I("v_and_b32 v%d, 0xffff0000, v%d" % (acc + 1, r))
        else:
            t = 72 + 2 * ((k + i) % 3)
            a.I("v_lshlrev_b32 v%d, 16, v%d" % (t, r))
            a.I("v_and_b32 v%d, 0xffff0000, v%d" % (t + 1, r))
            a.I("v_pk_add_f32 v[%d:%d], v[%d:%d], v[%d:%d]" % (acc, acc + 1, acc, acc + 1, t, t + 1))
    a.I("v_cvt_pk_bf16_f32 v%d, v%d, v%d" % (80 + i, acc, acc + 1))
    a.I("s_cmp_eq_u32 %s, 1" % sr(sR[i]))
    a.I("s_cselect_b64 vcc, -1, 0")
    a.I("v_cndmask_b32 v%d, v6, v7, vcc" % (84 + i))
    a.I("buffer_store_dword v%d, v%d, %s, %s offen%s" % (80 + i, 84 + i, sr(SOUT, 4), sr(sO[i]), ["", " sc0 sc1", " nt"][OPT["outsc"]]))
a.I("s_and_b32 %s, %s, 31" % (sr(sT0), sr(sID)))
a.I("s_cmp_eq_u32 %s, 0" % sr(sT0))
a.I("s_cbranch_scc0 L_FIN_SKIP")
a.I("s_cmp_eq_u32 %s, 4" % sr(sWAVE))
a.I("s_cbranch_scc0 L_FIN_SKIP")
a.I("s_lshl_b32 %s, %s, 7" % (sr(sT0), sr(sB)))
a.I("v_mov_b32 v4, %s" % sr(sTAG))
a.I("v_mov_b32 v5, 0")
a.I("s_mov_b64 exec, 1")
a.I("buffer_store_dword v4, v5, %s, %s offen sc0 sc1" % (sr(SWS, 4), sr(sT0)))
a.I("s_mov_b64 exec, -1")
a.L("L_FIN_SKIP")
a.L("L_CEND")
if OPT["stamps"] == 4:
    a.I("s_cmp_lt_u32 %s, 4" % sr(sWAVE))
    a.I("s_cbranch_scc0 L_NOCST")
    a.I("s_waitcnt lgkmcnt(0)")
    for i in range(len(CST)):
        a.I("v_writelane_b32 v100, %s, %d" % (sr(CPAIRS[i]), i))
    a.I("s_lshl_b32 %s, %s, 2" % (sr(sT0), sr(sID)))
    a.I("s_add_u32 %s, %s, %s" % (sr(sT0), sr(sT0), sr(sWAVE)))
    a.I("s_lshl_b32 %s, %s, 8" % (sr(sT0), sr(sT0)))
    a.I("s_add_u32 %s, %s, 0x%x" % (sr(sT0), sr(sT0), WS_STAMP + 0x200000))
    a.I("v_lshlrev_b32 v103, 2, v1")
    a.I("buffer_store_dword v100, v103, %s, %s offen" % (sr(SWS, 4), sr(sT0)))
    a.L("L_NOCST")
if OPT["stamps"]:
    a.I("s_memrealtime %s" % sr(sSTAMP + 2 * 9, 2))
    a.I("s_waitcnt lgkmcnt(0) vmcnt(0)")
    a.I("s_lshl_b32 %s, %s, 3" % (sr(sT0), sr(sID)))
    a.I("s_add_u32 %s, %s, %s" % (sr(sT0), sr(sT0), sr(sWAVE)))
    a.I("s_lshl_b32 %s, %s, 6" % (sr(sT0), sr(sT0)))
    a.I("s_add_u32 %s, %s, 0x%x" % (sr(sT0), sr(sT0), WS_STAMP))
    a.I("v_mov_b32 v5, 0")
    a.I("s_mov_b64 exec, 1")
    for i in range(10):
        a.I("v_mov_b32 v4, %s" % sr(sSTAMP + 2 * i))
        a.I("buffer_store_dword v4, v5, %s, %s offen offset:%d" % (sr(SWS, 4), sr(sT0), i * 4))
    a.I("s_waitcnt vmcnt(0)")
a.L("L_END")
a.I("s_endpgm")
final_lines = a.lines

tail = """
.section .rodata,"a"
.p2align 6
.amdhsa_kernel %s
  .amdhsa_next_free_vgpr 256
  .amdhsa_next_free_sgpr 96
  .amdhsa_accum_offset 256
  .amdhsa_group_segment_fixed_size 0
  .amdhsa_kernarg_size 64
  .amdhsa_user_sgpr_count 2
  .amdhsa_user_sgpr_kernarg_segment_ptr 1
  .amdhsa_system_sgpr_workgroup_id_x 1
.end_amdhsa_kernel
""" % KNAME

probs = []
for nm, ls in (("compute", entry_lines + compute_lines + final_lines), ("loader", entry_lines + loader_lines + final_lines)):
    probs += check_hazards(ls, nm)
    probs += check_hazards([l for l in ls if ";slow" not in l], nm + "-fast")
for p in sorted(set(probs)): print("HAZARD", p)
out = "\n".join(hdr + entry_lines + loader_lines + compute_lines + final_lines) + "\n" + tail
if OPT["scx"] == 0: out = out.replace(" sc0 sc1", " sc1")
open(sys.argv[1], "w").write(out)
open(sys.argv[1] + ".bar", "w").write(",".join(n for n, _ in units))
open(sys.argv[1] + ".cst", "w").write(",".join(CST))
print("units", [(n, x) for n, x in units], "lines", out.count("\n"))
```

```python
import sys, struct
from asmlib import *

KNAME = "standalone__gqa_block_cached__near_ridge_kernel"
OPT = dict(dump=0, stamps=0, ntkv=1, ntw=0, ntx=0, ntwo=0, rot=1, tlb=1, pfwo=1, prio=1, lsleep=1, look=2, pk=1, pfa=0, dga=3, initat=4, nowait=0, noload=0, lonly=0, sel=0, spread=1, ntpf=1, pfat=0, nox=0, now=0, scx=0, light=1, dgp=2, finwait=1, oiord=1, tail1=1, outsc=0, lateflag=1, codepf=0, ktrot=0, e1plain=0, kearly=0, kpos=7, kflush=0, oipos=5)
for a_ in sys.argv[2:]:
    k, v = a_.split("="); OPT[k] = int(v)

WS_EPOCH = 0x0
WS_CHK = 0x10000
WS_IMG   = 0x100000
WS_SLAB  = 0x800000
SLAB_BYTES = 24576
IMG_BYTES = 16384
WS_DUMP  = 0x2000000
WS_STAMP = 0x1800000
WS_SIZE  = 0x10000000

SX, SW, SK, SV, SWO, SWS, SOUT = 8, 12, 16, 20, 24, 28, 32
KARG = 36
sKS, sJQ, sB, sH, sWAVE, sLW, sTAG, sID = 52, 53, 54, 55, 56, 57, 58, 59
sT0, sT1, sT2, sT3 = 60, 61, 62, 63
sC = 64
sLW8K = 66
sA0, sA1, sA2, sA3, sA4 = 67, 68, 69, 70, 71
sSTAMP = 72
sKNOW = 92
sBUD = 93
sKNOW2 = 94
sI0, sI1, sI2 = 4, 5, 6

SLOT = lambda i: i * 16384
XB = 131072
MISC = 155648
F_LAND, F_PROG, F_QX, F_MX, F_OR, F_IMG, F_PX = 0, 16, 32, 48, 64, 80, 96
MXD = 1024; LD = 2048
LDS_BYTES = 163840
def f32bits(x): return struct.unpack("<I", struct.pack("<f", x))[0]
SCALE = (128 ** -0.5) * 1.4426950408889634

STEP = {}
for i in range(9): STEP["A%d" % i] = i
STEP["QS"] = 9
for t in range(8): STEP["K%d" % t] = 10 + t
for t in range(8): STEP["V%d" % t] = 18 + t
STEP["ORS"] = 26
for u in range(8): STEP["P%d" % u] = 27 + u
STEP["PE"] = 35
ADDR = {}; SIZE = {}
XG = [XB, XB + 8192, XB + 16384, SLOT(7), SLOT(7) + 8192, SLOT(6)]
for i in range(9):
    ADDR["W%d" % i] = SLOT(i % 6); ADDR["X%d" % i] = XG[i % 6]
for t, s_ in enumerate([3, 4, 7, 5, 6, 0, 2]): ADDR["K%d" % t] = SLOT(s_)
ADDR["K7"] = XB
ADDR["QS"] = SLOT(1)
for t, s_ in enumerate([1, 3, 4, 7, 5, 6, 0, 2]): ADDR["V%d" % t] = SLOT(s_)
for u, s_ in enumerate([1, 3, 4, 0, 1, 3, 7, 4]): ADDR["WO%d" % u] = SLOT(s_)
ADDR["WOR"] = XB
ADDR["ORS"] = SLOT(5)
IMG_ADDR = [SLOT(7), SLOT(2), SLOT(5), SLOT(6)]
alloc = []
def A_(name, addr, size, step): alloc.append((name, addr, size, step))
def need_of(addr, size, upto):
    n = 0
    for (nm, a0, s0, st) in alloc[:upto]:
        if a0 < addr + size and addr < a0 + s0: n = max(n, st + 1)
    return n
NEED = {}
def place(name, addr, size, step):
    NEED[name] = need_of(addr, size, len(alloc)); A_(name, addr, size, step)
for i in range(9):
    place("X%d" % i, ADDR["X%d" % i], 8192, STEP["A%d" % i]); place("W%d" % i, ADDR["W%d" % i], 16384, STEP["A%d" % i])
place("QS", ADDR["QS"], 16384, STEP["QS"])
for t in range(8): place("K%d" % t, ADDR["K%d" % t], 16384, STEP["K%d" % t])
for t in range(8): place("V%d" % t, ADDR["V%d" % t], 16384, STEP["V%d" % t])
place("WOR", ADDR["WOR"], 16384, STEP["P7"])
for u in range(4): place("WO%d" % u, ADDR["WO%d" % u], 16384, STEP["P%d" % u])
place("ORS", ADDR["ORS"], 32768, STEP["ORS"])
place("OI0", IMG_ADDR[0], 16384, STEP["P1"])
for n in range(1, 4): place("OI%d" % n, IMG_ADDR[n], 16384, STEP["P%d" % (2 * n + 1)])
for u in range(4, 8): place("WO%d" % u, ADDR["WO%d" % u], 16384, STEP["P%d" % u])
STEPNAME = {v: k for k, v in STEP.items()}
units = []
for i in range(9): units.append(("A%d" % i, max(NEED["X%d" % i], NEED["W%d" % i])))
for t in range(8): units.append(("K%d" % t, NEED["K%d" % t]))
if OPT["kearly"]:
    ks_ = [u for u in units if u[0] in ["K%d" % t for t in range(OPT["kearly"])]]
    units = [u for u in units if u not in ks_]
    pos = [n for n, _ in units].index("A%d" % OPT["kpos"])
    units = units[:pos] + ks_ + units[pos:]
for t in range(8): units.append(("V%d" % t, NEED["V%d" % t]))
if OPT["pfat"] == 0: units.append(("PF", 0))
else: units.insert(9, ("PF", 0))
units.append(("WOR", NEED["WOR"]))
for u in range(OPT["oipos"]): units.append(("WO%d" % u, NEED["WO%d" % u]))
for n in range(1, 4): units.append(("OI%d" % n, NEED["OI%d" % n]))
for u in range(OPT["oipos"], 8): units.append(("WO%d" % u, NEED["WO%d" % u]))
UIDX = {n: i for i, (n, _) in enumerate(units)}

hdr = ["; Fused GQA block (Q projection + attention + output projection) for gfx950, generated by a hand-written generator.",
       "; 256 workgroups (one per CU), WG id -> ks = id&7, jq = (id>>3)&3, b = id>>5, head h = 4*ks + jq.",
       "; 8 waves: waves 0-3 compute (MFMA / softmax), waves 4-7 stream tiles into LDS with LDS-DMA (one FIFO, LDS flags).",
       ";   A: Q^T = wq_h^T x_b^T ; K: S^T = K Q^T ; softmax with the true (per key-half) max, halves merged exactly;",
       ";   V: O^T = V^T P^T ; O images (bf16) exchanged between the 4 heads of a k-slice through d_ws (epoch-tagged flags);",
       ";   P: partial out^T over the 512-wide k-slice ; partials exchanged (tagged granules) and summed by 8 reducers.",
       "; d_ws word b*128 holds a per-batch epoch that only tells this launch's hand-offs from earlier ones.",
       "; @launch grid=(256,1,1) block=(512,1,1) lds=%d" % LDS_BYTES,
       '.amdgcn_target "amdgcn-amd-amdhsa--gfx950"', ".text", ".globl %s" % KNAME, ".p2align 8",
       ".type %s,@function" % KNAME, "%s:" % KNAME]

a = Asm()
lbl = [0]
def newlbl(p):
    lbl[0] += 1; return "L_%s%d" % (p, lbl[0])
def stamp(idx):
    if OPT["stamps"] == 4 and idx >= 1: return
    if OPT["stamps"] == 3 and 1 <= idx <= 8:
        a.I("s_mov_b32 %s, %s" % (sr(sSTAMP + 2 * idx), sr(sBUD)))
    elif OPT["stamps"]:
        a.I("s_memrealtime %s" % sr(sSTAMP + 2 * idx, 2))
        a.I("s_waitcnt lgkmcnt(0)")

CST = []
CPAIRS = list(range(8, 28, 2)) + list(range(36, 52, 2)) + list(range(74, 92, 2))
def cst(name):
    if OPT["stamps"] == 4 and len(CST) < len(CPAIRS):
        a.I("s_memtime %s" % sr(CPAIRS[len(CST)], 2)); CST.append(name)
def spin(known, need, rd, nvals, vt, pre=None):
    ok = newlbl("OK"); sp = newlbl("SP")
    a.I("s_cmp_ge_u32 %s, %d" % (sr(known), need))
    a.I("s_cbranch_scc1 %s" % ok)
    n0 = len(a.lines)
    a.L(sp)
    a.I(rd)
    a.I("s_waitcnt lgkmcnt(0)")
    if nvals == 4:
        a.I("v_min3_u32 %s, %s, %s, %s" % (vr(vt), vr(vt), vr(vt + 1), vr(vt + 2)))
        a.I("v_min_u32 %s, %s, %s" % (vr(vt), vr(vt), vr(vt + 3)))
        a.I("s_nop 0")
    a.I("v_readfirstlane_b32 %s, %s" % (sr(known), vr(vt)))
    a.I("s_add_i32 %s, %s, -1" % (sr(sBUD), sr(sBUD)))
    a.I("s_cmp_lt_i32 %s, 0" % sr(sBUD))
    a.I("s_cbranch_scc1 %s" % ok)
    a.I("s_cmp_ge_u32 %s, %d" % (sr(known), need))
    a.I("s_cbranch_scc0 %s" % sp)
    for i in range(n0, len(a.lines)): a.lines[i] += " ;slow"
    a.L(ok)

a.I("s_cmp_ge_u32 s2, 256")
a.I("s_cbranch_scc1 L_END")
a.I("s_load_dwordx16 %s, s[0:1], 0" % sr(KARG, 16))
if OPT["stamps"]:
    a.I("s_memrealtime %s" % sr(sSTAMP, 2))
a.I("v_lshrrev_b32 v2, 6, v0")
a.I("v_and_b32 v1, 63, v0")
a.I("s_mov_b32 %s, s2" % sr(sID))
a.I("v_readfirstlane_b32 %s, v2" % sr(sWAVE))
a.I("s_and_b32 %s, s2, 7" % sr(sKS))
a.I("s_lshr_b32 %s, s2, 3" % sr(sJQ))
a.I("s_and_b32 %s, %s, 3" % (sr(sJQ), sr(sJQ)))
a.I("s_lshr_b32 %s, s2, 5" % sr(sB))
a.I("s_lshl_b32 %s, %s, 2" % (sr(sH), sr(sKS)))
a.I("s_add_u32 %s, %s, %s" % (sr(sH), sr(sH), sr(sJQ)))
a.I("v_lshrrev_b32 v2, 4, v1")
a.I("v_and_b32 v3, 15, v1")
a.I("s_mov_b32 %s, 0" % sr(sKNOW))
a.I("s_mov_b32 %s, 0" % sr(sKNOW2))
a.I("s_mov_b32 %s, 0x80000" % sr(sBUD))
a.I("s_cmp_lt_u32 %s, 4" % sr(sWAVE))
a.I("s_cbranch_scc1 L_COMPUTE")
entry_lines = a.lines

pX, pK, pV, pWQ, pWO, pOUT, pDBG, pWS = [KARG + 2 * i for i in range(8)]
def mk_srd(d, p, off_sgpr, size):
    if off_sgpr is None:
        a.I("s_mov_b32 %s, %s" % (sr(d), sr(p)))
        a.I("s_mov_b32 %s, %s" % (sr(d + 1), sr(p + 1)))
    else:
        a.I("s_add_u32 %s, %s, %s" % (sr(d), sr(p), sr(off_sgpr)))
        a.I("s_addc_u32 %s, %s, 0" % (sr(d + 1), sr(p + 1)))
    a.I("s_mov_b32 %s, 0x%x" % (sr(d + 2), size))
    a.I("s_mov_b32 %s, 0x00020000" % sr(d + 3))
def kv_srds():
    a.I("s_lshr_b32 %s, %s, 1" % (sr(sT0), sr(sH)))
    a.I("s_lshl_b32 %s, %s, 4" % (sr(sT1), sr(sB)))
    a.I("s_add_u32 %s, %s, %s" % (sr(sT0), sr(sT0), sr(sT1)))
    a.I("s_lshl_b32 %s, %s, 17" % (sr(sT0), sr(sT0)))
    mk_srd(SK, pK, sT0, 131072)
    mk_srd(SV, pV, sT0, 131072)
    a.I("s_mul_i32 %s, %s, 589824" % (sr(sT0), sr(sKS)))
    mk_srd(SWO, pWO, sT0, 589824)

a = Asm()
q = LdsQ(a)
def ds_read(kind, dst, n, addr, off):
    assert 0 <= off < 65536, off
    a.I("%s %s, %s offset:%d" % (kind, vr(dst, n), vr(addr), off))
    return q.issue()
def rd128(dst, addr, off): return ds_read("ds_read_b128", dst, 4, addr, off)
def rdtr(dst, addr, off): return ds_read("ds_read_b64_tr_b16", dst, 2, addr, off)
def ds_write(kind, addr, src, n, off):
    assert 0 <= off < 65536
    a.I("%s %s, %s offset:%d" % (kind, vr(addr), vr(src, n), off))
    return q.issue()
def mfma32(d, A, B, c0=False):
    a.I("v_mfma_f32_32x32x16_bf16 %s, %s, %s, %s" % (vr(d, 16), vr(A, 4), vr(B, 4), "0" if c0 else vr(d, 16)))
def mfma16(d, A, B, c0=False):
    a.I("v_mfma_f32_16x16x32_bf16 %s, %s, %s, %s" % (vr(d, 4), vr(A, 4), vr(B, 4), "0" if c0 else vr(d, 4)))

vFLP = 0; vFL = 2; vFLO = 3
aX = [4, 5, 6, 7]; aW = [8, 9]; aK = 10; aV = [11, 12, 13, 14]; aWO = [15, 16]; aOI = 17; aRA = 18; aRB = 19
tA, tB, tC, tD, tE, tF = 20, 21, 22, 23, 24, 25
vIMG, vL16 = 26, 27
vFT = 28
vM, vL, vP0, vP1 = 4, 5, 6, 7
LS = 8
RING = 32; QF = 64; KR = 96; OACC = 64; S = 128

def wait_land(unit):
    if OPT["nowait"] and not unit.startswith("OI"): return
    spin(sKNOW, UIDX[unit] + 1, "ds_read_b128 %s, %s offset:%d" % (vr(vFT, 4), vr(vFL), F_LAND), 4, vFT)
def wait_prog(step):
    spin(sKNOW2, STEP[step] + 1, "ds_read_b128 %s, %s offset:%d" % (vr(vFT, 4), vr(vFL), F_PROG), 4, vFT)
def set_prog(step):
    a.I("v_mov_b32 %s, %d" % (vr(vFT), STEP[step] + 1))
    a.I("s_mov_b64 exec, 1")
    ds_write("ds_write_b32", vFLO, vFT, 1, F_PROG)
    a.I("s_mov_b64 exec, -1")
def set_flag(off):
    a.I("v_mov_b32 %s, 1" % vr(vFT))
    a.I("s_mov_b64 exec, 1")
    ds_write("ds_write_b32", vFLO, vFT, 1, off)
    a.I("s_mov_b64 exec, -1")
def wait_partner(off):
    a.I("s_mov_b32 %s, 0" % sr(sT3))
    spin(sT3, 1, "ds_read_b32 %s, %s offset:%d" % (vr(vFT), vr(vFLP), off), 1, vFT)
def wait_all(off):
    a.I("s_mov_b32 %s, 0" % sr(sT3))
    spin(sT3, 1, "ds_read_b128 %s, %s offset:%d" % (vr(vFT, 4), vr(vFL), off), 4, vFT)

a.L("L_COMPUTE")
if OPT["codepf"]:
    a.I("s_cmp_eq_u32 %s, 3" % sr(sWAVE))
    a.I("s_cbranch_scc0 L_NOCPF")
    a.I("s_getpc_b64 s[4:5]")
    a.L("L_PCREF")
    a.I("s_lshr_b32 %s, %s, 3" % (sr(sT0), sr(sID)))
    a.I("s_mul_i32 %s, %s, %d" % (sr(sT0), sr(sT0), OPT["codepf"] * 128))
    a.I("s_add_u32 s4, s4, %s" % sr(sT0))
    a.I("s_addc_u32 s5, s5, 0")
    a.I("v_lshlrev_b32 v9, 7, v1")
    a.I("s_mov_b64 exec, 0x%x" % ((1 << OPT["codepf"]) - 1))
    a.I("global_load_dword v9, v9, s[4:5]")
    a.I("s_mov_b64 exec, -1")
    a.L("L_NOCPF")
if OPT["prio"]: a.I("s_setprio 1")
sQH = sA0
a.I("s_and_b32 %s, %s, 1" % (sr(sLW), sr(sWAVE)))
a.I("s_lshl_b32 %s, %s, 13" % (sr(sLW8K), sr(sLW)))
a.I("s_lshr_b32 %s, %s, 1" % (sr(sQH), sr(sWAVE)))
a.I("s_mov_b32 %s, 0x%x" % (sr(sC), f32bits(SCALE)))
a.I("s_mov_b32 %s, 0x%x" % (sr(sC + 1), f32bits(SCALE)))
hf, r_, c4, mh, l31, L4, L15 = 32, 33, 34, 35, 36, 43, 44
T1, T2, T3 = 37, 38, 39
a.I("v_mov_b32 %s, v2" % vr(L4))
a.I("v_mov_b32 %s, v3" % vr(L15))
a.I("v_lshrrev_b32 %s, 5, v1" % vr(hf))
a.I("v_lshrrev_b32 %s, 2, v3" % vr(r_))
a.I("v_and_b32 %s, 3, v1" % vr(c4))
a.I("v_and_b32 %s, 1, v2" % vr(mh))
a.I("v_and_b32 %s, 31, v1" % vr(l31))
a.I("s_waitcnt lgkmcnt(0)")
mk_srd(SWS, pWS, None, WS_SIZE)
mk_srd(SOUT, pOUT, None, 589824)
a.I("s_mul_i32 %s, %s, %d" % (sr(sA1), sr(sID), IMG_BYTES))
a.I("s_add_u32 %s, %s, 0x%x" % (sr(sA1), sr(sA1), WS_IMG))
a.I("s_mul_i32 %s, %s, %d" % (sr(sA2), sr(sID), SLAB_BYTES))
a.I("s_mul_i32 %s, %s, 6144" % (sr(sT0), sr(sWAVE)))
a.I("s_add_u32 %s, %s, %s" % (sr(sA2), sr(sA2), sr(sT0)))
a.I("s_add_u32 %s, %s, 0x%x" % (sr(sA2), sr(sA2), WS_SLAB))
a.I("s_lshl_b32 %s, %s, 7" % (sr(sT0), sr(sB)))
a.I("v_mov_b32 v31, %s" % sr(sT0))
a.I("buffer_load_dword v16, v31, %s, 0 offen sc1" % sr(SWS, 4))
if OPT["tlb"]:
    kv_srds()
    a.I("v_mov_b32 v254, 0")
    a.I("s_mov_b64 exec, 1")
    l0 = newlbl("TW"); l1 = newlbl("TW"); l2 = newlbl("TW"); le = newlbl("TW")
    a.I("s_cmp_eq_u32 %s, 0" % sr(sWAVE)); a.I("s_cbranch_scc0 %s" % l0)
    a.I("buffer_load_dword v9, v254, %s, 0 offen nt" % sr(SK, 4))
    a.I("buffer_load_dword v9, v254, %s, 0 offen" % sr(SOUT, 4))
    a.I("s_branch %s" % le)
    a.L(l0)
    a.I("s_cmp_eq_u32 %s, 1" % sr(sWAVE)); a.I("s_cbranch_scc0 %s" % l1)
    a.I("buffer_load_dword v9, v254, %s, 0 offen nt" % sr(SV, 4))
    a.I("buffer_load_dword v9, v254, %s, %s offen sc1" % (sr(SWS, 4), sr(sA1)))
    a.I("buffer_load_dword v9, v254, %s, 0 offen sc1" % sr(SWS, 4))
    a.I("s_branch %s" % le)
    a.L(l1)
    a.I("s_cmp_eq_u32 %s, 2" % sr(sWAVE)); a.I("s_cbranch_scc0 %s" % l2)
    a.I("buffer_load_dword v9, v254, %s, 0 offen" % sr(SWO, 4))
    a.I("s_mov_b32 %s, 589820" % sr(sT0))
    a.I("buffer_load_dword v9, v254, %s, %s offen" % (sr(SWO, 4), sr(sT0)))
    a.I("s_branch %s" % le)
    a.L(l2)
    a.I("s_andn2_b32 %s, %s, 7" % (sr(sT1), sr(sID)))
    a.I("s_mul_i32 %s, %s, %d" % (sr(sT1), sr(sT1), SLAB_BYTES))
    a.I("s_add_u32 %s, %s, 0x%x" % (sr(sT1), sr(sT1), WS_SLAB))
    a.I("buffer_load_dword v9, v254, %s, %s offen sc1" % (sr(SWS, 4), sr(sT1)))
    a.I("s_add_u32 %s, %s, %d" % (sr(sT1), sr(sT1), SLAB_BYTES * 8 - 4))
    a.I("buffer_load_dword v9, v254, %s, %s offen sc1" % (sr(SWS, 4), sr(sT1)))
    a.L(le)
    a.I("s_mov_b64 exec, -1")
a.I("v_lshlrev_b32 %s, 7, %s" % (vr(T1), vr(l31)))
a.I("v_add_u32 %s, 0x%x, %s" % (vr(T1), XB, vr(T1)))
a.I("v_bfe_u32 %s, %s, 1, 3" % (vr(T2), vr(l31)))
a.I("v_xor_b32 %s, %s, %s" % (vr(T2), vr(hf), vr(T2)))
a.I("v_lshlrev_b32 %s, 4, %s" % (vr(T2), vr(T2)))
a.I("v_add_u32 %s, %s, %s" % (vr(aX[0]), vr(T1), vr(T2)))
for s in range(1, 4):
    a.I("v_xor_b32 %s, %d, %s" % (vr(aX[s]), 32 * s, vr(aX[0])))
swp = 40
a.I("v_and_b32 %s, 1, %s" % (vr(T1), vr(c4)))
a.I("v_lshlrev_b32 %s, 1, %s" % (vr(T1), vr(T1)))
a.I("v_lshrrev_b32 %s, 1, %s" % (vr(T2), vr(c4)))
a.I("v_or_b32 %s, %s, %s" % (vr(swp), vr(T1), vr(T2)))
def tr_addr(dst, rowlane, cq, blk, extra_sgpr=None):
    a.I("v_xor_b32 %s, %s, %s" % (vr(T1), blk, vr(r_)))
    a.I("v_lshlrev_b32 %s, 6, %s" % (vr(T1), vr(T1)))
    a.I("v_lshrrev_b32 %s, 1, %s" % (vr(T2), vr(cq)))
    a.I("v_lshl_add_u32 %s, %s, 1, %s" % (vr(T2), vr(mh), vr(T2)))
    a.I("v_lshl_add_u32 %s, %s, 4, %s" % (vr(T1), vr(T2), vr(T1)))
    a.I("v_and_b32 %s, 1, %s" % (vr(T2), vr(cq)))
    a.I("v_lshl_add_u32 %s, %s, 3, %s" % (vr(T1), vr(T2), vr(T1)))
    a.I("v_lshl_add_u32 %s, %s, 8, %s" % (vr(dst), vr(rowlane), vr(T1)))
    if extra_sgpr is not None:
        a.I("v_add_u32 %s, %s, %s" % (vr(dst), sr(extra_sgpr), vr(dst)))
rowA = 41
a.I("v_lshl_add_u32 %s, %s, 3, %s" % (vr(rowA), vr(hf), vr(r_)))
tr_addr(aW[0], rowA, swp, sr(sWAVE))
a.I("v_xor_b32 %s, %s, %s" % (vr(T1), vr(hf), vr(L15)))
a.I("v_lshlrev_b32 %s, 4, %s" % (vr(T1), vr(T1)))
a.I("v_lshl_add_u32 %s, %s, 8, %s" % (vr(aK), vr(l31), vr(T1)))
a.I("v_add_u32 %s, %s, %s" % (vr(aK), sr(sLW8K), vr(aK)))
rowB = 42
a.I("v_lshl_add_u32 %s, %s, 2, %s" % (vr(rowB), vr(hf), vr(r_)))
for i in range(4):
    a.I("s_lshl_b32 %s, %s, 1" % (sr(sT0), sr(sLW)))
    a.I("s_xor_b32 %s, %s, %d" % (sr(sT0), sr(sT0), i))
    tr_addr(aV[i], rowB, c4, sr(sT0), sLW8K)
tr_addr(aWO[0], rowB, c4, sr(sWAVE))
a.I("v_lshlrev_b32 %s, 4, v1" % vr(vL16))
a.I("s_lshl_b32 %s, %s, 13" % (sr(sT0), sr(sQH)))
a.I("v_add_u32 %s, %s, %s" % (vr(aOI), sr(sT0), vr(vL16)))
a.I("v_lshrrev_b32 %s, 1, %s" % (vr(T1), vr(L4)))
a.I("v_lshlrev_b32 %s, 4, %s" % (vr(T1), vr(T1)))
a.I("v_lshl_add_u32 %s, %s, 2, %s" % (vr(T1), vr(mh), vr(T1)))
a.I("v_add_u32 %s, %s, %s" % (vr(T1), vr(T1), vr(r_)))
a.I("v_lshlrev_b32 %s, 5, %s" % (vr(T1), vr(T1)))
a.I("v_lshl_add_u32 %s, %s, 3, %s" % (vr(T1), vr(c4), vr(T1)))
a.I("v_add_u32 %s, 0x%x, %s" % (vr(aRA), ADDR["WOR"], vr(T1)))
a.I("v_lshrrev_b32 %s, 1, %s" % (vr(T1), vr(L4)))
a.I("v_lshlrev_b32 %s, 10, %s" % (vr(T1), vr(T1)))
a.I("v_lshl_add_u32 %s, %s, 5, %s" % (vr(T2), vr(mh), vr(L15)))
a.I("v_lshl_add_u32 %s, %s, 4, %s" % (vr(T1), vr(T2), vr(T1)))
a.I("s_lshl_b32 %s, %s, 13" % (sr(sT0), sr(sQH)))
a.I("s_lshl_b32 %s, %s, 8" % (sr(sT1), sr(sLW)))
a.I("s_add_u32 %s, %s, %s" % (sr(sT0), sr(sT0), sr(sT1)))
a.I("v_add_u32 %s, %s, %s" % (vr(aRB), sr(sT0), vr(T1)))
a.I("s_lshl_b32 %s, %s, 12" % (sr(sT0), sr(sLW)))
a.I("v_add_u32 %s, %s, %s" % (vr(vIMG), sr(sT0), vr(aOI)))
a.I("v_mov_b32 %s, 0x%x" % (vr(vFL), MISC))
a.I("s_lshl_b32 %s, %s, 2" % (sr(sT0), sr(sWAVE)))
a.I("s_add_u32 %s, %s, 0x%x" % (sr(sT0), sr(sT0), MISC))
a.I("v_mov_b32 %s, %s" % (vr(vFLO), sr(sT0)))
a.I("s_xor_b32 %s, %s, 4" % (sr(sT0), sr(sT0)))
a.I("v_mov_b32 %s, %s" % (vr(vFLP), sr(sT0)))
a.I("v_add_u32 %s, 0x%x, %s" % (vr(tA), SLOT(3), vr(aW[0])))
aX2 = [tC, tD, tE, tF]
for s_ in range(4):
    a.I("v_subrev_u32 %s, 0x%x, %s" % (vr(aX2[s_]), XB - SLOT(6), vr(aX[s_])))
a.I("s_barrier")
if OPT["lonly"]:
    a.I("v_mov_b32 %s, 1000" % vr(vFT))
    a.I("ds_write_b32 %s, %s offset:%d" % (vr(vFLO), vr(vFT), F_PROG))
    a.I("s_waitcnt lgkmcnt(0) vmcnt(0)")
    a.I("s_endpgm")
stamp(1)

def dump_regs(base, n, slot_index):
    a.I("s_lshl_b32 %s, %s, 2" % (sr(sT0), sr(sID)))
    a.I("s_add_u32 %s, %s, %s" % (sr(sT0), sr(sT0), sr(sWAVE)))
    a.I("s_mul_i32 %s, %s, %d" % (sr(sT0), sr(sT0), n * 256))
    a.I("s_add_u32 %s, %s, 0x%x" % (sr(sT0), sr(sT0), WS_DUMP + slot_index * 0x2000000))
    for j in range(0, n, 4):
        a.I("buffer_store_dwordx4 %s, %s, %s, %s offen" % (vr(base + j, 4), vr(vL16), sr(SWS, 4), sr(sT0)))
        a.I("s_add_u32 %s, %s, 1024" % (sr(sT0), sr(sT0)))
    a.I("s_waitcnt vmcnt(0)")

a.C("==== phase A ====")
QACC = 128; BR = KR; NG = 36
tick = {}
def a_reads(n, part):
    i, s = divmod(n, 4)
    xa = ADDR["X%d" % i]; wo_ = ADDR["W%d" % i]
    if xa >= XB: xo = xa - XB; ax = aX
    else: xo = xa - SLOT(6); ax = aX2
    hi = wo_ >= SLOT(3)
    aw = tA if hi else aW[0]
    if hi: wo_ -= SLOT(3)
    if part == 0:
        if s == 0:
            wait_land("A%d" % i)
            if i % 2 == 0: cst("A%d" % i)
        base = RING + 4 * (n % 4); o = wo_ + 4096 * s
        rdtr(base, aw, o)
        rdtr(base + 2, aw, o + 1024)
        tick[(n, 0)] = rd128(BR + 8 * (n % 4), ax[s], xo)
    else:
        tick[(n, 1)] = rd128(BR + 8 * (n % 4) + 4, ax[s], xo + 4096)
        if s == 3: set_prog("A%d" % i)
DG = OPT["dga"]
for n in range(DG):
    a_reads(n, 0); a_reads(n, 1)
for n in range(NG):
    q.wait(tick[(n, 0)])
    mfma32(QACC, RING + 4 * (n % 4), BR + 8 * (n % 4), c0=(n == 0))
    if n + DG < NG: a_reads(n + DG, 0)
    q.wait(tick[(n, 1)])
    mfma32(QACC + 16, RING + 4 * (n % 4), BR + 8 * (n % 4) + 4, c0=(n == 0))
    if n + DG < NG: a_reads(n + DG, 1)
stamp(2)
cst("Aend")
a.I("s_lshl_b32 %s, %s, 11" % (sr(sT0), sr(sWAVE)))
a.I("s_add_u32 %s, %s, %d" % (sr(sT0), sr(sT0), ADDR["QS"]))
a.I("v_add_u32 %s, %s, %s" % (vr(tA), sr(sT0), vr(vL16)))
a.I("v_add_u32 %s, 0x%x, %s" % (vr(tB), ADDR["QS"], vr(aOI)))
wait_prog(STEPNAME[NEED["QS"] - 1])
a.nop(6)
if OPT["dump"] == 1: dump_regs(QACC, 32, 0)
QP = 32
for t in range(2):
    for j in range(8):
        a.I("v_cvt_pk_bf16_f32 %s, %s, %s" % (vr(QP + 8 * t + j), vr(QACC + 16 * t + 2 * j), vr(QACC + 16 * t + 2 * j + 1)))
    for j in range(2):
        ds_write("ds_write_b128", tA, QP + 8 * t + 4 * j, 4, t * 8192 + j * 1024)
set_flag(F_QX)
a.I("v_mov_b32 %s, 0xff800000" % vr(vM))

a.C("==== phase K ====")
D = 7
tick = {}
def max_ops(t):
    return ["v_max3_f32 %s, %s, %s, %s" % (vr(vM), vr(S + 16 * t + 2 * j), vr(S + 16 * t + 2 * j + 1), vr(vM)) for j in range(8)]
pend = []
qtk = None
def k_mfma(m):
    global pend, qtk
    if m == 0:
        wait_all(F_QX)
        qtk = [rd128(QF + 4 * sgm, tB, sgm * 1024) for sgm in range(8)]
        set_prog("QS")
    t, s = divmod(m, 8)
    q.wait(tick[m])
    if m < 8: q.wait(qtk[m])
    mfma32(S + 16 * t, KR + 4 * (m % 8), QF + 4 * s, c0=(s == 0))
    if s == 2 and t >= 1: pend = max_ops(t - 1)
    if s >= 3 and pend:
        a.I(pend.pop(0)); a.I(pend.pop(0))
mdone = 0
for n in range(64 + D):
    m = n - D
    while mdone <= m and mdone < 64:
        k_mfma(mdone); mdone += 1
    if n < 64:
        t, s = divmod(n, 8)
        if s == 0:
            if t == 7 and OPT["kflush"]:
                while mdone < n:
                    k_mfma(mdone); mdone += 1
            wait_land("K%d" % t)
            if t % 4 == 0 or t == 7: cst("K%d" % t)
            a.I("v_add_u32 %s, 0x%x, %s" % (vr(tC), ADDR["K%d" % t], vr(aK)))
        tmp = tD if n % 2 == 0 else tE
        if s == 0:
            tick[n] = rd128(KR + 4 * (n % 8), tC, 0)
        else:
            a.I("v_xor_b32 %s, %d, %s" % (vr(tmp), 32 * s, vr(tC)))
            tick[n] = rd128(KR + 4 * (n % 8), tmp, 0)
        if s == 7: set_prog("K%d" % t)
assert not pend
stamp(3)
cst("Kend")
a.I("s_waitcnt vmcnt(0)")
a.I("v_readfirstlane_b32 %s, v16" % sr(sTAG))
a.I("s_lshl_b32 %s, %s, 8" % (sr(sT0), sr(sWAVE)))
a.I("s_add_u32 %s, %s, %d" % (sr(sT0), sr(sT0), MISC + MXD))
a.I("v_lshlrev_b32 %s, 2, v1" % vr(tA))
a.I("v_add_u32 %s, %s, %s" % (vr(tA), sr(sT0), vr(tA)))
a.I("v_xor_b32 %s, 0x100, %s" % (vr(tB), vr(tA)))
a.nop(8)
for s_ in max_ops(7): a.I(s_)
if OPT["dump"] == 2: dump_regs(S, 128, 0)

a.C("==== softmax ====")
a.I("s_add_u32 %s, %s, 1" % (sr(sTAG), sr(sTAG)))
a.I("v_mov_b32 %s, %s" % (vr(tC), vr(vM)))
a.nop(2)
a.I("v_permlane32_swap_b32 %s, %s" % (vr(tC), vr(vM)))
a.I("v_max_f32 %s, %s, %s" % (vr(vM), vr(tC), vr(vM)))
ds_write("ds_write_b32", tA, vM, 1, 0)
a.I("v_mov_b32 %s, 0" % vr(LS))
a.I("v_mov_b32 %s, 0" % vr(LS + 1))
a.I("v_mul_f32 %s, %s, %s" % (vr(vP0), sr(sC), vr(vM)))
a.I("v_sub_f32 %s, 0, %s" % (vr(vP0), vr(vP0)))
a.I("v_mov_b32 %s, %s" % (vr(vP1), vr(vP0)))
for t in range(8):
    b0 = S + 16 * t
    for j in range(8):
        a.I("v_pk_fma_f32 %s, %s, %s, %s" % (vr(b0 + 2 * j, 2), vr(b0 + 2 * j, 2), sr(sC, 2), vr(vP0, 2)))
    for j in range(16):
        a.I("v_exp_f32 %s, %s" % (vr(b0 + j), vr(b0 + j)))
    a.I("s_nop 0")
    for j in range(8):
        a.I("v_pk_add_f32 %s, %s, %s" % (vr(LS, 2), vr(LS, 2), vr(b0 + 2 * j, 2)))
    for j in range(8):
        a.I("v_cvt_pk_bf16_f32 %s, %s, %s" % (vr(b0 + j), vr(b0 + 2 * j), vr(b0 + 2 * j + 1)))
a.I("v_add_f32 %s, %s, %s" % (vr(vL), vr(LS), vr(LS + 1)))
a.I("v_mov_b32 %s, %s" % (vr(tC), vr(vL)))
a.nop(2)
a.I("v_permlane32_swap_b32 %s, %s" % (vr(tC), vr(vL)))
a.I("v_add_f32 %s, %s, %s" % (vr(vL), vr(tC), vr(vL)))
ds_write("ds_write_b32", tA, vL, 1, LD - MXD)
stamp(4)
cst("SMend")

a.C("==== phase V ====")
tick = {}
tV = [tC, tD, tE, tF]
for n in range(64 + D):
    m = n - D
    if m >= 0:
        t, rem = divmod(m, 8); u, ai = divmod(rem, 4)
        q.wait(tick[m])
        mfma32(OACC + 16 * ai, RING + 4 * (m % 8), S + 16 * t + 4 * u, c0=(m < 4))
    if n < 64:
        t, rem = divmod(n, 8); u, ai = divmod(rem, 4)
        if rem == 0:
            wait_land("V%d" % t)
            if t % 4 == 0 or t == 7: cst("V%d" % t)
            for i in range(4):
                a.I("v_add_u32 %s, 0x%x, %s" % (vr(tV[i]), ADDR["V%d" % t], vr(aV[i])))
        o = 4096 * u
        rdtr(RING + 4 * (n % 8), tV[ai], o)
        tick[n] = rdtr(RING + 4 * (n % 8) + 2, tV[ai], o + 2048)
        if rem == 7: set_prog("V%d" % t)
stamp(5)
cst("Vend")
a.C("==== O reduce ====")
a.I("s_lshl_b32 %s, %s, 13" % (sr(sT0), sr(sWAVE)))
a.I("s_add_u32 %s, %s, %d" % (sr(sT0), sr(sT0), ADDR["ORS"]))
a.I("v_add_u32 %s, %s, %s" % (vr(tA), sr(sT0), vr(vL16)))
a.I("v_xor_b32 %s, 0x2000, %s" % (vr(tA + 0 + 5 - 5 + 4), vr(tA)))
a.I("v_add_u32 %s, 0x%x, %s" % (vr(tC), IMG_ADDR[0], vr(vIMG)))
assert (ADDR["ORS"] // 8192) % 2 == 0
wait_prog(STEPNAME[max(NEED["ORS"], NEED["OI0"]) - 1])
a.nop(8)
for j in range(8):
    ds_write("ds_write_b128", tA, OACC + 32 + 4 * j, 4, j * 1024)
set_flag(F_OR)
wait_partner(F_OR)
cst("ORp")
tk = []
tkm = ds_read("ds_read_b32", vP0, 1, tB, 0)
tkl = ds_read("ds_read_b32", vP1, 1, tB, LD - MXD)
for j in range(8):
    tk.append(rd128(RING + 4 * j, tE, j * 1024))
set_prog("ORS")
q.wait(tkl)
a.I("v_max_f32 %s, %s, %s" % (vr(tD), vr(vP0), vr(vM)))
a.I("v_sub_f32 %s, %s, %s" % (vr(vM), vr(vM), vr(tD)))
a.I("v_sub_f32 %s, %s, %s" % (vr(vP0), vr(vP0), vr(tD)))
a.I("v_mul_f32 %s, %s, %s" % (vr(vM), sr(sC), vr(vM)))
a.I("v_mul_f32 %s, %s, %s" % (vr(vP0), sr(sC), vr(vP0)))
a.I("v_exp_f32 %s, %s" % (vr(vM), vr(vM)))
a.I("v_exp_f32 %s, %s" % (vr(vP0), vr(vP0)))
a.I("s_nop 0")
a.I("v_mul_f32 %s, %s, %s" % (vr(vL), vr(vL), vr(vM)))
a.I("v_fma_f32 %s, %s, %s, %s" % (vr(vL), vr(vP1), vr(vP0), vr(vL)))
a.I("v_rcp_f32 %s, %s" % (vr(vL), vr(vL)))
a.I("s_nop 0")
a.I("v_mul_f32 %s, %s, %s" % (vr(LS), vr(vP0), vr(vL)))
a.I("v_mul_f32 %s, %s, %s" % (vr(vP0), vr(vM), vr(vL)))
a.I("v_mov_b32 %s, %s" % (vr(LS + 1), vr(LS)))
a.I("v_mov_b32 %s, %s" % (vr(vP1), vr(vP0)))
PK = 96
for j in range(8):
    q.wait(tk[j])
    for h2 in range(2):
        d = OACC + 4 * j + 2 * h2
        a.I("v_pk_mul_f32 %s, %s, %s" % (vr(d, 2), vr(d, 2), vr(vP0, 2)))
        a.I("v_pk_fma_f32 %s, %s, %s, %s" % (vr(d, 2), vr(RING + 4 * j + 2 * h2, 2), vr(LS, 2), vr(d, 2)))
    for h2 in range(2):
        d = OACC + 4 * j + 2 * h2
        a.I("v_cvt_pk_bf16_f32 %s, %s, %s" % (vr(PK + 2 * j + h2), vr(d), vr(d + 1)))
    if j % 2 == 1:
        jj = j // 2
        a.I("buffer_store_dwordx4 %s, %s, %s, %s offen offset:%d%s" % (vr(PK + 4 * jj, 4), vr(vIMG), sr(SWS, 4), sr(sA1), jj * 1024, "" if OPT["e1plain"] else " sc0 sc1"))
        ds_write("ds_write_b128", tC, PK + 4 * jj, 4, jj * 1024)
set_flag(F_IMG)
a.I("v_xor_b32 %s, %s, %s" % (vr(tA), sr(sTAG), vr(PK)))
for j in range(1, 16):
    a.I("v_xor_b32 %s, %s, %s" % (vr(tA), vr(PK + j), vr(tA)))
a.I("s_lshl_b32 %s, %s, 2" % (sr(sT0), sr(sID)))
a.I("s_add_u32 %s, %s, %s" % (sr(sT0), sr(sT0), sr(sWAVE)))
a.I("s_lshl_b32 %s, %s, 8" % (sr(sT0), sr(sT0)))
a.I("s_add_u32 %s, %s, 0x%x" % (sr(sT0), sr(sT0), WS_CHK))
a.I("v_lshrrev_b32 %s, 2, %s" % (vr(tB), vr(vL16)))
a.I("buffer_store_dword %s, %s, %s, %s offen sc0 sc1" % (vr(tA), vr(tB), sr(SWS, 4), sr(sT0)))
if OPT["dump"] == 3: dump_regs(OACC, 32, 0)
stamp(6)
cst("ORend")

a.C("==== phase P ====")
tick = {}
tWO = tC; tOI = tE; tRB = tF
PACC = 160; RACC = 192; RA = [196, 200]; RB = [204, 208]
BRP = 96
def p_reads(n, part):
    step, kk = divmod(n, 4)
    hn, hh = divmod(step, 2)
    blk = 2 * hh + (kk >> 1); u = kk & 1
    wt = "WO%d" % step
    if part == 0:
        if kk == 0:
            if step == 0:
                wait_all(F_IMG)
                wait_land("WO0")
            else:
                wait_land(wt)
            if hh == 0 and hn > 0: wait_land("OI%d" % hn)
            cst("P%d" % step)
            a.I("v_add_u32 %s, 0x%x, %s" % (vr(tWO), ADDR[wt], vr(aWO[0])))
            if hh == 0:
                a.I("v_add_u32 %s, 0x%x, %s" % (vr(tOI), IMG_ADDR[hn], vr(vL16)))
                a.I("v_add_u32 %s, 0x%x, %s" % (vr(tRB), IMG_ADDR[hn], vr(aRB)))
        base = RING + 4 * (n % 4); o = 8192 * (kk >> 1) + 4096 * u
        rdtr(base, tWO, o)
        rdtr(base + 2, tWO, o + 2048)
        tick[(n, 0)] = rd128(BRP + 8 * (n % 4), tOI, (blk * 2 + u) * 1024)
    else:
        tick[(n, 1)] = rd128(BRP + 8 * (n % 4) + 4, tOI, 8192 + (blk * 2 + u) * 1024)
        if u == 0:
            ri = (n // 2) % 2
            o = hn * 4096 + blk * 1024
            rdtr(RA[ri], aRA, o)
            rdtr(RA[ri] + 2, aRA, o + 256)
            tick[(n, 2)] = rd128(RB[ri], tRB, blk * 2048)
        if kk == 3 and step < 3: set_prog("P%d" % step)
DG = OPT["dgp"]; NG = 32
for n in range(DG):
    p_reads(n, 0); p_reads(n, 1)
for n in range(NG):
    q.wait(tick[(n, 0)])
    mfma32(PACC, RING + 4 * (n % 4), BRP + 8 * (n % 4), c0=(n == 0))
    if n + DG < NG: p_reads(n + DG, 0)
    q.wait(tick[(n, 1)])
    mfma32(PACC + 16, RING + 4 * (n % 4), BRP + 8 * (n % 4) + 4, c0=(n == 0))
    if n % 2 == 0:
        q.wait(tick[(n, 2)])
        ri = (n // 2) % 2
        mfma16(RACC, RA[ri], RB[ri], c0=(n == 0))
    if n + DG < NG: p_reads(n + DG, 1)
stamp(7)
cst("Pend")
GS = 64
for g in range(6): a.I("v_mov_b32 %s, %s" % (vr(GS + 4 * g + 3), sr(sTAG)))
a.I("s_add_u32 %s, %s, 4096" % (sr(sT2), sr(sA2)))
a.nop(5)
def spos(d): return GS + 4 * (d // 3) + (d % 3)
srcs = [(PACC + 2 * j, PACC + 2 * j + 1) for j in range(16)] + [(RACC, RACC + 1), (RACC + 2, RACC + 3)]
for d, (x0, x1) in enumerate(srcs):
    a.I("v_cvt_pk_bf16_f32 %s, %s, %s" % (vr(spos(d)), vr(x0), vr(x1)))
    if d % 3 == 2:
        g = d // 3
        a.I("buffer_store_dwordx4 %s, %s, %s, %s offen offset:%d sc0 sc1" % (vr(GS + 4 * g, 4), vr(vL16), sr(SWS, 4), sr(sA2 if g < 4 else sT2), (g % 4) * 1024))
set_prog("PE")
stamp(8)
a.I("s_branch L_CEND")
compute_lines = a.lines

a = Asm()
a.L("L_LOADER")
T1, T2 = 30, 31
vX = [4, 5]; vW = [6, 7, 8, 9]; vK = [10, 11, 12, 13]; vV = 14; vWO = [15, 16, 17, 18]; vWOR = [19, 20, 21, 22]; vLn = 23
vFLl = 24; vFLOl = 25
vFTl = 104
sL4 = sLW
a.I("s_sub_u32 %s, %s, 4" % (sr(sL4), sr(sWAVE)))
a.I("s_lshl_b32 %s, %s, 12" % (sr(sLW8K), sr(sL4)))
a.I("v_lshlrev_b32 %s, 2, v1" % vr(T1))
a.I("v_add_u32 %s, 0x%x, %s" % (vr(T1), MISC, vr(T1)))
a.I("v_mov_b32 %s, 0" % vr(T2))
a.I("s_cmp_eq_u32 %s, 0" % sr(sL4))
a.I("s_cbranch_scc0 L_NOINIT")
a.I("ds_write_b32 %s, %s" % (vr(T1), vr(T2)))
a.L("L_NOINIT")
for i in range(2):
    a.I("v_lshrrev_b32 %s, 3, v1" % vr(T1))
    a.I("v_mul_u32_u24 %s, 1152, %s" % (vr(T1), vr(T1)))
    a.I("v_and_b32 %s, 7, v1" % vr(T2))
    a.I("v_xor_b32 %s, %s, v2" % (vr(T2), vr(T2)))
    if i & 1: a.I("v_xor_b32 %s, 4, %s" % (vr(T2), vr(T2)))
    a.I("v_lshl_add_u32 %s, %s, 4, %s" % (vr(T1), vr(T2), vr(T1)))
    a.I("v_add_u32 %s, %d, %s" % (vr(vX[i]), i * 8192, vr(T1)))
a.I("v_lshlrev_b32 %s, 2, v2" % vr(T2))
a.I("v_xor_b32 %s, %s, v3" % (vr(T2), vr(T2)))
a.I("v_lshlrev_b32 %s, 4, %s" % (vr(T2), vr(T2)))
a.I("v_lshl_add_u32 %s, v2, 13, %s" % (vr(T1), vr(T2)))
for i in range(4):
    a.I("v_add_u32 %s, %d, %s" % (vr(vW[i]), i * 31744, vr(T1)))
a.I("s_mul_i32 s7, %s, %d" % (sr(sJQ), OPT["ktrot"]))
a.I("s_add_u32 s7, s7, %s" % sr(sB))
a.I("s_cmp_ge_u32 s7, 9")
a.I("s_cselect_b32 %s, 9, 0" % sr(sT1))
a.I("s_sub_u32 s7, s7, %s" % sr(sT1))
a.I("s_mul_i32 %s, %s, 18432" % (sr(sA0), sr(sL4)))
a.I("s_lshl_b32 %s, %s, 17" % (sr(sA1), sr(sL4)))
a.I("s_waitcnt lgkmcnt(0)")
a.I("s_mul_i32 %s, %s, 73728" % (sr(sT0), sr(sB)))
mk_srd(SX, pX, sT0, 73728)
a.I("s_lshl_b32 %s, %s, 8" % (sr(sT0), sr(sH)))
mk_srd(SW, pWQ, sT0, 575 * 8192 + 256)
issued = []
published = [0]
if OPT["pfa"]:
    a.I("s_lshl_b32 %s, %s, 2" % (sr(sT0), sr(sJQ)))
    a.I("s_add_u32 %s, %s, %s" % (sr(sT0), sr(sT0), sr(sL4)))
    a.I("s_mul_i32 %s, %s, %d" % (sr(sT0), sr(sT0), 36 * 128))
    a.I("v_lshlrev_b32 v40, 7, v1")
    a.I("v_lshrrev_b32 v42, 1, v1")
    a.I("v_lshlrev_b32 v42, 13, v42")
    a.I("v_and_b32 v43, 1, v1")
    a.I("v_lshl_add_u32 v42, v43, 7, v42")
    a.I("s_mul_i32 %s, %s, 72" % (sr(sT1), sr(sB)))
    a.I("s_mul_i32 %s, %s, 18" % (sr(sT2), sr(sL4)))
    a.I("s_add_u32 %s, %s, %s" % (sr(sT1), sr(sT1), sr(sT2)))
    a.I("s_lshl_b32 %s, %s, 13" % (sr(sT1), sr(sT1)))
    a.I("s_mov_b32 exec_lo, -1"); a.I("s_mov_b32 exec_hi, 0xf")
    if OPT["pfa"] == 1:
        a.I("buffer_load_dword v41, v42, %s, %s offen%s" % (sr(SW, 4), sr(sT1), " nt" if OPT["ntpf"] else ""))
    if OPT["pfa"] == 3:
        a.I("s_mov_b32 %s, %s" % (sr(sI2), sr(sT0)))
    else:
        a.I("buffer_load_dword v41, v40, %s, %s offen%s" % (sr(SX, 4), sr(sT0), " nt" if OPT["ntpf"] else ""))
    a.I("s_mov_b64 exec, -1")
if OPT["pk"]:
    a.I("s_and_b32 %s, %s, 1" % (sr(sT0), sr(sJQ)))
    a.I("s_cmp_eq_u32 %s, 1" % sr(sT0))
    a.I("s_cbranch_scc0 L_NOPK")
    a.I("s_lshr_b32 %s, %s, 1" % (sr(sT0), sr(sH)))
    a.I("s_lshl_b32 %s, %s, 4" % (sr(sT1), sr(sB)))
    a.I("s_add_u32 %s, %s, %s" % (sr(sT0), sr(sT0), sr(sT1)))
    a.I("s_lshl_b32 %s, %s, 17" % (sr(sT0), sr(sT0)))
    mk_srd(SK, pK, sT0, 131072)
    a.I("v_lshlrev_b32 v40, 7, v1")
    a.I("s_lshl_b32 %s, %s, 14" % (sr(sT0), sr(sL4)))
    if OPT["pk"] == 2:
        a.I("s_lshl_b32 %s, %s, 1" % (sr(sT0), sr(sT0)))
    elif OPT["rot"]:
        a.I("s_add_u32 %s, %s, 65536" % (sr(sT0), sr(sT0)))
    for j in range(OPT["pk"] * 2):
        a.I("buffer_load_dword v41, v40, %s, %s offen%s" % (sr(SK, 4), sr(sT0), " nt" if OPT["ntkv"] else ""))
        a.I("s_add_u32 %s, %s, 8192" % (sr(sT0), sr(sT0)))
    a.L("L_NOPK")
def dma(voff, srd, soff, imm, flags=""):
    if OPT["noload"]:
        a.I("s_nop 0"); return
    a.I("buffer_load_dwordx4 %s, %s, %s offen offset:%d%s lds" % (vr(voff), sr(srd, 4), sr(soff), imm, flags))
def late_setup():
    a.I("v_lshl_add_u32 %s, v2, 8, %s" % (vr(vV), vr(T2)))
    a.I("v_mul_u32_u24 %s, 1152, v2" % vr(T1))
    a.I("v_add_u32 %s, %s, %s" % (vr(T1), vr(T1), vr(T2)))
    for i in range(4):
        a.I("v_add_u32 %s, %d, %s" % (vr(vWO[i]), i * 3584, vr(T1)))
    for i in range(4):
        a.I("v_add_u32 %s, %d, v2" % (vr(T1), 4 * i))
        a.I("v_xor_b32 %s, %s, v3" % (vr(T1), vr(T1)))
        a.I("v_lshlrev_b32 %s, 4, %s" % (vr(T1), vr(T1)))
        a.I("v_lshl_add_u32 %s, v2, 8, %s" % (vr(vK[i]), vr(T1)))
    a.I("v_lshrrev_b32 %s, 1, v1" % vr(T1))
    a.I("v_mul_u32_u24 %s, 1152, %s" % (vr(T1), vr(T1)))
    a.I("v_and_b32 %s, 1, v1" % vr(T2))
    a.I("v_lshl_add_u32 %s, %s, 4, %s" % (vr(T1), vr(T2), vr(T1)))
    for i in range(4):
        a.I("v_add_u32 %s, %d, %s" % (vr(vWOR[i]), i * 35840, vr(T1)))
    a.I("v_lshlrev_b32 %s, 4, v1" % vr(vLn))
    kv_srds()
    mk_srd(SOUT, pOUT, None, 589824)
    if OPT["rot"]:
        a.I("s_and_b32 %s, %s, 1" % (sr(sT0), sr(sJQ)))
        a.I("s_lshl_b32 %s, %s, 16" % (sr(sT0), sr(sT0)))
        a.I("s_add_u32 %s, %s, %s" % (sr(sA3), sr(sT0), sr(sLW8K)))
    else:
        a.I("s_mov_b32 %s, %s" % (sr(sA3), sr(sLW8K)))
    a.I("s_xor_b32 %s, %s, 0x10000" % (sr(sA4), sr(sA3)))
    a.I("v_mov_b32 %s, 0x%x" % (vr(vFLl), MISC))
    a.I("s_lshl_b32 %s, %s, 2" % (sr(sT0), sr(sL4)))
    a.I("s_add_u32 %s, %s, 0x%x" % (sr(sT0), sr(sT0), MISC + F_LAND))
    a.I("v_mov_b32 %s, %s" % (vr(vFLOl), sr(sT0)))
def init_setup():
    mk_srd(SWS, pWS, None, WS_SIZE)
    a.I("s_lshl_b32 %s, %s, 7" % (sr(sT0), sr(sB)))
    a.I("v_mov_b32 v38, %s" % sr(sT0))
    a.I("buffer_load_dword v39, v38, %s, 0 offen sc1" % sr(SWS, 4)); issued.append("EPOCH")
def issue(unit):
    a.C("issue " + unit)
    if unit[0] == "A":
        i = int(unit[1:])
        a.I("s_add_u32 %s, s7, %d" % (sr(sT0), i))
        a.I("s_cmp_ge_u32 %s, 9" % sr(sT0))
        a.I("s_cselect_b32 %s, 9, 0" % sr(sT1))
        a.I("s_sub_u32 %s, %s, %s" % (sr(sA2), sr(sT0), sr(sT1)))
        a.I("s_lshl_b32 %s, %s, 7" % (sr(sT0), sr(sA2)))
        a.I("s_lshr_b32 %s, %s, 1" % (sr(sT1), sr(sLW8K)))
        a.I("s_add_u32 m0, %s, %d" % (sr(sT1), ADDR["X%d" % i]))
        a.I("s_add_u32 %s, %s, %s" % (sr(sT0), sr(sT0), sr(sA0)))
        for j in range(2):
            if OPT["nox"]: continue
            dma(vX[j], SX, sT0, j * 1024, " nt" if OPT["ntx"] else ""); issued.append(unit)
        a.I("s_lshl_b32 %s, %s, 19" % (sr(sT0), sr(sA2)))
        a.I("s_add_u32 m0, %s, %d" % (sr(sLW8K), ADDR["W%d" % i]))
        a.I("s_add_u32 %s, %s, %s" % (sr(sT0), sr(sT0), sr(sA1)))
        for j in range(4):
            if OPT["now"]: continue
            dma(vW[j], SW, sT0, j * 1024, " nt" if OPT["ntw"] else ""); issued.append(unit)
    elif unit.startswith("OI"):
        n = int(unit[2:])
        a.I("s_add_u32 m0, %s, %d" % (sr(sLW8K), IMG_ADDR[n]))
        a.I("s_nop 0")
        for j in range(4):
            dma(vLn, SWS, [sA1, sA3, sA4][n - 1], j * 1024, " sc0 sc1"); issued.append(unit)
    elif unit == "PF":
        if OPT["pfwo"]:
            a.I("s_lshl_b32 %s, %s, 2" % (sr(sT0), sr(sB)))
            a.I("s_add_u32 %s, %s, %s" % (sr(sT0), sr(sT0), sr(sJQ)))
            a.I("s_lshl_b32 %s, %s, 2" % (sr(sT0), sr(sT0)))
            a.I("s_add_u32 %s, %s, %s" % (sr(sT0), sr(sT0), sr(sL4)))
            a.I("s_mul_i32 %s, %s, %d" % (sr(sT0), sr(sT0), 36 * 128))
            a.I("v_lshlrev_b32 v40, 7, v1")
            a.I("s_mov_b32 exec_lo, -1"); a.I("s_mov_b32 exec_hi, 0xf")
            a.I("buffer_load_dword v41, v40, %s, %s offen%s" % (sr(SWO, 4), sr(sT0), " nt" if OPT["ntpf"] else "")); issued.append(unit)
            a.I("s_mov_b64 exec, -1")
    elif unit == "WOR":
        a.I("s_add_u32 %s, %s, %s" % (sr(sT0), sr(sL4), sr(sJQ)))
        a.I("s_and_b32 %s, %s, 3" % (sr(sT0), sr(sT0)))
        a.I("s_mul_i32 %s, %s, %d" % (sr(sT0), sr(sT0), 128 * 1152))
        a.I("s_lshl_b32 %s, %s, 5" % (sr(sT1), sr(sJQ)))
        a.I("s_add_u32 %s, %s, %s" % (sr(sT0), sr(sT0), sr(sT1)))
        a.I("s_add_u32 m0, %s, %d" % (sr(sLW8K), ADDR["WOR"]))
        a.I("s_add_u32 %s, %s, 1024" % (sr(sT0), sr(sT0)))
        for j in range(4):
            dma(vWOR[j], SWO, sT0, j * 1024, " nt" if OPT["ntwo"] else ""); issued.append(unit)
    elif unit[0:2] == "WO":
        u = int(unit[2:])
        a.I("s_lshl_b32 %s, %s, 1" % (sr(sT0), sr(sJQ)))
        a.I("s_add_u32 %s, %s, %d" % (sr(sT0), sr(sT0), u))
        a.I("s_and_b32 %s, %s, 7" % (sr(sT0), sr(sT0)))
        a.I("s_mul_i32 %s, %s, 73728" % (sr(sT0), sr(sT0)))
        a.I("s_add_u32 %s, %s, %s" % (sr(sT0), sr(sT0), sr(sA0)))
        a.I("s_lshl_b32 %s, %s, 8" % (sr(sT1), sr(sJQ)))
        a.I("s_add_u32 m0, %s, %d" % (sr(sLW8K), ADDR[unit]))
        a.I("s_add_u32 %s, %s, %s" % (sr(sT0), sr(sT0), sr(sT1)))
        for j in range(4):
            dma(vWO[j], SWO, sT0, j * 1024, " nt" if OPT["ntwo"] else ""); issued.append(unit)
    elif unit[0] in "KV":
        t = int(unit[1:])
        base = sA3 if t < 4 else sA4
        a.I("s_add_u32 m0, %s, %d" % (sr(sLW8K), ADDR[unit]))
        a.I("s_add_u32 %s, %s, %d" % (sr(sT0), sr(base), (t & 3) * 16384))
        for j in range(4):
            if unit[0] == "K": dma(vK[j], SK, sT0, j * 1024, " nt" if OPT["ntkv"] else "")
            else: dma(vV, SV, sT0, j * 1024, " nt" if OPT["ntkv"] else "")
            issued.append(unit)
    else:
        raise Exception(unit)
def publish(count):
    if count <= published[0]: return
    names = set(n for n, _ in units[:count])
    idxs = [i for i, t in enumerate(issued) if t in names]
    if idxs:
        n = len(issued) - 1 - max(idxs)
        a.I("s_waitcnt vmcnt(%d)" % min(n, 63))
    a.I("v_mov_b32 %s, %d" % (vr(vFTl), count))
    a.I("s_mov_b64 exec, 1")
    a.I("ds_max_u32 %s, %s" % (vr(vFLOl), vr(vFTl)))
    a.I("s_mov_b64 exec, -1")
    published[0] = count
def lstamp(i):
    if OPT["sel"] and units[i][0] not in ("A1", "A8", "K3", "K7", "V3", "V7", "WO3", "WO7"): return
    if OPT["stamps"] == 2:
        a.I("s_memrealtime s[90:91]"); a.I("s_waitcnt lgkmcnt(0)"); a.I("v_writelane_b32 v100, s90, %d" % i)
LOOK = OPT["look"]
proven = 0
for ui, (unit, need) in enumerate(units):
    if ui == 1:
        if OPT["pfa"] == 3:
            a.I("s_mov_b32 exec_lo, -1"); a.I("s_mov_b32 exec_hi, 0xf")
            a.I("buffer_load_dword v41, v40, %s, %s offen%s" % (sr(SX, 4), sr(sI2), " nt" if OPT["ntpf"] else "")); issued.append("PFX")
            a.I("s_mov_b64 exec, -1")
        a.I("v_mov_b32 %s, 0x%x" % (vr(vFLl), MISC))
        a.I("s_lshl_b32 %s, %s, 2" % (sr(sT0), sr(sL4)))
        a.I("s_add_u32 %s, %s, 0x%x" % (sr(sT0), sr(sT0), MISC + F_LAND))
        a.I("v_mov_b32 %s, %s" % (vr(vFLOl), sr(sT0)))
        a.I("s_waitcnt lgkmcnt(0)")
        a.I("s_barrier")
    if ui == 2:
        init_setup(); late_setup()

    if need > proven:
        save_pub = published[0]
        ok = newlbl("OK"); sp = newlbl("SP")
        a.I("s_cmp_ge_u32 %s, %d" % (sr(sKNOW), need))
        a.I("s_cbranch_scc1 %s" % ok)
        a.L(sp)
        a.I("ds_read_b128 %s, %s offset:%d" % (vr(vFTl, 4), vr(vFLl), F_PROG))
        a.I("s_waitcnt lgkmcnt(0)")
        a.I("v_min3_u32 %s, %s, %s, %s" % (vr(vFTl), vr(vFTl), vr(vFTl + 1), vr(vFTl + 2)))
        a.I("v_min_u32 %s, %s, %s" % (vr(vFTl), vr(vFTl), vr(vFTl + 3)))
        a.I("s_nop 0")
        a.I("v_readfirstlane_b32 %s, %s" % (sr(sKNOW), vr(vFTl)))
        a.I("s_add_i32 %s, %s, -1" % (sr(sBUD), sr(sBUD)))
        a.I("s_cmp_lt_i32 %s, 0" % sr(sBUD))
        a.I("s_cbranch_scc1 %s" % ok)
        a.I("s_cmp_ge_u32 %s, %d" % (sr(sKNOW), need))
        a.I("s_cbranch_scc1 %s" % ok)
        if OPT["lsleep"]: a.I("s_sleep %d" % OPT["lsleep"])
        a.I("s_branch %s" % sp)
        a.L(ok)
        proven = need
    if unit.startswith("OI") and OPT["lonly"]: continue
    if unit == "OI1":
        publish(ui)
        sCK = [sI0, sI1, sI2]
        def oi_issue(n):
            a.I("s_add_u32 m0, %s, %d" % (sr(sLW8K), IMG_ADDR[n]))
            a.I("s_nop 0")
            for j in range(4):
                dma(vLn, SWS, [sA1, sA3, sA4][n - 1], j * 1024, " sc0 sc1")
            a.I("buffer_load_dword v%d, v43, %s, %s offen sc0 sc1" % (44 + n, sr(SWS, 4), sr(sCK[n - 1])))
        for n in range(1, 4): oi_issue(n)
        a.I("s_mov_b32 %s, 0" % sr(sT3))
        for n in range(1, 4):
            a.I("s_waitcnt vmcnt(%d)" % (5 * (3 - n)))
            a.L("L_VER%d" % n)
            a.I("v_add_u32 v42, %s, %s" % (sr(sLW8K), vr(vLn)))
            a.I("v_add_u32 v42, 0x%x, v42" % IMG_ADDR[n])
            for j in range(4):
                a.I("ds_read_b128 %s, v42 offset:%d" % (vr(48 + 4 * j, 4), j * 1024))
            a.I("s_waitcnt lgkmcnt(0)")
            a.I("v_xor_b32 v42, %s, v%d" % (sr(sTAG), 44 + n))
            for j in range(16):
                a.I("v_xor_b32 v42, v%d, v42" % (48 + j))
            a.I("v_cmp_ne_u32 vcc, 0, v42")
            a.I("s_add_u32 %s, %s, 1" % (sr(sT3), sr(sT3)))
            a.I("s_cmp_gt_u32 %s, 40000" % sr(sT3))
            a.I("s_cbranch_scc1 L_VOK%d" % n)
            a.I("s_cbranch_vccz L_VOK%d" % n)
            oi_issue(n)
            a.I("s_waitcnt vmcnt(0)")
            a.I("s_branch L_VER%d" % n)
            a.L("L_VOK%d" % n)
            a.I("v_mov_b32 %s, %d" % (vr(vFTl), ui + n))
            a.I("s_mov_b64 exec, 1")
            a.I("ds_max_u32 %s, %s" % (vr(vFLOl), vr(vFTl)))
            a.I("s_mov_b64 exec, -1")
        issued[:] = []
        published[0] = ui + 3
        lstamp(ui)
        continue
    if unit in ("OI2", "OI3"): continue
    if ui >= 1: a.I("ds_read_b128 %s, %s offset:%d" % (vr(vFTl + 4, 4), vr(vFLl), F_PROG))
    issue(unit)
    pub_emitted = [False]
    lk = 1 if (OPT["tail1"] and (unit.startswith("OI") or unit in ("WO7", "K%d" % OPT["kearly"], "V0", "PF"))) else LOOK
    if ui - lk + 1 > 0:
        before = published[0]
        publish(ui - lk + 1)
        pub_emitted[0] = published[0] != before
    if ui >= 1:
        LS_ = {"A1": 1, "A5": 2, "K0": 3, "K4": 4, "V0": 5, "V4": 6, "WOR": 7, "WO6": 8}
        if OPT["stamps"] == 1 and unit in LS_:
            a.I("s_memrealtime %s" % sr(sSTAMP + 2 * LS_[unit], 2))
            a.I("s_waitcnt lgkmcnt(0)")
        else:
            a.I("s_waitcnt lgkmcnt(%d)" % (1 if (ui - LOOK + 1 > 0 and pub_emitted[0]) else 0))
        a.I("v_min3_u32 %s, %s, %s, %s" % (vr(vFTl + 4), vr(vFTl + 4), vr(vFTl + 5), vr(vFTl + 6)))
        a.I("v_min_u32 %s, %s, %s" % (vr(vFTl + 4), vr(vFTl + 4), vr(vFTl + 7)))
        a.I("s_nop 0")
        a.I("v_readfirstlane_b32 %s, %s" % (sr(sKNOW), vr(vFTl + 4)))
    lstamp(ui)
    if unit == "V0":
        a.I("v_readfirstlane_b32 %s, v39" % sr(sTAG))
        a.I("s_nop 0")
        a.I("s_add_u32 %s, %s, 1" % (sr(sTAG), sr(sTAG)))
    if unit == "V7":
        a.I("v_lshlrev_b32 v43, 2, v1")
        for n in range(1, 4):
            a.I("s_add_u32 %s, %s, %d" % (sr(sT0), sr(sJQ), n))
            a.I("s_and_b32 %s, %s, 3" % (sr(sT0), sr(sT0)))
            a.I("s_lshl_b32 %s, %s, 3" % (sr(sT0), sr(sT0)))
            a.I("s_andn2_b32 %s, %s, 0x18" % (sr(sT1), sr(sID)))
            a.I("s_or_b32 %s, %s, %s" % (sr(sT0), sr(sT0), sr(sT1)))
            a.I("s_lshl_b32 %s, %s, 2" % (sr(sT1), sr(sT0)))
            a.I("s_add_u32 %s, %s, %s" % (sr(sT1), sr(sT1), sr(sL4)))
            a.I("s_lshl_b32 %s, %s, 8" % (sr(sT1), sr(sT1)))
            a.I("s_add_u32 %s, %s, 0x%x" % (sr([sI0, sI1, sI2][n - 1]), sr(sT1), WS_CHK))
            a.I("s_mul_i32 %s, %s, %d" % (sr(sT0), sr(sT0), IMG_BYTES))
            a.I("s_add_u32 %s, %s, %s" % (sr(sT0), sr(sT0), sr(sLW8K)))
            a.I("s_add_u32 %s, %s, 0x%x" % (sr([sA1, sA3, sA4][n - 1]), sr(sT0), WS_IMG))
publish(len(units))
if OPT["stamps"] == 2:
    a.I("v_writelane_b32 v100, %s, 63" % sr(sSTAMP))
    a.I("s_lshl_b32 %s, %s, 2" % (sr(sT0), sr(sID)))
    a.I("s_add_u32 %s, %s, %s" % (sr(sT0), sr(sT0), sr(sLW)))
    a.I("s_lshl_b32 %s, %s, 8" % (sr(sT0), sr(sT0)))
    a.I("s_add_u32 %s, %s, 0x%x" % (sr(sT0), sr(sT0), WS_STAMP + 0x100000))
    a.I("v_lshlrev_b32 v103, 2, v1")
    a.I("buffer_store_dword v100, v103, %s, %s offen" % (sr(SWS, 4), sr(sT0)))
if OPT["lonly"]:
    a.I("s_waitcnt vmcnt(0)")
    a.I("s_endpgm")
a.I("s_branch L_FINAL")
loader_lines = a.lines

a = Asm()
a.L("L_FINAL")
a.I("s_cmp_ge_u32 %s, 7" % sr(sWAVE))
a.I("s_cbranch_scc1 L_FIN_SKIP")
sP, sW, sG = sA1, sA2, sA3
a.I("s_mul_i32 %s, %s, 3" % (sr(sP), sr(sKS)))
a.I("s_add_u32 %s, %s, %s" % (sr(sP), sr(sP), sr(sLW)))
a.I("s_mul_i32 %s, %s, 43" % (sr(sW), sr(sP)))
a.I("s_lshr_b32 %s, %s, 8" % (sr(sW), sr(sW)))
a.I("s_mul_i32 %s, %s, 6" % (sr(sT0), sr(sW)))
a.I("s_sub_u32 %s, %s, %s" % (sr(sG), sr(sP), sr(sT0)))
a.I("s_mul_i32 %s, %s, 6144" % (sr(sT0), sr(sW)))
a.I("s_lshl_b32 %s, %s, 10" % (sr(sT1), sr(sG)))
a.I("s_add_u32 %s, %s, %s" % (sr(sT0), sr(sT0), sr(sT1)))
a.I("s_andn2_b32 %s, %s, 7" % (sr(sT1), sr(sID)))
a.I("s_mul_i32 %s, %s, %d" % (sr(sT1), sr(sT1), SLAB_BYTES))
a.I("s_add_u32 %s, %s, %s" % (sr(sT1), sr(sT1), sr(sT0)))
a.I("s_add_u32 %s, %s, 0x%x" % (sr(sA0), sr(sT1), WS_SLAB))
a.I("v_lshlrev_b32 v5, 4, v1")
a.I("s_mov_b32 %s, 0" % sr(sT3))
if OPT["finwait"]:
    a.L("L_FW")
    a.I("ds_read_b128 v[104:107], v24 offset:%d" % F_PROG)
    a.I("s_waitcnt lgkmcnt(0)")
    a.I("v_min3_u32 v104, v104, v105, v106")
    a.I("v_min_u32 v104, v104, v107")
    a.I("s_nop 0")
    a.I("v_readfirstlane_b32 %s, v104" % sr(sKNOW))
    a.I("s_add_i32 %s, %s, -1" % (sr(sBUD), sr(sBUD)))
    a.I("s_cmp_lt_i32 %s, 0" % sr(sBUD))
    a.I("s_cbranch_scc1 L_FW_X")
    a.I("s_cmp_ge_u32 %s, %d" % (sr(sKNOW), STEP["PE"] + 1))
    a.I("s_cbranch_scc1 L_FW_X")
    a.I("s_sleep 1")
    a.I("s_branch L_FW")
    a.L("L_FW_X")
def fin_loads():
    a.I("s_mov_b32 %s, %s" % (sr(sT1), sr(sA0)))
    for k in range(8):
        a.I("buffer_load_dwordx4 %s, v5, %s, %s offen sc0 sc1" % (vr(32 + 4 * k, 4), sr(SWS, 4), sr(sT1)))
        if k < 7: a.I("s_add_u32 %s, %s, %d" % (sr(sT1), sr(sT1), SLAB_BYTES))
fin_loads()
a.I("v_and_b32 v6, 31, v1")
a.I("v_mul_u32_u24 v6, 1152, v6")
a.I("v_lshrrev_b32 v7, 5, v1")
a.I("v_lshl_add_u32 v6, v7, 3, v6")
a.I("v_and_b32 v7, 15, v1")
a.I("v_mul_u32_u24 v7, 1152, v7")
a.I("v_lshrrev_b32 v8, 4, v1")
a.I("v_lshl_add_u32 v7, v8, 3, v7")
sO = [8, 9, 10]; sR = [12, 13, 14]
for i in range(3):
    a.I("s_mul_i32 %s, %s, 3" % (sr(sT0), sr(sG)))
    a.I("s_add_u32 %s, %s, %d" % (sr(sT0), sr(sT0), i))
    a.I("s_bfe_u32 %s, %s, 0x20001" % (sr(sT1), sr(sT0)))
    a.I("s_lshl_b32 %s, %s, 3" % (sr(sT1), sr(sT1)))
    a.I("s_and_b32 %s, %s, 1" % (sr(sT2), sr(sT0)))
    a.I("s_lshl_b32 %s, %s, 1" % (sr(sT2), sr(sT2)))
    a.I("s_add_u32 %s, %s, %s" % (sr(sT1), sr(sT1), sr(sT2)))
    a.I("s_lshl_b32 %s, %s, 5" % (sr(sT2), sr(sW)))
    a.I("s_add_u32 %s, %s, %s" % (sr(sT1), sr(sT1), sr(sT2)))
    a.I("s_lshl_b32 %s, %s, 7" % (sr(sT2), sr(sJQ)))
    a.I("s_add_u32 %s, %s, %s" % (sr(sT1), sr(sT1), sr(sT2)))
    a.I("s_lshr_b32 %s, %s, 3" % (sr(sT2), sr(sT0)))
    a.I("s_and_b32 %s, %s, 1" % (sr(sT2), sr(sT2)))
    a.I("s_lshl_b32 %s, %s, 5" % (sr(sT2), sr(sT2)))
    a.I("s_lshl_b32 %s, %s, 6" % (sr(sO[i]), sr(sB)))
    a.I("s_add_u32 %s, %s, %s" % (sr(sT2), sr(sT2), sr(sO[i])))
    a.I("s_mul_i32 %s, %s, 1152" % (sr(sT2), sr(sT2)))
    a.I("s_lshl_b32 %s, %s, 1" % (sr(sT1), sr(sT1)))
    a.I("s_add_u32 %s, %s, %s" % (sr(sO[i]), sr(sT1), sr(sT2)))
    a.I("s_sub_u32 %s, %s, 16" % (sr(sT1), sr(sT0)))
    a.I("s_lshl_b32 %s, %s, 1" % (sr(sT1), sr(sT1)))
    a.I("s_lshl_b32 %s, %s, 4" % (sr(sT2), sr(sJQ)))
    a.I("s_add_u32 %s, %s, %s" % (sr(sT1), sr(sT1), sr(sT2)))
    a.I("s_add_u32 %s, %s, 512" % (sr(sT1), sr(sT1)))
    a.I("s_lshl_b32 %s, %s, 1" % (sr(sT1), sr(sT1)))
    a.I("s_lshl_b32 %s, %s, 4" % (sr(sT2), sr(sW)))
    a.I("s_lshl_b32 %s, %s, 6" % (sr(sR[i]), sr(sB)))
    a.I("s_add_u32 %s, %s, %s" % (sr(sT2), sr(sT2), sr(sR[i])))
    a.I("s_mul_i32 %s, %s, 1152" % (sr(sT2), sr(sT2)))
    a.I("s_add_u32 %s, %s, %s" % (sr(sT1), sr(sT1), sr(sT2)))
    a.I("s_cmp_ge_u32 %s, 16" % sr(sT0))
    a.I("s_cselect_b32 %s, %s, %s" % (sr(sO[i]), sr(sT1), sr(sO[i])))
    a.I("s_cselect_b32 %s, 1, 0" % sr(sR[i]))
a.I("s_branch L_FIN_CHK")
a.L("L_FIN_RETRY")
fin_loads()
a.L("L_FIN_CHK")
a.I("s_waitcnt vmcnt(0)")
a.I("v_xor_b32 v12, %s, v35" % sr(sTAG))
for k in range(1, 8):
    a.I("v_xor_b32 v13, %s, v%d" % (sr(sTAG), 35 + 4 * k))
    a.I("v_or_b32 v12, v13, v12")
a.I("v_cmp_ne_u32 vcc, 0, v12")
a.I("s_add_u32 %s, %s, 1" % (sr(sT3), sr(sT3)))
a.I("s_cmp_gt_u32 %s, 40000" % sr(sT3))
a.I("s_cbranch_scc1 L_FIN_GO")
a.I("s_cbranch_vccnz L_FIN_RETRY")
a.L("L_FIN_GO")
for i in range(3):
    acc = 64 + 2 * i
    for k in range(8):
        r = 32 + 4 * k + i
        if k == 0:
            a.I("v_lshlrev_b32 v%d, 16, v%d" % (acc, r))
            a.I("v_and_b32 v%d, 0xffff0000, v%d" % (acc + 1, r))
        else:
            t = 72 + 2 * ((k + i) % 3)
            a.I("v_lshlrev_b32 v%d, 16, v%d" % (t, r))
            a.I("v_and_b32 v%d, 0xffff0000, v%d" % (t + 1, r))
            a.I("v_pk_add_f32 v[%d:%d], v[%d:%d], v[%d:%d]" % (acc, acc + 1, acc, acc + 1, t, t + 1))
    a.I("v_cvt_pk_bf16_f32 v%d, v%d, v%d" % (80 + i, acc, acc + 1))
    a.I("s_cmp_eq_u32 %s, 1" % sr(sR[i]))
    a.I("s_cselect_b64 vcc, -1, 0")
    a.I("v_cndmask_b32 v%d, v6, v7, vcc" % (84 + i))
    a.I("buffer_store_dword v%d, v%d, %s, %s offen%s" % (80 + i, 84 + i, sr(SOUT, 4), sr(sO[i]), ["", " sc0 sc1", " nt"][OPT["outsc"]]))
a.I("s_and_b32 %s, %s, 31" % (sr(sT0), sr(sID)))
a.I("s_cmp_eq_u32 %s, 0" % sr(sT0))
a.I("s_cbranch_scc0 L_FIN_SKIP")
a.I("s_cmp_eq_u32 %s, 4" % sr(sWAVE))
a.I("s_cbranch_scc0 L_FIN_SKIP")
a.I("s_lshl_b32 %s, %s, 7" % (sr(sT0), sr(sB)))
a.I("v_mov_b32 v4, %s" % sr(sTAG))
a.I("v_mov_b32 v5, 0")
a.I("s_mov_b64 exec, 1")
a.I("buffer_store_dword v4, v5, %s, %s offen sc0 sc1" % (sr(SWS, 4), sr(sT0)))
a.I("s_mov_b64 exec, -1")
a.L("L_FIN_SKIP")
a.L("L_CEND")
if OPT["stamps"] == 4:
    a.I("s_cmp_lt_u32 %s, 4" % sr(sWAVE))
    a.I("s_cbranch_scc0 L_NOCST")
    a.I("s_waitcnt lgkmcnt(0)")
    for i in range(len(CST)):
        a.I("v_writelane_b32 v100, %s, %d" % (sr(CPAIRS[i]), i))
    a.I("s_lshl_b32 %s, %s, 2" % (sr(sT0), sr(sID)))
    a.I("s_add_u32 %s, %s, %s" % (sr(sT0), sr(sT0), sr(sWAVE)))
    a.I("s_lshl_b32 %s, %s, 8" % (sr(sT0), sr(sT0)))
    a.I("s_add_u32 %s, %s, 0x%x" % (sr(sT0), sr(sT0), WS_STAMP + 0x200000))
    a.I("v_lshlrev_b32 v103, 2, v1")
    a.I("buffer_store_dword v100, v103, %s, %s offen" % (sr(SWS, 4), sr(sT0)))
    a.L("L_NOCST")
if OPT["stamps"]:
    a.I("s_memrealtime %s" % sr(sSTAMP + 2 * 9, 2))
    a.I("s_waitcnt lgkmcnt(0) vmcnt(0)")
    a.I("s_lshl_b32 %s, %s, 3" % (sr(sT0), sr(sID)))
    a.I("s_add_u32 %s, %s, %s" % (sr(sT0), sr(sT0), sr(sWAVE)))
    a.I("s_lshl_b32 %s, %s, 6" % (sr(sT0), sr(sT0)))
    a.I("s_add_u32 %s, %s, 0x%x" % (sr(sT0), sr(sT0), WS_STAMP))
    a.I("v_mov_b32 v5, 0")
    a.I("s_mov_b64 exec, 1")
    for i in range(10):
        a.I("v_mov_b32 v4, %s" % sr(sSTAMP + 2 * i))
        a.I("buffer_store_dword v4, v5, %s, %s offen offset:%d" % (sr(SWS, 4), sr(sT0), i * 4))
    a.I("s_waitcnt vmcnt(0)")
a.L("L_END")
a.I("s_endpgm")
final_lines = a.lines

tail = """
.section .rodata,"a"
.p2align 6
.amdhsa_kernel %s
  .amdhsa_next_free_vgpr 256
  .amdhsa_next_free_sgpr 96
  .amdhsa_accum_offset 256
  .amdhsa_group_segment_fixed_size 0
  .amdhsa_kernarg_size 64
  .amdhsa_user_sgpr_count 2
  .amdhsa_user_sgpr_kernarg_segment_ptr 1
  .amdhsa_system_sgpr_workgroup_id_x 1
.end_amdhsa_kernel
""" % KNAME

probs = []
for nm, ls in (("compute", entry_lines + compute_lines + final_lines), ("loader", entry_lines + loader_lines + final_lines)):
    probs += check_hazards(ls, nm)
    probs += check_hazards([l for l in ls if ";slow" not in l], nm + "-fast")
for p in sorted(set(probs)): print("HAZARD", p)
out = "\n".join(hdr + entry_lines + loader_lines + compute_lines + final_lines) + "\n" + tail
if OPT["scx"] == 0: out = out.replace(" sc0 sc1", " sc1")
open(sys.argv[1], "w").write(out)
open(sys.argv[1] + ".bar", "w").write(",".join(n for n, _ in units))
open(sys.argv[1] + ".cst", "w").write(",".join(CST))
print("units", [(n, x) for n, x in units], "lines", out.count("\n"))
```

```python
import sys, struct
from asmlib import *

KNAME = "standalone__gqa_block_cached__near_ridge_kernel"
OPT = dict(dump=0, stamps=0, ntkv=1, ntw=0, ntx=0, ntwo=0, rot=1, tlb=1, pfwo=1, prio=1, lsleep=1, look=2, pk=1, pfa=0, dga=3, initat=4, nowait=0, noload=0, lonly=0, sel=0, spread=1, ntpf=1, pfat=0, nox=0, now=0, scx=0, light=1, dgp=2, finwait=1, oiord=1, tail1=1, outsc=0, lateflag=1, codepf=0, ktrot=0, e1plain=0, kearly=0, kpos=7, kflush=0, oipos=6, finsleep=0, fin0=0)
for a_ in sys.argv[2:]:
    k, v = a_.split("="); OPT[k] = int(v)

WS_EPOCH = 0x0
WS_CHK = 0x10000
WS_IMG   = 0x100000
WS_SLAB  = 0x800000
SLAB_BYTES = 24576
IMG_BYTES = 16384
WS_DUMP  = 0x2000000
WS_STAMP = 0x1800000
WS_SIZE  = 0x10000000

SX, SW, SK, SV, SWO, SWS, SOUT = 8, 12, 16, 20, 24, 28, 32
KARG = 36
sKS, sJQ, sB, sH, sWAVE, sLW, sTAG, sID = 52, 53, 54, 55, 56, 57, 58, 59
sT0, sT1, sT2, sT3 = 60, 61, 62, 63
sC = 64
sLW8K = 66
sA0, sA1, sA2, sA3, sA4 = 67, 68, 69, 70, 71
sSTAMP = 72
sKNOW = 92
sBUD = 93
sKNOW2 = 94
sI0, sI1, sI2 = 4, 5, 6

SLOT = lambda i: i * 16384
XB = 131072
MISC = 155648
F_LAND, F_PROG, F_QX, F_MX, F_OR, F_IMG, F_PX = 0, 16, 32, 48, 64, 80, 96
MXD = 1024; LD = 2048
LDS_BYTES = 163840
def f32bits(x): return struct.unpack("<I", struct.pack("<f", x))[0]
SCALE = (128 ** -0.5) * 1.4426950408889634

STEP = {}
for i in range(9): STEP["A%d" % i] = i
STEP["QS"] = 9
for t in range(8): STEP["K%d" % t] = 10 + t
for t in range(8): STEP["V%d" % t] = 18 + t
STEP["ORS"] = 26
for u in range(8): STEP["P%d" % u] = 27 + u
STEP["PE"] = 35
ADDR = {}; SIZE = {}
XG = [XB, XB + 8192, XB + 16384, SLOT(7), SLOT(7) + 8192, SLOT(6)]
for i in range(9):
    ADDR["W%d" % i] = SLOT(i % 6); ADDR["X%d" % i] = XG[i % 6]
for t, s_ in enumerate([3, 4, 7, 5, 6, 0, 2]): ADDR["K%d" % t] = SLOT(s_)
ADDR["K7"] = XB
ADDR["QS"] = SLOT(1)
for t, s_ in enumerate([1, 3, 4, 7, 5, 6, 0, 2]): ADDR["V%d" % t] = SLOT(s_)
for u, s_ in enumerate([1, 3, 4, 0, 1, 3, 7, 4]): ADDR["WO%d" % u] = SLOT(s_)
ADDR["WOR"] = XB
ADDR["ORS"] = SLOT(5)
IMG_ADDR = [SLOT(7), SLOT(2), SLOT(5), SLOT(6)]
alloc = []
def A_(name, addr, size, step): alloc.append((name, addr, size, step))
def need_of(addr, size, upto):
    n = 0
    for (nm, a0, s0, st) in alloc[:upto]:
        if a0 < addr + size and addr < a0 + s0: n = max(n, st + 1)
    return n
NEED = {}
def place(name, addr, size, step):
    NEED[name] = need_of(addr, size, len(alloc)); A_(name, addr, size, step)
for i in range(9):
    place("X%d" % i, ADDR["X%d" % i], 8192, STEP["A%d" % i]); place("W%d" % i, ADDR["W%d" % i], 16384, STEP["A%d" % i])
place("QS", ADDR["QS"], 16384, STEP["QS"])
for t in range(8): place("K%d" % t, ADDR["K%d" % t], 16384, STEP["K%d" % t])
for t in range(8): place("V%d" % t, ADDR["V%d" % t], 16384, STEP["V%d" % t])
place("WOR", ADDR["WOR"], 16384, STEP["P7"])
for u in range(4): place("WO%d" % u, ADDR["WO%d" % u], 16384, STEP["P%d" % u])
place("ORS", ADDR["ORS"], 32768, STEP["ORS"])
place("OI0", IMG_ADDR[0], 16384, STEP["P1"])
for n in range(1, 4): place("OI%d" % n, IMG_ADDR[n], 16384, STEP["P%d" % (2 * n + 1)])
for u in range(4, 8): place("WO%d" % u, ADDR["WO%d" % u], 16384, STEP["P%d" % u])
STEPNAME = {v: k for k, v in STEP.items()}
units = []
for i in range(9): units.append(("A%d" % i, max(NEED["X%d" % i], NEED["W%d" % i])))
for t in range(8): units.append(("K%d" % t, NEED["K%d" % t]))
if OPT["kearly"]:
    ks_ = [u for u in units if u[0] in ["K%d" % t for t in range(OPT["kearly"])]]
    units = [u for u in units if u not in ks_]
    pos = [n for n, _ in units].index("A%d" % OPT["kpos"])
    units = units[:pos] + ks_ + units[pos:]
for t in range(8): units.append(("V%d" % t, NEED["V%d" % t]))
if OPT["pfat"] == 0: units.append(("PF", 0))
else: units.insert(9, ("PF", 0))
units.append(("WOR", NEED["WOR"]))
for u in range(OPT["oipos"]): units.append(("WO%d" % u, NEED["WO%d" % u]))
for n in range(1, 4): units.append(("OI%d" % n, NEED["OI%d" % n]))
for u in range(OPT["oipos"], 8): units.append(("WO%d" % u, NEED["WO%d" % u]))
UIDX = {n: i for i, (n, _) in enumerate(units)}

hdr = ["; Fused GQA block (Q projection + attention + output projection) for gfx950, generated by a hand-written generator.",
       "; 256 workgroups (one per CU), WG id -> ks = id&7, jq = (id>>3)&3, b = id>>5, head h = 4*ks + jq.",
       "; 8 waves: waves 0-3 compute (MFMA / softmax), waves 4-7 stream tiles into LDS with LDS-DMA (one FIFO, LDS flags).",
       ";   A: Q^T = wq_h^T x_b^T ; K: S^T = K Q^T ; softmax with the true (per key-half) max, halves merged exactly;",
       ";   V: O^T = V^T P^T ; O images (bf16) exchanged between the 4 heads of a k-slice through d_ws (epoch-tagged checksums);",
       ";   P: partial out^T over the 512-wide k-slice ; partials exchanged (tagged granules) and summed by 8 reducers.",
       "; d_ws word b*128 holds a per-batch epoch that only tells this launch's hand-offs from earlier ones.",
       "; @launch grid=(256,1,1) block=(512,1,1) lds=%d" % LDS_BYTES,
       '.amdgcn_target "amdgcn-amd-amdhsa--gfx950"', ".text", ".globl %s" % KNAME, ".p2align 8",
       ".type %s,@function" % KNAME, "%s:" % KNAME]

a = Asm()
lbl = [0]
def newlbl(p):
    lbl[0] += 1; return "L_%s%d" % (p, lbl[0])
def stamp(idx):
    if OPT["stamps"] == 4 and idx >= 1: return
    if OPT["stamps"] == 3 and 1 <= idx <= 8:
        a.I("s_mov_b32 %s, %s" % (sr(sSTAMP + 2 * idx), sr(sBUD)))
    elif OPT["stamps"]:
        a.I("s_memrealtime %s" % sr(sSTAMP + 2 * idx, 2))
        a.I("s_waitcnt lgkmcnt(0)")

CST = []
CPAIRS = list(range(8, 28, 2)) + list(range(36, 52, 2)) + list(range(74, 92, 2))
def cst(name):
    if OPT["stamps"] == 4 and len(CST) < len(CPAIRS):
        a.I("s_memtime %s" % sr(CPAIRS[len(CST)], 2)); CST.append(name)
def spin(known, need, rd, nvals, vt, pre=None):
    ok = newlbl("OK"); sp = newlbl("SP")
    a.I("s_cmp_ge_u32 %s, %d" % (sr(known), need))
    a.I("s_cbranch_scc1 %s" % ok)
    n0 = len(a.lines)
    a.L(sp)
    a.I(rd)
    a.I("s_waitcnt lgkmcnt(0)")
    if nvals == 4:
        a.I("v_min3_u32 %s, %s, %s, %s" % (vr(vt), vr(vt), vr(vt + 1), vr(vt + 2)))
        a.I("v_min_u32 %s, %s, %s" % (vr(vt), vr(vt), vr(vt + 3)))
        a.I("s_nop 0")
    a.I("v_readfirstlane_b32 %s, %s" % (sr(known), vr(vt)))
    a.I("s_add_i32 %s, %s, -1" % (sr(sBUD), sr(sBUD)))
    a.I("s_cmp_lt_i32 %s, 0" % sr(sBUD))
    a.I("s_cbranch_scc1 %s" % ok)
    a.I("s_cmp_ge_u32 %s, %d" % (sr(known), need))
    a.I("s_cbranch_scc0 %s" % sp)
    for i in range(n0, len(a.lines)): a.lines[i] += " ;slow"
    a.L(ok)

a.I("s_cmp_ge_u32 s2, 256")
a.I("s_cbranch_scc1 L_END")
a.I("s_load_dwordx16 %s, s[0:1], 0" % sr(KARG, 16))
if OPT["stamps"]:
    a.I("s_memrealtime %s" % sr(sSTAMP, 2))
a.I("v_lshrrev_b32 v2, 6, v0")
a.I("v_and_b32 v1, 63, v0")
a.I("s_mov_b32 %s, s2" % sr(sID))
a.I("v_readfirstlane_b32 %s, v2" % sr(sWAVE))
a.I("s_and_b32 %s, s2, 7" % sr(sKS))
a.I("s_lshr_b32 %s, s2, 3" % sr(sJQ))
a.I("s_and_b32 %s, %s, 3" % (sr(sJQ), sr(sJQ)))
a.I("s_lshr_b32 %s, s2, 5" % sr(sB))
a.I("s_lshl_b32 %s, %s, 2" % (sr(sH), sr(sKS)))
a.I("s_add_u32 %s, %s, %s" % (sr(sH), sr(sH), sr(sJQ)))
a.I("v_lshrrev_b32 v2, 4, v1")
a.I("v_and_b32 v3, 15, v1")
a.I("s_mov_b32 %s, 0" % sr(sKNOW))
a.I("s_mov_b32 %s, 0" % sr(sKNOW2))
a.I("s_mov_b32 %s, 0x80000" % sr(sBUD))
a.I("s_cmp_lt_u32 %s, 4" % sr(sWAVE))
a.I("s_cbranch_scc1 L_COMPUTE")
entry_lines = a.lines

pX, pK, pV, pWQ, pWO, pOUT, pDBG, pWS = [KARG + 2 * i for i in range(8)]
def mk_srd(d, p, off_sgpr, size):
    if off_sgpr is None:
        a.I("s_mov_b32 %s, %s" % (sr(d), sr(p)))
        a.I("s_mov_b32 %s, %s" % (sr(d + 1), sr(p + 1)))
    else:
        a.I("s_add_u32 %s, %s, %s" % (sr(d), sr(p), sr(off_sgpr)))
        a.I("s_addc_u32 %s, %s, 0" % (sr(d + 1), sr(p + 1)))
    a.I("s_mov_b32 %s, 0x%x" % (sr(d + 2), size))
    a.I("s_mov_b32 %s, 0x00020000" % sr(d + 3))
def kv_srds():
    a.I("s_lshr_b32 %s, %s, 1" % (sr(sT0), sr(sH)))
    a.I("s_lshl_b32 %s, %s, 4" % (sr(sT1), sr(sB)))
    a.I("s_add_u32 %s, %s, %s" % (sr(sT0), sr(sT0), sr(sT1)))
    a.I("s_lshl_b32 %s, %s, 17" % (sr(sT0), sr(sT0)))
    mk_srd(SK, pK, sT0, 131072)
    mk_srd(SV, pV, sT0, 131072)
    a.I("s_mul_i32 %s, %s, 589824" % (sr(sT0), sr(sKS)))
    mk_srd(SWO, pWO, sT0, 589824)

a = Asm()
q = LdsQ(a)
def ds_read(kind, dst, n, addr, off):
    assert 0 <= off < 65536, off
    a.I("%s %s, %s offset:%d" % (kind, vr(dst, n), vr(addr), off))
    return q.issue()
def rd128(dst, addr, off): return ds_read("ds_read_b128", dst, 4, addr, off)
def rdtr(dst, addr, off): return ds_read("ds_read_b64_tr_b16", dst, 2, addr, off)
def ds_write(kind, addr, src, n, off):
    assert 0 <= off < 65536
    a.I("%s %s, %s offset:%d" % (kind, vr(addr), vr(src, n), off))
    return q.issue()
def mfma32(d, A, B, c0=False):
    a.I("v_mfma_f32_32x32x16_bf16 %s, %s, %s, %s" % (vr(d, 16), vr(A, 4), vr(B, 4), "0" if c0 else vr(d, 16)))
def mfma16(d, A, B, c0=False):
    a.I("v_mfma_f32_16x16x32_bf16 %s, %s, %s, %s" % (vr(d, 4), vr(A, 4), vr(B, 4), "0" if c0 else vr(d, 4)))

vFLP = 0; vFL = 2; vFLO = 3
aX = [4, 5, 6, 7]; aW = [8, 9]; aK = 10; aV = [11, 12, 13, 14]; aWO = [15, 16]; aOI = 17; aRA = 18; aRB = 19
tA, tB, tC, tD, tE, tF = 20, 21, 22, 23, 24, 25
vIMG, vL16 = 26, 27
vFT = 28
vM, vL, vP0, vP1 = 4, 5, 6, 7
LS = 8
RING = 32; QF = 64; KR = 96; OACC = 64; S = 128

def wait_land(unit):
    if OPT["nowait"] and not unit.startswith("OI"): return
    spin(sKNOW, UIDX[unit] + 1, "ds_read_b128 %s, %s offset:%d" % (vr(vFT, 4), vr(vFL), F_LAND), 4, vFT)
def wait_prog(step):
    spin(sKNOW2, STEP[step] + 1, "ds_read_b128 %s, %s offset:%d" % (vr(vFT, 4), vr(vFL), F_PROG), 4, vFT)
def set_prog(step):
    a.I("v_mov_b32 %s, %d" % (vr(vFT), STEP[step] + 1))
    a.I("s_mov_b64 exec, 1")
    ds_write("ds_write_b32", vFLO, vFT, 1, F_PROG)
    a.I("s_mov_b64 exec, -1")
def set_flag(off):
    a.I("v_mov_b32 %s, 1" % vr(vFT))
    a.I("s_mov_b64 exec, 1")
    ds_write("ds_write_b32", vFLO, vFT, 1, off)
    a.I("s_mov_b64 exec, -1")
def wait_partner(off):
    a.I("s_mov_b32 %s, 0" % sr(sT3))
    spin(sT3, 1, "ds_read_b32 %s, %s offset:%d" % (vr(vFT), vr(vFLP), off), 1, vFT)
def wait_all(off):
    a.I("s_mov_b32 %s, 0" % sr(sT3))
    spin(sT3, 1, "ds_read_b128 %s, %s offset:%d" % (vr(vFT, 4), vr(vFL), off), 4, vFT)

a.L("L_COMPUTE")
if OPT["codepf"]:
    a.I("s_cmp_eq_u32 %s, 3" % sr(sWAVE))
    a.I("s_cbranch_scc0 L_NOCPF")
    a.I("s_getpc_b64 s[4:5]")
    a.L("L_PCREF")
    a.I("s_lshr_b32 %s, %s, 3" % (sr(sT0), sr(sID)))
    a.I("s_mul_i32 %s, %s, %d" % (sr(sT0), sr(sT0), OPT["codepf"] * 128))
    a.I("s_add_u32 s4, s4, %s" % sr(sT0))
    a.I("s_addc_u32 s5, s5, 0")
    a.I("v_lshlrev_b32 v9, 7, v1")
    a.I("s_mov_b64 exec, 0x%x" % ((1 << OPT["codepf"]) - 1))
    a.I("global_load_dword v9, v9, s[4:5]")
    a.I("s_mov_b64 exec, -1")
    a.L("L_NOCPF")
if OPT["prio"]: a.I("s_setprio 1")
sQH = sA0
a.I("s_and_b32 %s, %s, 1" % (sr(sLW), sr(sWAVE)))
a.I("s_lshl_b32 %s, %s, 13" % (sr(sLW8K), sr(sLW)))
a.I("s_lshr_b32 %s, %s, 1" % (sr(sQH), sr(sWAVE)))
a.I("s_mov_b32 %s, 0x%x" % (sr(sC), f32bits(SCALE)))
a.I("s_mov_b32 %s, 0x%x" % (sr(sC + 1), f32bits(SCALE)))
hf, r_, c4, mh, l31, L4, L15 = 32, 33, 34, 35, 36, 43, 44
T1, T2, T3 = 37, 38, 39
a.I("v_mov_b32 %s, v2" % vr(L4))
a.I("v_mov_b32 %s, v3" % vr(L15))
a.I("v_lshrrev_b32 %s, 5, v1" % vr(hf))
a.I("v_lshrrev_b32 %s, 2, v3" % vr(r_))
a.I("v_and_b32 %s, 3, v1" % vr(c4))
a.I("v_and_b32 %s, 1, v2" % vr(mh))
a.I("v_and_b32 %s, 31, v1" % vr(l31))
a.I("s_waitcnt lgkmcnt(0)")
mk_srd(SWS, pWS, None, WS_SIZE)
mk_srd(SOUT, pOUT, None, 589824)
a.I("s_mul_i32 %s, %s, %d" % (sr(sA1), sr(sID), IMG_BYTES))
a.I("s_add_u32 %s, %s, 0x%x" % (sr(sA1), sr(sA1), WS_IMG))
a.I("s_mul_i32 %s, %s, %d" % (sr(sA2), sr(sID), SLAB_BYTES))
a.I("s_mul_i32 %s, %s, 6144" % (sr(sT0), sr(sWAVE)))
a.I("s_add_u32 %s, %s, %s" % (sr(sA2), sr(sA2), sr(sT0)))
a.I("s_add_u32 %s, %s, 0x%x" % (sr(sA2), sr(sA2), WS_SLAB))
a.I("s_lshl_b32 %s, %s, 7" % (sr(sT0), sr(sB)))
a.I("v_mov_b32 v31, %s" % sr(sT0))
a.I("buffer_load_dword v16, v31, %s, 0 offen sc1" % sr(SWS, 4))
if OPT["tlb"]:
    kv_srds()
    a.I("v_mov_b32 v254, 0")
    a.I("s_mov_b64 exec, 1")
    l0 = newlbl("TW"); l1 = newlbl("TW"); l2 = newlbl("TW"); le = newlbl("TW")
    a.I("s_cmp_eq_u32 %s, 0" % sr(sWAVE)); a.I("s_cbranch_scc0 %s" % l0)
    a.I("buffer_load_dword v9, v254, %s, 0 offen nt" % sr(SK, 4))
    a.I("buffer_load_dword v9, v254, %s, 0 offen" % sr(SOUT, 4))
    a.I("s_branch %s" % le)
    a.L(l0)
    a.I("s_cmp_eq_u32 %s, 1" % sr(sWAVE)); a.I("s_cbranch_scc0 %s" % l1)
    a.I("buffer_load_dword v9, v254, %s, 0 offen nt" % sr(SV, 4))
    a.I("buffer_load_dword v9, v254, %s, %s offen sc1" % (sr(SWS, 4), sr(sA1)))
    a.I("buffer_load_dword v9, v254, %s, 0 offen sc1" % sr(SWS, 4))
    a.I("s_branch %s" % le)
    a.L(l1)
    a.I("s_cmp_eq_u32 %s, 2" % sr(sWAVE)); a.I("s_cbranch_scc0 %s" % l2)
    a.I("buffer_load_dword v9, v254, %s, 0 offen" % sr(SWO, 4))
    a.I("s_mov_b32 %s, 589820" % sr(sT0))
    a.I("buffer_load_dword v9, v254, %s, %s offen" % (sr(SWO, 4), sr(sT0)))
    a.I("s_branch %s" % le)
    a.L(l2)
    a.I("s_andn2_b32 %s, %s, 7" % (sr(sT1), sr(sID)))
    a.I("s_mul_i32 %s, %s, %d" % (sr(sT1), sr(sT1), SLAB_BYTES))
    a.I("s_add_u32 %s, %s, 0x%x" % (sr(sT1), sr(sT1), WS_SLAB))
    a.I("buffer_load_dword v9, v254, %s, %s offen sc1" % (sr(SWS, 4), sr(sT1)))
    a.I("s_add_u32 %s, %s, %d" % (sr(sT1), sr(sT1), SLAB_BYTES * 8 - 4))
    a.I("buffer_load_dword v9, v254, %s, %s offen sc1" % (sr(SWS, 4), sr(sT1)))
    a.L(le)
    a.I("s_mov_b64 exec, -1")
a.I("v_lshlrev_b32 %s, 7, %s" % (vr(T1), vr(l31)))
a.I("v_add_u32 %s, 0x%x, %s" % (vr(T1), XB, vr(T1)))
a.I("v_bfe_u32 %s, %s, 1, 3" % (vr(T2), vr(l31)))
a.I("v_xor_b32 %s, %s, %s" % (vr(T2), vr(hf), vr(T2)))
a.I("v_lshlrev_b32 %s, 4, %s" % (vr(T2), vr(T2)))
a.I("v_add_u32 %s, %s, %s" % (vr(aX[0]), vr(T1), vr(T2)))
for s in range(1, 4):
    a.I("v_xor_b32 %s, %d, %s" % (vr(aX[s]), 32 * s, vr(aX[0])))
swp = 40
a.I("v_and_b32 %s, 1, %s" % (vr(T1), vr(c4)))
a.I("v_lshlrev_b32 %s, 1, %s" % (vr(T1), vr(T1)))
a.I("v_lshrrev_b32 %s, 1, %s" % (vr(T2), vr(c4)))
a.I("v_or_b32 %s, %s, %s" % (vr(swp), vr(T1), vr(T2)))
def tr_addr(dst, rowlane, cq, blk, extra_sgpr=None):
    a.I("v_xor_b32 %s, %s, %s" % (vr(T1), blk, vr(r_)))
    a.I("v_lshlrev_b32 %s, 6, %s" % (vr(T1), vr(T1)))
    a.I("v_lshrrev_b32 %s, 1, %s" % (vr(T2), vr(cq)))
    a.I("v_lshl_add_u32 %s, %s, 1, %s" % (vr(T2), vr(mh), vr(T2)))
    a.I("v_lshl_add_u32 %s, %s, 4, %s" % (vr(T1), vr(T2), vr(T1)))
    a.I("v_and_b32 %s, 1, %s" % (vr(T2), vr(cq)))
    a.I("v_lshl_add_u32 %s, %s, 3, %s" % (vr(T1), vr(T2), vr(T1)))
    a.I("v_lshl_add_u32 %s, %s, 8, %s" % (vr(dst), vr(rowlane), vr(T1)))
    if extra_sgpr is not None:
        a.I("v_add_u32 %s, %s, %s" % (vr(dst), sr(extra_sgpr), vr(dst)))
rowA = 41
a.I("v_lshl_add_u32 %s, %s, 3, %s" % (vr(rowA), vr(hf), vr(r_)))
tr_addr(aW[0], rowA, swp, sr(sWAVE))
a.I("v_xor_b32 %s, %s, %s" % (vr(T1), vr(hf), vr(L15)))
a.I("v_lshlrev_b32 %s, 4, %s" % (vr(T1), vr(T1)))
a.I("v_lshl_add_u32 %s, %s, 8, %s" % (vr(aK), vr(l31), vr(T1)))
a.I("v_add_u32 %s, %s, %s" % (vr(aK), sr(sLW8K), vr(aK)))
rowB = 42
a.I("v_lshl_add_u32 %s, %s, 2, %s" % (vr(rowB), vr(hf), vr(r_)))
for i in range(4):
    a.I("s_lshl_b32 %s, %s, 1" % (sr(sT0), sr(sLW)))
    a.I("s_xor_b32 %s, %s, %d" % (sr(sT0), sr(sT0), i))
    tr_addr(aV[i], rowB, c4, sr(sT0), sLW8K)
tr_addr(aWO[0], rowB, c4, sr(sWAVE))
a.I("v_lshlrev_b32 %s, 4, v1" % vr(vL16))
a.I("s_lshl_b32 %s, %s, 13" % (sr(sT0), sr(sQH)))
a.I("v_add_u32 %s, %s, %s" % (vr(aOI), sr(sT0), vr(vL16)))
a.I("v_lshrrev_b32 %s, 1, %s" % (vr(T1), vr(L4)))
a.I("v_lshlrev_b32 %s, 4, %s" % (vr(T1), vr(T1)))
a.I("v_lshl_add_u32 %s, %s, 2, %s" % (vr(T1), vr(mh), vr(T1)))
a.I("v_add_u32 %s, %s, %s" % (vr(T1), vr(T1), vr(r_)))
a.I("v_lshlrev_b32 %s, 5, %s" % (vr(T1), vr(T1)))
a.I("v_lshl_add_u32 %s, %s, 3, %s" % (vr(T1), vr(c4), vr(T1)))
a.I("v_add_u32 %s, 0x%x, %s" % (vr(aRA), ADDR["WOR"], vr(T1)))
a.I("v_lshrrev_b32 %s, 1, %s" % (vr(T1), vr(L4)))
a.I("v_lshlrev_b32 %s, 10, %s" % (vr(T1), vr(T1)))
a.I("v_lshl_add_u32 %s, %s, 5, %s" % (vr(T2), vr(mh), vr(L15)))
a.I("v_lshl_add_u32 %s, %s, 4, %s" % (vr(T1), vr(T2), vr(T1)))
a.I("s_lshl_b32 %s, %s, 13" % (sr(sT0), sr(sQH)))
a.I("s_lshl_b32 %s, %s, 8" % (sr(sT1), sr(sLW)))
a.I("s_add_u32 %s, %s, %s" % (sr(sT0), sr(sT0), sr(sT1)))
a.I("v_add_u32 %s, %s, %s" % (vr(aRB), sr(sT0), vr(T1)))
a.I("s_lshl_b32 %s, %s, 12" % (sr(sT0), sr(sLW)))
a.I("v_add_u32 %s, %s, %s" % (vr(vIMG), sr(sT0), vr(aOI)))
a.I("v_mov_b32 %s, 0x%x" % (vr(vFL), MISC))
a.I("s_lshl_b32 %s, %s, 2" % (sr(sT0), sr(sWAVE)))
a.I("s_add_u32 %s, %s, 0x%x" % (sr(sT0), sr(sT0), MISC))
a.I("v_mov_b32 %s, %s" % (vr(vFLO), sr(sT0)))
a.I("s_xor_b32 %s, %s, 4" % (sr(sT0), sr(sT0)))
a.I("v_mov_b32 %s, %s" % (vr(vFLP), sr(sT0)))
a.I("v_add_u32 %s, 0x%x, %s" % (vr(tA), SLOT(3), vr(aW[0])))
aX2 = [tC, tD, tE, tF]
for s_ in range(4):
    a.I("v_subrev_u32 %s, 0x%x, %s" % (vr(aX2[s_]), XB - SLOT(6), vr(aX[s_])))
a.I("s_barrier")
if OPT["lonly"]:
    a.I("v_mov_b32 %s, 1000" % vr(vFT))
    a.I("ds_write_b32 %s, %s offset:%d" % (vr(vFLO), vr(vFT), F_PROG))
    a.I("s_waitcnt lgkmcnt(0) vmcnt(0)")
    a.I("s_endpgm")
stamp(1)

def dump_regs(base, n, slot_index):
    a.I("s_lshl_b32 %s, %s, 2" % (sr(sT0), sr(sID)))
    a.I("s_add_u32 %s, %s, %s" % (sr(sT0), sr(sT0), sr(sWAVE)))
    a.I("s_mul_i32 %s, %s, %d" % (sr(sT0), sr(sT0), n * 256))
    a.I("s_add_u32 %s, %s, 0x%x" % (sr(sT0), sr(sT0), WS_DUMP + slot_index * 0x2000000))
    for j in range(0, n, 4):
        a.I("buffer_store_dwordx4 %s, %s, %s, %s offen" % (vr(base + j, 4), vr(vL16), sr(SWS, 4), sr(sT0)))
        a.I("s_add_u32 %s, %s, 1024" % (sr(sT0), sr(sT0)))
    a.I("s_waitcnt vmcnt(0)")

a.C("==== phase A ====")
QACC = 128; BR = KR; NG = 36
tick = {}
def a_reads(n, part):
    i, s = divmod(n, 4)
    xa = ADDR["X%d" % i]; wo_ = ADDR["W%d" % i]
    if xa >= XB: xo = xa - XB; ax = aX
    else: xo = xa - SLOT(6); ax = aX2
    hi = wo_ >= SLOT(3)
    aw = tA if hi else aW[0]
    if hi: wo_ -= SLOT(3)
    if part == 0:
        if s == 0:
            wait_land("A%d" % i)
            if i % 2 == 0: cst("A%d" % i)
        base = RING + 4 * (n % 4); o = wo_ + 4096 * s
        rdtr(base, aw, o)
        rdtr(base + 2, aw, o + 1024)
        tick[(n, 0)] = rd128(BR + 8 * (n % 4), ax[s], xo)
    else:
        tick[(n, 1)] = rd128(BR + 8 * (n % 4) + 4, ax[s], xo + 4096)
        if s == 3: set_prog("A%d" % i)
DG = OPT["dga"]
for n in range(DG):
    a_reads(n, 0); a_reads(n, 1)
for n in range(NG):
    q.wait(tick[(n, 0)])
    mfma32(QACC, RING + 4 * (n % 4), BR + 8 * (n % 4), c0=(n == 0))
    if n + DG < NG: a_reads(n + DG, 0)
    q.wait(tick[(n, 1)])
    mfma32(QACC + 16, RING + 4 * (n % 4), BR + 8 * (n % 4) + 4, c0=(n == 0))
    if n + DG < NG: a_reads(n + DG, 1)
stamp(2)
cst("Aend")
a.I("s_lshl_b32 %s, %s, 11" % (sr(sT0), sr(sWAVE)))
a.I("s_add_u32 %s, %s, %d" % (sr(sT0), sr(sT0), ADDR["QS"]))
a.I("v_add_u32 %s, %s, %s" % (vr(tA), sr(sT0), vr(vL16)))
a.I("v_add_u32 %s, 0x%x, %s" % (vr(tB), ADDR["QS"], vr(aOI)))
wait_prog(STEPNAME[NEED["QS"] - 1])
a.nop(6)
if OPT["dump"] == 1: dump_regs(QACC, 32, 0)
QP = 32
for t in range(2):
    for j in range(8):
        a.I("v_cvt_pk_bf16_f32 %s, %s, %s" % (vr(QP + 8 * t + j), vr(QACC + 16 * t + 2 * j), vr(QACC + 16 * t + 2 * j + 1)))
    for j in range(2):
        ds_write("ds_write_b128", tA, QP + 8 * t + 4 * j, 4, t * 8192 + j * 1024)
set_flag(F_QX)
a.I("v_mov_b32 %s, 0xff800000" % vr(vM))

a.C("==== phase K ====")
D = 7
tick = {}
def max_ops(t):
    return ["v_max3_f32 %s, %s, %s, %s" % (vr(vM), vr(S + 16 * t + 2 * j), vr(S + 16 * t + 2 * j + 1), vr(vM)) for j in range(8)]
pend = []
qtk = None
def k_mfma(m):
    global pend, qtk
    if m == 0:
        wait_all(F_QX)
        qtk = [rd128(QF + 4 * sgm, tB, sgm * 1024) for sgm in range(8)]
        set_prog("QS")
    t, s = divmod(m, 8)
    q.wait(tick[m])
    if m < 8: q.wait(qtk[m])
    mfma32(S + 16 * t, KR + 4 * (m % 8), QF + 4 * s, c0=(s == 0))
    if s == 2 and t >= 1: pend = max_ops(t - 1)
    if s >= 3 and pend:
        a.I(pend.pop(0)); a.I(pend.pop(0))
mdone = 0
for n in range(64 + D):
    m = n - D
    while mdone <= m and mdone < 64:
        k_mfma(mdone); mdone += 1
    if n < 64:
        t, s = divmod(n, 8)
        if s == 0:
            if t == 7 and OPT["kflush"]:
                while mdone < n:
                    k_mfma(mdone); mdone += 1
            wait_land("K%d" % t)
            if t % 4 == 0 or t == 7: cst("K%d" % t)
            a.I("v_add_u32 %s, 0x%x, %s" % (vr(tC), ADDR["K%d" % t], vr(aK)))
        tmp = tD if n % 2 == 0 else tE
        if s == 0:
            tick[n] = rd128(KR + 4 * (n % 8), tC, 0)
        else:
            a.I("v_xor_b32 %s, %d, %s" % (vr(tmp), 32 * s, vr(tC)))
            tick[n] = rd128(KR + 4 * (n % 8), tmp, 0)
        if s == 7: set_prog("K%d" % t)
assert not pend
stamp(3)
cst("Kend")
a.I("s_waitcnt vmcnt(0)")
a.I("v_readfirstlane_b32 %s, v16" % sr(sTAG))
a.I("s_lshl_b32 %s, %s, 8" % (sr(sT0), sr(sWAVE)))
a.I("s_add_u32 %s, %s, %d" % (sr(sT0), sr(sT0), MISC + MXD))
a.I("v_lshlrev_b32 %s, 2, v1" % vr(tA))
a.I("v_add_u32 %s, %s, %s" % (vr(tA), sr(sT0), vr(tA)))
a.I("v_xor_b32 %s, 0x100, %s" % (vr(tB), vr(tA)))
a.nop(8)
for s_ in max_ops(7): a.I(s_)
if OPT["dump"] == 2: dump_regs(S, 128, 0)

a.C("==== softmax ====")
a.I("s_add_u32 %s, %s, 1" % (sr(sTAG), sr(sTAG)))
a.I("v_mov_b32 %s, %s" % (vr(tC), vr(vM)))
a.nop(2)
a.I("v_permlane32_swap_b32 %s, %s" % (vr(tC), vr(vM)))
a.I("v_max_f32 %s, %s, %s" % (vr(vM), vr(tC), vr(vM)))
ds_write("ds_write_b32", tA, vM, 1, 0)
a.I("v_mov_b32 %s, 0" % vr(LS))
a.I("v_mov_b32 %s, 0" % vr(LS + 1))
a.I("v_mul_f32 %s, %s, %s" % (vr(vP0), sr(sC), vr(vM)))
a.I("v_sub_f32 %s, 0, %s" % (vr(vP0), vr(vP0)))
a.I("v_mov_b32 %s, %s" % (vr(vP1), vr(vP0)))
for t in range(8):
    b0 = S + 16 * t
    for j in range(8):
        a.I("v_pk_fma_f32 %s, %s, %s, %s" % (vr(b0 + 2 * j, 2), vr(b0 + 2 * j, 2), sr(sC, 2), vr(vP0, 2)))
    for j in range(16):
        a.I("v_exp_f32 %s, %s" % (vr(b0 + j), vr(b0 + j)))
    a.I("s_nop 0")
    for j in range(8):
        a.I("v_pk_add_f32 %s, %s, %s" % (vr(LS, 2), vr(LS, 2), vr(b0 + 2 * j, 2)))
    for j in range(8):
        a.I("v_cvt_pk_bf16_f32 %s, %s, %s" % (vr(b0 + j), vr(b0 + 2 * j), vr(b0 + 2 * j + 1)))
a.I("v_add_f32 %s, %s, %s" % (vr(vL), vr(LS), vr(LS + 1)))
a.I("v_mov_b32 %s, %s" % (vr(tC), vr(vL)))
a.nop(2)
a.I("v_permlane32_swap_b32 %s, %s" % (vr(tC), vr(vL)))
a.I("v_add_f32 %s, %s, %s" % (vr(vL), vr(tC), vr(vL)))
ds_write("ds_write_b32", tA, vL, 1, LD - MXD)
stamp(4)
cst("SMend")

a.C("==== phase V ====")
tick = {}
tV = [tC, tD, tE, tF]
for n in range(64 + D):
    m = n - D
    if m >= 0:
        t, rem = divmod(m, 8); u, ai = divmod(rem, 4)
        q.wait(tick[m])
        mfma32(OACC + 16 * ai, RING + 4 * (m % 8), S + 16 * t + 4 * u, c0=(m < 4))
    if n < 64:
        t, rem = divmod(n, 8); u, ai = divmod(rem, 4)
        if rem == 0:
            wait_land("V%d" % t)
            if t % 4 == 0 or t == 7: cst("V%d" % t)
            for i in range(4):
                a.I("v_add_u32 %s, 0x%x, %s" % (vr(tV[i]), ADDR["V%d" % t], vr(aV[i])))
        o = 4096 * u
        rdtr(RING + 4 * (n % 8), tV[ai], o)
        tick[n] = rdtr(RING + 4 * (n % 8) + 2, tV[ai], o + 2048)
        if rem == 7: set_prog("V%d" % t)
stamp(5)
cst("Vend")
a.C("==== O reduce ====")
a.I("s_lshl_b32 %s, %s, 13" % (sr(sT0), sr(sWAVE)))
a.I("s_add_u32 %s, %s, %d" % (sr(sT0), sr(sT0), ADDR["ORS"]))
a.I("v_add_u32 %s, %s, %s" % (vr(tA), sr(sT0), vr(vL16)))
a.I("v_xor_b32 %s, 0x2000, %s" % (vr(tA + 0 + 5 - 5 + 4), vr(tA)))
a.I("v_add_u32 %s, 0x%x, %s" % (vr(tC), IMG_ADDR[0], vr(vIMG)))
assert (ADDR["ORS"] // 8192) % 2 == 0
wait_prog(STEPNAME[max(NEED["ORS"], NEED["OI0"]) - 1])
a.nop(8)
for j in range(8):
    ds_write("ds_write_b128", tA, OACC + 32 + 4 * j, 4, j * 1024)
set_flag(F_OR)
wait_partner(F_OR)
cst("ORp")
tk = []
tkm = ds_read("ds_read_b32", vP0, 1, tB, 0)
tkl = ds_read("ds_read_b32", vP1, 1, tB, LD - MXD)
for j in range(8):
    tk.append(rd128(RING + 4 * j, tE, j * 1024))
set_prog("ORS")
q.wait(tkl)
a.I("v_max_f32 %s, %s, %s" % (vr(tD), vr(vP0), vr(vM)))
a.I("v_sub_f32 %s, %s, %s" % (vr(vM), vr(vM), vr(tD)))
a.I("v_sub_f32 %s, %s, %s" % (vr(vP0), vr(vP0), vr(tD)))
a.I("v_mul_f32 %s, %s, %s" % (vr(vM), sr(sC), vr(vM)))
a.I("v_mul_f32 %s, %s, %s" % (vr(vP0), sr(sC), vr(vP0)))
a.I("v_exp_f32 %s, %s" % (vr(vM), vr(vM)))
a.I("v_exp_f32 %s, %s" % (vr(vP0), vr(vP0)))
a.I("s_nop 0")
a.I("v_mul_f32 %s, %s, %s" % (vr(vL), vr(vL), vr(vM)))
a.I("v_fma_f32 %s, %s, %s, %s" % (vr(vL), vr(vP1), vr(vP0), vr(vL)))
a.I("v_rcp_f32 %s, %s" % (vr(vL), vr(vL)))
a.I("s_nop 0")
a.I("v_mul_f32 %s, %s, %s" % (vr(LS), vr(vP0), vr(vL)))
a.I("v_mul_f32 %s, %s, %s" % (vr(vP0), vr(vM), vr(vL)))
a.I("v_mov_b32 %s, %s" % (vr(LS + 1), vr(LS)))
a.I("v_mov_b32 %s, %s" % (vr(vP1), vr(vP0)))
PK = 96
for j in range(8):
    q.wait(tk[j])
    for h2 in range(2):
        d = OACC + 4 * j + 2 * h2
        a.I("v_pk_mul_f32 %s, %s, %s" % (vr(d, 2), vr(d, 2), vr(vP0, 2)))
        a.I("v_pk_fma_f32 %s, %s, %s, %s" % (vr(d, 2), vr(RING + 4 * j + 2 * h2, 2), vr(LS, 2), vr(d, 2)))
    for h2 in range(2):
        d = OACC + 4 * j + 2 * h2
        a.I("v_cvt_pk_bf16_f32 %s, %s, %s" % (vr(PK + 2 * j + h2), vr(d), vr(d + 1)))
    if j % 2 == 1:
        jj = j // 2
        a.I("buffer_store_dwordx4 %s, %s, %s, %s offen offset:%d%s" % (vr(PK + 4 * jj, 4), vr(vIMG), sr(SWS, 4), sr(sA1), jj * 1024, "" if OPT["e1plain"] else " sc0 sc1"))
        ds_write("ds_write_b128", tC, PK + 4 * jj, 4, jj * 1024)
set_flag(F_IMG)
a.I("v_xor_b32 %s, %s, %s" % (vr(tA), sr(sTAG), vr(PK)))
for j in range(1, 16):
    a.I("v_xor_b32 %s, %s, %s" % (vr(tA), vr(PK + j), vr(tA)))
a.I("s_lshl_b32 %s, %s, 2" % (sr(sT0), sr(sID)))
a.I("s_add_u32 %s, %s, %s" % (sr(sT0), sr(sT0), sr(sWAVE)))
a.I("s_lshl_b32 %s, %s, 8" % (sr(sT0), sr(sT0)))
a.I("s_add_u32 %s, %s, 0x%x" % (sr(sT0), sr(sT0), WS_CHK))
a.I("v_lshrrev_b32 %s, 2, %s" % (vr(tB), vr(vL16)))
a.I("buffer_store_dword %s, %s, %s, %s offen sc0 sc1" % (vr(tA), vr(tB), sr(SWS, 4), sr(sT0)))
if OPT["dump"] == 3: dump_regs(OACC, 32, 0)
stamp(6)
cst("ORend")

a.C("==== phase P ====")
tick = {}
tWO = tC; tOI = tE; tRB = tF
PACC = 160; RACC = 192; RA = [196, 200]; RB = [204, 208]
BRP = 96
def p_reads(n, part):
    step, kk = divmod(n, 4)
    hn, hh = divmod(step, 2)
    blk = 2 * hh + (kk >> 1); u = kk & 1
    wt = "WO%d" % step
    if part == 0:
        if kk == 0:
            if step == 0:
                wait_all(F_IMG)
                wait_land("WO0")
            else:
                wait_land(wt)
            if hh == 0 and hn > 0: wait_land("OI%d" % hn)
            cst("P%d" % step)
            a.I("v_add_u32 %s, 0x%x, %s" % (vr(tWO), ADDR[wt], vr(aWO[0])))
            if hh == 0:
                a.I("v_add_u32 %s, 0x%x, %s" % (vr(tOI), IMG_ADDR[hn], vr(vL16)))
                a.I("v_add_u32 %s, 0x%x, %s" % (vr(tRB), IMG_ADDR[hn], vr(aRB)))
        base = RING + 4 * (n % 4); o = 8192 * (kk >> 1) + 4096 * u
        rdtr(base, tWO, o)
        rdtr(base + 2, tWO, o + 2048)
        tick[(n, 0)] = rd128(BRP + 8 * (n % 4), tOI, (blk * 2 + u) * 1024)
    else:
        tick[(n, 1)] = rd128(BRP + 8 * (n % 4) + 4, tOI, 8192 + (blk * 2 + u) * 1024)
        if u == 0:
            ri = (n // 2) % 2
            o = hn * 4096 + blk * 1024
            rdtr(RA[ri], aRA, o)
            rdtr(RA[ri] + 2, aRA, o + 256)
            tick[(n, 2)] = rd128(RB[ri], tRB, blk * 2048)
        if kk == 3 and step < 3: set_prog("P%d" % step)
DG = OPT["dgp"]; NG = 32
for n in range(DG):
    p_reads(n, 0); p_reads(n, 1)
for n in range(NG):
    q.wait(tick[(n, 0)])
    mfma32(PACC, RING + 4 * (n % 4), BRP + 8 * (n % 4), c0=(n == 0))
    if n + DG < NG: p_reads(n + DG, 0)
    q.wait(tick[(n, 1)])
    mfma32(PACC + 16, RING + 4 * (n % 4), BRP + 8 * (n % 4) + 4, c0=(n == 0))
    if n % 2 == 0:
        q.wait(tick[(n, 2)])
        ri = (n // 2) % 2
        mfma16(RACC, RA[ri], RB[ri], c0=(n == 0))
    if n + DG < NG: p_reads(n + DG, 1)
stamp(7)
cst("Pend")
GS = 64
for g in range(6): a.I("v_mov_b32 %s, %s" % (vr(GS + 4 * g + 3), sr(sTAG)))
a.I("s_add_u32 %s, %s, 4096" % (sr(sT2), sr(sA2)))
a.nop(5)
def spos(d): return GS + 4 * (d // 3) + (d % 3)
srcs = [(PACC + 2 * j, PACC + 2 * j + 1) for j in range(16)] + [(RACC, RACC + 1), (RACC + 2, RACC + 3)]
for d, (x0, x1) in enumerate(srcs):
    a.I("v_cvt_pk_bf16_f32 %s, %s, %s" % (vr(spos(d)), vr(x0), vr(x1)))
    if d % 3 == 2:
        g = d // 3
        a.I("buffer_store_dwordx4 %s, %s, %s, %s offen offset:%d sc0 sc1" % (vr(GS + 4 * g, 4), vr(vL16), sr(SWS, 4), sr(sA2 if g < 4 else sT2), (g % 4) * 1024))
set_prog("PE")
stamp(8)
a.I("s_branch L_CEND")
compute_lines = a.lines

a = Asm()
a.L("L_LOADER")
T1, T2 = 30, 31
vX = [4, 5]; vW = [6, 7, 8, 9]; vK = [10, 11, 12, 13]; vV = 14; vWO = [15, 16, 17, 18]; vWOR = [19, 20, 21, 22]; vLn = 23
vFLl = 24; vFLOl = 25
vFTl = 104
sL4 = sLW
a.I("s_sub_u32 %s, %s, 4" % (sr(sL4), sr(sWAVE)))
a.I("s_lshl_b32 %s, %s, 12" % (sr(sLW8K), sr(sL4)))
a.I("v_lshlrev_b32 %s, 2, v1" % vr(T1))
a.I("v_add_u32 %s, 0x%x, %s" % (vr(T1), MISC, vr(T1)))
a.I("v_mov_b32 %s, 0" % vr(T2))
a.I("s_cmp_eq_u32 %s, 0" % sr(sL4))
a.I("s_cbranch_scc0 L_NOINIT")
a.I("ds_write_b32 %s, %s" % (vr(T1), vr(T2)))
a.L("L_NOINIT")
for i in range(2):
    a.I("v_lshrrev_b32 %s, 3, v1" % vr(T1))
    a.I("v_mul_u32_u24 %s, 1152, %s" % (vr(T1), vr(T1)))
    a.I("v_and_b32 %s, 7, v1" % vr(T2))
    a.I("v_xor_b32 %s, %s, v2" % (vr(T2), vr(T2)))
    if i & 1: a.I("v_xor_b32 %s, 4, %s" % (vr(T2), vr(T2)))
    a.I("v_lshl_add_u32 %s, %s, 4, %s" % (vr(T1), vr(T2), vr(T1)))
    a.I("v_add_u32 %s, %d, %s" % (vr(vX[i]), i * 8192, vr(T1)))
a.I("v_lshlrev_b32 %s, 2, v2" % vr(T2))
a.I("v_xor_b32 %s, %s, v3" % (vr(T2), vr(T2)))
a.I("v_lshlrev_b32 %s, 4, %s" % (vr(T2), vr(T2)))
a.I("v_lshl_add_u32 %s, v2, 13, %s" % (vr(T1), vr(T2)))
for i in range(4):
    a.I("v_add_u32 %s, %d, %s" % (vr(vW[i]), i * 31744, vr(T1)))
a.I("s_mul_i32 s7, %s, %d" % (sr(sJQ), OPT["ktrot"]))
a.I("s_add_u32 s7, s7, %s" % sr(sB))
a.I("s_cmp_ge_u32 s7, 9")
a.I("s_cselect_b32 %s, 9, 0" % sr(sT1))
a.I("s_sub_u32 s7, s7, %s" % sr(sT1))
a.I("s_mul_i32 %s, %s, 18432" % (sr(sA0), sr(sL4)))
a.I("s_lshl_b32 %s, %s, 17" % (sr(sA1), sr(sL4)))
a.I("s_waitcnt lgkmcnt(0)")
a.I("s_mul_i32 %s, %s, 73728" % (sr(sT0), sr(sB)))
mk_srd(SX, pX, sT0, 73728)
a.I("s_lshl_b32 %s, %s, 8" % (sr(sT0), sr(sH)))
mk_srd(SW, pWQ, sT0, 575 * 8192 + 256)
issued = []
published = [0]
if OPT["pfa"]:
    a.I("s_lshl_b32 %s, %s, 2" % (sr(sT0), sr(sJQ)))
    a.I("s_add_u32 %s, %s, %s" % (sr(sT0), sr(sT0), sr(sL4)))
    a.I("s_mul_i32 %s, %s, %d" % (sr(sT0), sr(sT0), 36 * 128))
    a.I("v_lshlrev_b32 v40, 7, v1")
    a.I("v_lshrrev_b32 v42, 1, v1")
    a.I("v_lshlrev_b32 v42, 13, v42")
    a.I("v_and_b32 v43, 1, v1")
    a.I("v_lshl_add_u32 v42, v43, 7, v42")
    a.I("s_mul_i32 %s, %s, 72" % (sr(sT1), sr(sB)))
    a.I("s_mul_i32 %s, %s, 18" % (sr(sT2), sr(sL4)))
    a.I("s_add_u32 %s, %s, %s" % (sr(sT1), sr(sT1), sr(sT2)))
    a.I("s_lshl_b32 %s, %s, 13" % (sr(sT1), sr(sT1)))
    a.I("s_mov_b32 exec_lo, -1"); a.I("s_mov_b32 exec_hi, 0xf")
    if OPT["pfa"] == 1:
        a.I("buffer_load_dword v41, v42, %s, %s offen%s" % (sr(SW, 4), sr(sT1), " nt" if OPT["ntpf"] else ""))
    if OPT["pfa"] == 3:
        a.I("s_mov_b32 %s, %s" % (sr(sI2), sr(sT0)))
    else:
        a.I("buffer_load_dword v41, v40, %s, %s offen%s" % (sr(SX, 4), sr(sT0), " nt" if OPT["ntpf"] else ""))
    a.I("s_mov_b64 exec, -1")
if OPT["pk"]:
    a.I("s_and_b32 %s, %s, 1" % (sr(sT0), sr(sJQ)))
    a.I("s_cmp_eq_u32 %s, 1" % sr(sT0))
    a.I("s_cbranch_scc0 L_NOPK")
    a.I("s_lshr_b32 %s, %s, 1" % (sr(sT0), sr(sH)))
    a.I("s_lshl_b32 %s, %s, 4" % (sr(sT1), sr(sB)))
    a.I("s_add_u32 %s, %s, %s" % (sr(sT0), sr(sT0), sr(sT1)))
    a.I("s_lshl_b32 %s, %s, 17" % (sr(sT0), sr(sT0)))
    mk_srd(SK, pK, sT0, 131072)
    a.I("v_lshlrev_b32 v40, 7, v1")
    a.I("s_lshl_b32 %s, %s, 14" % (sr(sT0), sr(sL4)))
    if OPT["pk"] == 2:
        a.I("s_lshl_b32 %s, %s, 1" % (sr(sT0), sr(sT0)))
    elif OPT["rot"]:
        a.I("s_add_u32 %s, %s, 65536" % (sr(sT0), sr(sT0)))
    for j in range(OPT["pk"] * 2):
        a.I("buffer_load_dword v41, v40, %s, %s offen%s" % (sr(SK, 4), sr(sT0), " nt" if OPT["ntkv"] else ""))
        a.I("s_add_u32 %s, %s, 8192" % (sr(sT0), sr(sT0)))
    a.L("L_NOPK")
def dma(voff, srd, soff, imm, flags=""):
    if OPT["noload"]:
        a.I("s_nop 0"); return
    a.I("buffer_load_dwordx4 %s, %s, %s offen offset:%d%s lds" % (vr(voff), sr(srd, 4), sr(soff), imm, flags))
def late_setup():
    a.I("v_lshl_add_u32 %s, v2, 8, %s" % (vr(vV), vr(T2)))
    a.I("v_mul_u32_u24 %s, 1152, v2" % vr(T1))
    a.I("v_add_u32 %s, %s, %s" % (vr(T1), vr(T1), vr(T2)))
    for i in range(4):
        a.I("v_add_u32 %s, %d, %s" % (vr(vWO[i]), i * 3584, vr(T1)))
    for i in range(4):
        a.I("v_add_u32 %s, %d, v2" % (vr(T1), 4 * i))
        a.I("v_xor_b32 %s, %s, v3" % (vr(T1), vr(T1)))
        a.I("v_lshlrev_b32 %s, 4, %s" % (vr(T1), vr(T1)))
        a.I("v_lshl_add_u32 %s, v2, 8, %s" % (vr(vK[i]), vr(T1)))
    a.I("v_lshrrev_b32 %s, 1, v1" % vr(T1))
    a.I("v_mul_u32_u24 %s, 1152, %s" % (vr(T1), vr(T1)))
    a.I("v_and_b32 %s, 1, v1" % vr(T2))
    a.I("v_lshl_add_u32 %s, %s, 4, %s" % (vr(T1), vr(T2), vr(T1)))
    for i in range(4):
        a.I("v_add_u32 %s, %d, %s" % (vr(vWOR[i]), i * 35840, vr(T1)))
    a.I("v_lshlrev_b32 %s, 4, v1" % vr(vLn))
    kv_srds()
    mk_srd(SOUT, pOUT, None, 589824)
    if OPT["rot"]:
        a.I("s_and_b32 %s, %s, 1" % (sr(sT0), sr(sJQ)))
        a.I("s_lshl_b32 %s, %s, 16" % (sr(sT0), sr(sT0)))
        a.I("s_add_u32 %s, %s, %s" % (sr(sA3), sr(sT0), sr(sLW8K)))
    else:
        a.I("s_mov_b32 %s, %s" % (sr(sA3), sr(sLW8K)))
    a.I("s_xor_b32 %s, %s, 0x10000" % (sr(sA4), sr(sA3)))
    a.I("v_mov_b32 %s, 0x%x" % (vr(vFLl), MISC))
    a.I("s_lshl_b32 %s, %s, 2" % (sr(sT0), sr(sL4)))
    a.I("s_add_u32 %s, %s, 0x%x" % (sr(sT0), sr(sT0), MISC + F_LAND))
    a.I("v_mov_b32 %s, %s" % (vr(vFLOl), sr(sT0)))
def init_setup():
    mk_srd(SWS, pWS, None, WS_SIZE)
    a.I("s_lshl_b32 %s, %s, 7" % (sr(sT0), sr(sB)))
    a.I("v_mov_b32 v38, %s" % sr(sT0))
    a.I("buffer_load_dword v39, v38, %s, 0 offen sc1" % sr(SWS, 4)); issued.append("EPOCH")
def issue(unit):
    a.C("issue " + unit)
    if unit[0] == "A":
        i = int(unit[1:])
        a.I("s_add_u32 %s, s7, %d" % (sr(sT0), i))
        a.I("s_cmp_ge_u32 %s, 9" % sr(sT0))
        a.I("s_cselect_b32 %s, 9, 0" % sr(sT1))
        a.I("s_sub_u32 %s, %s, %s" % (sr(sA2), sr(sT0), sr(sT1)))
        a.I("s_lshl_b32 %s, %s, 7" % (sr(sT0), sr(sA2)))
        a.I("s_lshr_b32 %s, %s, 1" % (sr(sT1), sr(sLW8K)))
        a.I("s_add_u32 m0, %s, %d" % (sr(sT1), ADDR["X%d" % i]))
        a.I("s_add_u32 %s, %s, %s" % (sr(sT0), sr(sT0), sr(sA0)))
        for j in range(2):
            if OPT["nox"]: continue
            dma(vX[j], SX, sT0, j * 1024, " nt" if OPT["ntx"] else ""); issued.append(unit)
        a.I("s_lshl_b32 %s, %s, 19" % (sr(sT0), sr(sA2)))
        a.I("s_add_u32 m0, %s, %d" % (sr(sLW8K), ADDR["W%d" % i]))
        a.I("s_add_u32 %s, %s, %s" % (sr(sT0), sr(sT0), sr(sA1)))
        for j in range(4):
            if OPT["now"]: continue
            dma(vW[j], SW, sT0, j * 1024, " nt" if OPT["ntw"] else ""); issued.append(unit)
    elif unit.startswith("OI"):
        n = int(unit[2:])
        a.I("s_add_u32 m0, %s, %d" % (sr(sLW8K), IMG_ADDR[n]))
        a.I("s_nop 0")
        for j in range(4):
            dma(vLn, SWS, [sA1, sA3, sA4][n - 1], j * 1024, " sc0 sc1"); issued.append(unit)
    elif unit == "PF":
        if OPT["pfwo"]:
            a.I("s_lshl_b32 %s, %s, 2" % (sr(sT0), sr(sB)))
            a.I("s_add_u32 %s, %s, %s" % (sr(sT0), sr(sT0), sr(sJQ)))
            a.I("s_lshl_b32 %s, %s, 2" % (sr(sT0), sr(sT0)))
            a.I("s_add_u32 %s, %s, %s" % (sr(sT0), sr(sT0), sr(sL4)))
            a.I("s_mul_i32 %s, %s, %d" % (sr(sT0), sr(sT0), 36 * 128))
            a.I("v_lshlrev_b32 v40, 7, v1")
            a.I("s_mov_b32 exec_lo, -1"); a.I("s_mov_b32 exec_hi, 0xf")
            a.I("buffer_load_dword v41, v40, %s, %s offen%s" % (sr(SWO, 4), sr(sT0), " nt" if OPT["ntpf"] else "")); issued.append(unit)
            a.I("s_mov_b64 exec, -1")
    elif unit == "WOR":
        a.I("s_add_u32 %s, %s, %s" % (sr(sT0), sr(sL4), sr(sJQ)))
        a.I("s_and_b32 %s, %s, 3" % (sr(sT0), sr(sT0)))
        a.I("s_mul_i32 %s, %s, %d" % (sr(sT0), sr(sT0), 128 * 1152))
        a.I("s_lshl_b32 %s, %s, 5" % (sr(sT1), sr(sJQ)))
        a.I("s_add_u32 %s, %s, %s" % (sr(sT0), sr(sT0), sr(sT1)))
        a.I("s_add_u32 m0, %s, %d" % (sr(sLW8K), ADDR["WOR"]))
        a.I("s_add_u32 %s, %s, 1024" % (sr(sT0), sr(sT0)))
        for j in range(4):
            dma(vWOR[j], SWO, sT0, j * 1024, " nt" if OPT["ntwo"] else ""); issued.append(unit)
    elif unit[0:2] == "WO":
        u = int(unit[2:])
        a.I("s_lshl_b32 %s, %s, 1" % (sr(sT0), sr(sJQ)))
        a.I("s_add_u32 %s, %s, %d" % (sr(sT0), sr(sT0), u))
        a.I("s_and_b32 %s, %s, 7" % (sr(sT0), sr(sT0)))
        a.I("s_mul_i32 %s, %s, 73728" % (sr(sT0), sr(sT0)))
        a.I("s_add_u32 %s, %s, %s" % (sr(sT0), sr(sT0), sr(sA0)))
        a.I("s_lshl_b32 %s, %s, 8" % (sr(sT1), sr(sJQ)))
        a.I("s_add_u32 m0, %s, %d" % (sr(sLW8K), ADDR[unit]))
        a.I("s_add_u32 %s, %s, %s" % (sr(sT0), sr(sT0), sr(sT1)))
        for j in range(4):
            dma(vWO[j], SWO, sT0, j * 1024, " nt" if OPT["ntwo"] else ""); issued.append(unit)
    elif unit[0] in "KV":
        t = int(unit[1:])
        base = sA3 if t < 4 else sA4
        a.I("s_add_u32 m0, %s, %d" % (sr(sLW8K), ADDR[unit]))
        a.I("s_add_u32 %s, %s, %d" % (sr(sT0), sr(base), (t & 3) * 16384))
        for j in range(4):
            if unit[0] == "K": dma(vK[j], SK, sT0, j * 1024, " nt" if OPT["ntkv"] else "")
            else: dma(vV, SV, sT0, j * 1024, " nt" if OPT["ntkv"] else "")
            issued.append(unit)
    else:
        raise Exception(unit)
def publish(count):
    if count <= published[0]: return
    names = set(n for n, _ in units[:count])
    idxs = [i for i, t in enumerate(issued) if t in names]
    if idxs:
        n = len(issued) - 1 - max(idxs)
        a.I("s_waitcnt vmcnt(%d)" % min(n, 63))
    a.I("v_mov_b32 %s, %d" % (vr(vFTl), count))
    a.I("s_mov_b64 exec, 1")
    a.I("ds_max_u32 %s, %s" % (vr(vFLOl), vr(vFTl)))
    a.I("s_mov_b64 exec, -1")
    published[0] = count
def lstamp(i):
    if OPT["sel"] and units[i][0] not in ("A1", "A8", "K3", "K7", "V3", "V7", "WO3", "WO7"): return
    if OPT["stamps"] == 2:
        a.I("s_memrealtime s[90:91]"); a.I("s_waitcnt lgkmcnt(0)"); a.I("v_writelane_b32 v100, s90, %d" % i)
LOOK = OPT["look"]
proven = 0
for ui, (unit, need) in enumerate(units):
    if ui == 1:
        if OPT["pfa"] == 3:
            a.I("s_mov_b32 exec_lo, -1"); a.I("s_mov_b32 exec_hi, 0xf")
            a.I("buffer_load_dword v41, v40, %s, %s offen%s" % (sr(SX, 4), sr(sI2), " nt" if OPT["ntpf"] else "")); issued.append("PFX")
            a.I("s_mov_b64 exec, -1")
        a.I("v_mov_b32 %s, 0x%x" % (vr(vFLl), MISC))
        a.I("s_lshl_b32 %s, %s, 2" % (sr(sT0), sr(sL4)))
        a.I("s_add_u32 %s, %s, 0x%x" % (sr(sT0), sr(sT0), MISC + F_LAND))
        a.I("v_mov_b32 %s, %s" % (vr(vFLOl), sr(sT0)))
        a.I("s_waitcnt lgkmcnt(0)")
        a.I("s_barrier")
    if ui == 2:
        init_setup(); late_setup()

    if need > proven:
        save_pub = published[0]
        ok = newlbl("OK"); sp = newlbl("SP")
        a.I("s_cmp_ge_u32 %s, %d" % (sr(sKNOW), need))
        a.I("s_cbranch_scc1 %s" % ok)
        a.L(sp)
        a.I("ds_read_b128 %s, %s offset:%d" % (vr(vFTl, 4), vr(vFLl), F_PROG))
        a.I("s_waitcnt lgkmcnt(0)")
        a.I("v_min3_u32 %s, %s, %s, %s" % (vr(vFTl), vr(vFTl), vr(vFTl + 1), vr(vFTl + 2)))
        a.I("v_min_u32 %s, %s, %s" % (vr(vFTl), vr(vFTl), vr(vFTl + 3)))
        a.I("s_nop 0")
        a.I("v_readfirstlane_b32 %s, %s" % (sr(sKNOW), vr(vFTl)))
        a.I("s_add_i32 %s, %s, -1" % (sr(sBUD), sr(sBUD)))
        a.I("s_cmp_lt_i32 %s, 0" % sr(sBUD))
        a.I("s_cbranch_scc1 %s" % ok)
        a.I("s_cmp_ge_u32 %s, %d" % (sr(sKNOW), need))
        a.I("s_cbranch_scc1 %s" % ok)
        if OPT["lsleep"]: a.I("s_sleep %d" % OPT["lsleep"])
        a.I("s_branch %s" % sp)
        a.L(ok)
        proven = need
    if unit.startswith("OI") and OPT["lonly"]: continue
    if unit == "OI1":
        publish(ui)
        sCK = [sI0, sI1, sI2]
        def oi_issue(n):
            a.I("s_add_u32 m0, %s, %d" % (sr(sLW8K), IMG_ADDR[n]))
            a.I("s_nop 0")
            for j in range(4):
                dma(vLn, SWS, [sA1, sA3, sA4][n - 1], j * 1024, " sc0 sc1")
            a.I("buffer_load_dword v%d, v43, %s, %s offen sc0 sc1" % (44 + n, sr(SWS, 4), sr(sCK[n - 1])))
        for n in range(1, 4): oi_issue(n)
        a.I("s_mov_b32 %s, 0" % sr(sT3))
        for n in range(1, 4):
            a.I("s_waitcnt vmcnt(%d)" % (5 * (3 - n)))
            a.L("L_VER%d" % n)
            a.I("v_add_u32 v42, %s, %s" % (sr(sLW8K), vr(vLn)))
            a.I("v_add_u32 v42, 0x%x, v42" % IMG_ADDR[n])
            for j in range(4):
                a.I("ds_read_b128 %s, v42 offset:%d" % (vr(48 + 4 * j, 4), j * 1024))
            a.I("s_waitcnt lgkmcnt(0)")
            a.I("v_xor_b32 v42, %s, v%d" % (sr(sTAG), 44 + n))
            for j in range(16):
                a.I("v_xor_b32 v42, v%d, v42" % (48 + j))
            a.I("v_cmp_ne_u32 vcc, 0, v42")
            a.I("s_add_u32 %s, %s, 1" % (sr(sT3), sr(sT3)))
            a.I("s_cmp_gt_u32 %s, 40000" % sr(sT3))
            a.I("s_cbranch_scc1 L_VOK%d" % n)
            a.I("s_cbranch_vccz L_VOK%d" % n)
            oi_issue(n)
            a.I("s_waitcnt vmcnt(0)")
            a.I("s_branch L_VER%d" % n)
            a.L("L_VOK%d" % n)
            a.I("v_mov_b32 %s, %d" % (vr(vFTl), ui + n))
            a.I("s_mov_b64 exec, 1")
            a.I("ds_max_u32 %s, %s" % (vr(vFLOl), vr(vFTl)))
            a.I("s_mov_b64 exec, -1")
        issued[:] = []
        published[0] = ui + 3
        lstamp(ui)
        continue
    if unit in ("OI2", "OI3"): continue
    if ui >= 1: a.I("ds_read_b128 %s, %s offset:%d" % (vr(vFTl + 4, 4), vr(vFLl), F_PROG))
    issue(unit)
    pub_emitted = [False]
    lk = 1 if (OPT["tail1"] and (unit.startswith("OI") or unit in ("WO7", "K%d" % OPT["kearly"], "V0", "PF"))) else LOOK
    if ui - lk + 1 > 0:
        before = published[0]
        publish(ui - lk + 1)
        pub_emitted[0] = published[0] != before
    if ui >= 1:
        LS_ = {"A1": 1, "A5": 2, "K0": 3, "K4": 4, "V0": 5, "V4": 6, "WOR": 7, "WO6": 8}
        if OPT["stamps"] == 1 and unit in LS_:
            a.I("s_memrealtime %s" % sr(sSTAMP + 2 * LS_[unit], 2))
            a.I("s_waitcnt lgkmcnt(0)")
        else:
            a.I("s_waitcnt lgkmcnt(%d)" % (1 if (ui - LOOK + 1 > 0 and pub_emitted[0]) else 0))
        a.I("v_min3_u32 %s, %s, %s, %s" % (vr(vFTl + 4), vr(vFTl + 4), vr(vFTl + 5), vr(vFTl + 6)))
        a.I("v_min_u32 %s, %s, %s" % (vr(vFTl + 4), vr(vFTl + 4), vr(vFTl + 7)))
        a.I("s_nop 0")
        a.I("v_readfirstlane_b32 %s, %s" % (sr(sKNOW), vr(vFTl + 4)))
    lstamp(ui)
    if unit == "V0":
        a.I("v_readfirstlane_b32 %s, v39" % sr(sTAG))
        a.I("s_nop 0")
        a.I("s_add_u32 %s, %s, 1" % (sr(sTAG), sr(sTAG)))
    if unit == "V7":
        a.I("v_lshlrev_b32 v43, 2, v1")
        for n in range(1, 4):
            a.I("s_add_u32 %s, %s, %d" % (sr(sT0), sr(sJQ), n))
            a.I("s_and_b32 %s, %s, 3" % (sr(sT0), sr(sT0)))
            a.I("s_lshl_b32 %s, %s, 3" % (sr(sT0), sr(sT0)))
            a.I("s_andn2_b32 %s, %s, 0x18" % (sr(sT1), sr(sID)))
            a.I("s_or_b32 %s, %s, %s" % (sr(sT0), sr(sT0), sr(sT1)))
            a.I("s_lshl_b32 %s, %s, 2" % (sr(sT1), sr(sT0)))
            a.I("s_add_u32 %s, %s, %s" % (sr(sT1), sr(sT1), sr(sL4)))
            a.I("s_lshl_b32 %s, %s, 8" % (sr(sT1), sr(sT1)))
            a.I("s_add_u32 %s, %s, 0x%x" % (sr([sI0, sI1, sI2][n - 1]), sr(sT1), WS_CHK))
            a.I("s_mul_i32 %s, %s, %d" % (sr(sT0), sr(sT0), IMG_BYTES))
            a.I("s_add_u32 %s, %s, %s" % (sr(sT0), sr(sT0), sr(sLW8K)))
            a.I("s_add_u32 %s, %s, 0x%x" % (sr([sA1, sA3, sA4][n - 1]), sr(sT0), WS_IMG))
publish(len(units))
if OPT["stamps"] == 2:
    a.I("v_writelane_b32 v100, %s, 63" % sr(sSTAMP))
    a.I("s_lshl_b32 %s, %s, 2" % (sr(sT0), sr(sID)))
    a.I("s_add_u32 %s, %s, %s" % (sr(sT0), sr(sT0), sr(sLW)))
    a.I("s_lshl_b32 %s, %s, 8" % (sr(sT0), sr(sT0)))
    a.I("s_add_u32 %s, %s, 0x%x" % (sr(sT0), sr(sT0), WS_STAMP + 0x100000))
    a.I("v_lshlrev_b32 v103, 2, v1")
    a.I("buffer_store_dword v100, v103, %s, %s offen" % (sr(SWS, 4), sr(sT0)))
if OPT["lonly"]:
    a.I("s_waitcnt vmcnt(0)")
    a.I("s_endpgm")
a.I("s_branch L_FINAL")
loader_lines = a.lines

a = Asm()
a.L("L_FINAL")
a.I("s_cmp_ge_u32 %s, 7" % sr(sWAVE))
a.I("s_cbranch_scc1 L_FIN_SKIP")
sP, sW, sG = sA1, sA2, sA3
a.I("s_mul_i32 %s, %s, 3" % (sr(sP), sr(sKS)))
a.I("s_add_u32 %s, %s, %s" % (sr(sP), sr(sP), sr(sLW)))
a.I("s_mul_i32 %s, %s, 43" % (sr(sW), sr(sP)))
a.I("s_lshr_b32 %s, %s, 8" % (sr(sW), sr(sW)))
a.I("s_mul_i32 %s, %s, 6" % (sr(sT0), sr(sW)))
a.I("s_sub_u32 %s, %s, %s" % (sr(sG), sr(sP), sr(sT0)))
a.I("s_mul_i32 %s, %s, 6144" % (sr(sT0), sr(sW)))
a.I("s_lshl_b32 %s, %s, 10" % (sr(sT1), sr(sG)))
a.I("s_add_u32 %s, %s, %s" % (sr(sT0), sr(sT0), sr(sT1)))
a.I("s_andn2_b32 %s, %s, 7" % (sr(sT1), sr(sID)))
a.I("s_mul_i32 %s, %s, %d" % (sr(sT1), sr(sT1), SLAB_BYTES))
a.I("s_add_u32 %s, %s, %s" % (sr(sT1), sr(sT1), sr(sT0)))
a.I("s_add_u32 %s, %s, 0x%x" % (sr(sA0), sr(sT1), WS_SLAB))
a.I("v_lshlrev_b32 v5, 4, v1")
a.I("s_mov_b32 %s, 0" % sr(sT3))
if OPT["finwait"]:
    a.L("L_FW")
    a.I("ds_read_b128 v[104:107], v24 offset:%d" % F_PROG)
    a.I("s_waitcnt lgkmcnt(0)")
    a.I("v_min3_u32 v104, v104, v105, v106")
    a.I("v_min_u32 v104, v104, v107")
    a.I("s_nop 0")
    a.I("v_readfirstlane_b32 %s, v104" % sr(sKNOW))
    a.I("s_add_i32 %s, %s, -1" % (sr(sBUD), sr(sBUD)))
    a.I("s_cmp_lt_i32 %s, 0" % sr(sBUD))
    a.I("s_cbranch_scc1 L_FW_X")
    a.I("s_cmp_ge_u32 %s, %d" % (sr(sKNOW), STEP["PE"] + 1))
    a.I("s_cbranch_scc1 L_FW_X")
    a.I("s_sleep 1")
    a.I("s_branch L_FW")
    a.L("L_FW_X")
    if OPT["fin0"]: a.I("s_sleep %d" % OPT["fin0"])
def fin_loads():
    a.I("s_mov_b32 %s, %s" % (sr(sT1), sr(sA0)))
    for k in range(8):
        a.I("buffer_load_dwordx4 %s, v5, %s, %s offen sc0 sc1" % (vr(32 + 4 * k, 4), sr(SWS, 4), sr(sT1)))
        if k < 7: a.I("s_add_u32 %s, %s, %d" % (sr(sT1), sr(sT1), SLAB_BYTES))
fin_loads()
a.I("v_and_b32 v6, 31, v1")
a.I("v_mul_u32_u24 v6, 1152, v6")
a.I("v_lshrrev_b32 v7, 5, v1")
a.I("v_lshl_add_u32 v6, v7, 3, v6")
a.I("v_and_b32 v7, 15, v1")
a.I("v_mul_u32_u24 v7, 1152, v7")
a.I("v_lshrrev_b32 v8, 4, v1")
a.I("v_lshl_add_u32 v7, v8, 3, v7")
sO = [8, 9, 10]; sR = [12, 13, 14]
for i in range(3):
    a.I("s_mul_i32 %s, %s, 3" % (sr(sT0), sr(sG)))
    a.I("s_add_u32 %s, %s, %d" % (sr(sT0), sr(sT0), i))
    a.I("s_bfe_u32 %s, %s, 0x20001" % (sr(sT1), sr(sT0)))
    a.I("s_lshl_b32 %s, %s, 3" % (sr(sT1), sr(sT1)))
    a.I("s_and_b32 %s, %s, 1" % (sr(sT2), sr(sT0)))
    a.I("s_lshl_b32 %s, %s, 1" % (sr(sT2), sr(sT2)))
    a.I("s_add_u32 %s, %s, %s" % (sr(sT1), sr(sT1), sr(sT2)))
    a.I("s_lshl_b32 %s, %s, 5" % (sr(sT2), sr(sW)))
    a.I("s_add_u32 %s, %s, %s" % (sr(sT1), sr(sT1), sr(sT2)))
    a.I("s_lshl_b32 %s, %s, 7" % (sr(sT2), sr(sJQ)))
    a.I("s_add_u32 %s, %s, %s" % (sr(sT1), sr(sT1), sr(sT2)))
    a.I("s_lshr_b32 %s, %s, 3" % (sr(sT2), sr(sT0)))
    a.I("s_and_b32 %s, %s, 1" % (sr(sT2), sr(sT2)))
    a.I("s_lshl_b32 %s, %s, 5" % (sr(sT2), sr(sT2)))
    a.I("s_lshl_b32 %s, %s, 6" % (sr(sO[i]), sr(sB)))
    a.I("s_add_u32 %s, %s, %s" % (sr(sT2), sr(sT2), sr(sO[i])))
    a.I("s_mul_i32 %s, %s, 1152" % (sr(sT2), sr(sT2)))
    a.I("s_lshl_b32 %s, %s, 1" % (sr(sT1), sr(sT1)))
    a.I("s_add_u32 %s, %s, %s" % (sr(sO[i]), sr(sT1), sr(sT2)))
    a.I("s_sub_u32 %s, %s, 16" % (sr(sT1), sr(sT0)))
    a.I("s_lshl_b32 %s, %s, 1" % (sr(sT1), sr(sT1)))
    a.I("s_lshl_b32 %s, %s, 4" % (sr(sT2), sr(sJQ)))
    a.I("s_add_u32 %s, %s, %s" % (sr(sT1), sr(sT1), sr(sT2)))
    a.I("s_add_u32 %s, %s, 512" % (sr(sT1), sr(sT1)))
    a.I("s_lshl_b32 %s, %s, 1" % (sr(sT1), sr(sT1)))
    a.I("s_lshl_b32 %s, %s, 4" % (sr(sT2), sr(sW)))
    a.I("s_lshl_b32 %s, %s, 6" % (sr(sR[i]), sr(sB)))
    a.I("s_add_u32 %s, %s, %s" % (sr(sT2), sr(sT2), sr(sR[i])))
    a.I("s_mul_i32 %s, %s, 1152" % (sr(sT2), sr(sT2)))
    a.I("s_add_u32 %s, %s, %s" % (sr(sT1), sr(sT1), sr(sT2)))
    a.I("s_cmp_ge_u32 %s, 16" % sr(sT0))
    a.I("s_cselect_b32 %s, %s, %s" % (sr(sO[i]), sr(sT1), sr(sO[i])))
    a.I("s_cselect_b32 %s, 1, 0" % sr(sR[i]))
a.I("s_branch L_FIN_CHK")
a.L("L_FIN_RETRY")
if OPT["finsleep"]: a.I("s_sleep %d" % OPT["finsleep"])
fin_loads()
a.L("L_FIN_CHK")
a.I("s_waitcnt vmcnt(0)")
a.I("v_xor_b32 v12, %s, v35" % sr(sTAG))
for k in range(1, 8):
    a.I("v_xor_b32 v13, %s, v%d" % (sr(sTAG), 35 + 4 * k))
    a.I("v_or_b32 v12, v13, v12")
a.I("v_cmp_ne_u32 vcc, 0, v12")
a.I("s_add_u32 %s, %s, 1" % (sr(sT3), sr(sT3)))
a.I("s_cmp_gt_u32 %s, 40000" % sr(sT3))
a.I("s_cbranch_scc1 L_FIN_GO")
a.I("s_cbranch_vccnz L_FIN_RETRY")
a.L("L_FIN_GO")
for i in range(3):
    acc = 64 + 2 * i
    for k in range(8):
        r = 32 + 4 * k + i
        if k == 0:
            a.I("v_lshlrev_b32 v%d, 16, v%d" % (acc, r))
            a.I("v_and_b32 v%d, 0xffff0000, v%d" % (acc + 1, r))
        else:
            t = 72 + 2 * ((k + i) % 3)
            a.I("v_lshlrev_b32 v%d, 16, v%d" % (t, r))
            a.I("v_and_b32 v%d, 0xffff0000, v%d" % (t + 1, r))
            a.I("v_pk_add_f32 v[%d:%d], v[%d:%d], v[%d:%d]" % (acc, acc + 1, acc, acc + 1, t, t + 1))
    a.I("v_cvt_pk_bf16_f32 v%d, v%d, v%d" % (80 + i, acc, acc + 1))
    a.I("s_cmp_eq_u32 %s, 1" % sr(sR[i]))
    a.I("s_cselect_b64 vcc, -1, 0")
    a.I("v_cndmask_b32 v%d, v6, v7, vcc" % (84 + i))
    a.I("buffer_store_dword v%d, v%d, %s, %s offen%s" % (80 + i, 84 + i, sr(SOUT, 4), sr(sO[i]), ["", " sc0 sc1", " nt"][OPT["outsc"]]))
a.I("s_and_b32 %s, %s, 31" % (sr(sT0), sr(sID)))
a.I("s_cmp_eq_u32 %s, 0" % sr(sT0))
a.I("s_cbranch_scc0 L_FIN_SKIP")
a.I("s_cmp_eq_u32 %s, 4" % sr(sWAVE))
a.I("s_cbranch_scc0 L_FIN_SKIP")
a.I("s_lshl_b32 %s, %s, 7" % (sr(sT0), sr(sB)))
a.I("v_mov_b32 v4, %s" % sr(sTAG))
a.I("v_mov_b32 v5, 0")
a.I("s_mov_b64 exec, 1")
a.I("buffer_store_dword v4, v5, %s, %s offen sc0 sc1" % (sr(SWS, 4), sr(sT0)))
a.I("s_mov_b64 exec, -1")
a.L("L_FIN_SKIP")
a.L("L_CEND")
if OPT["stamps"] == 4:
    a.I("s_cmp_lt_u32 %s, 4" % sr(sWAVE))
    a.I("s_cbranch_scc0 L_NOCST")
    a.I("s_waitcnt lgkmcnt(0)")
    for i in range(len(CST)):
        a.I("v_writelane_b32 v100, %s, %d" % (sr(CPAIRS[i]), i))
    a.I("s_lshl_b32 %s, %s, 2" % (sr(sT0), sr(sID)))
    a.I("s_add_u32 %s, %s, %s" % (sr(sT0), sr(sT0), sr(sWAVE)))
    a.I("s_lshl_b32 %s, %s, 8" % (sr(sT0), sr(sT0)))
    a.I("s_add_u32 %s, %s, 0x%x" % (sr(sT0), sr(sT0), WS_STAMP + 0x200000))
    a.I("v_lshlrev_b32 v103, 2, v1")
    a.I("buffer_store_dword v100, v103, %s, %s offen" % (sr(SWS, 4), sr(sT0)))
    a.L("L_NOCST")
if OPT["stamps"]:
    a.I("s_memrealtime %s" % sr(sSTAMP + 2 * 9, 2))
    a.I("s_waitcnt lgkmcnt(0) vmcnt(0)")
    a.I("s_lshl_b32 %s, %s, 3" % (sr(sT0), sr(sID)))
    a.I("s_add_u32 %s, %s, %s" % (sr(sT0), sr(sT0), sr(sWAVE)))
    a.I("s_lshl_b32 %s, %s, 6" % (sr(sT0), sr(sT0)))
    a.I("s_add_u32 %s, %s, 0x%x" % (sr(sT0), sr(sT0), WS_STAMP))
    a.I("v_mov_b32 v5, 0")
    a.I("s_mov_b64 exec, 1")
    for i in range(10):
        a.I("v_mov_b32 v4, %s" % sr(sSTAMP + 2 * i))
        a.I("buffer_store_dword v4, v5, %s, %s offen offset:%d" % (sr(SWS, 4), sr(sT0), i * 4))
    a.I("s_waitcnt vmcnt(0)")
a.L("L_END")
a.I("s_endpgm")
final_lines = a.lines

tail = """
.section .rodata,"a"
.p2align 6
.amdhsa_kernel %s
  .amdhsa_next_free_vgpr 256
  .amdhsa_next_free_sgpr 96
  .amdhsa_accum_offset 256
  .amdhsa_group_segment_fixed_size 0
  .amdhsa_kernarg_size 64
  .amdhsa_user_sgpr_count 2
  .amdhsa_user_sgpr_kernarg_segment_ptr 1
  .amdhsa_system_sgpr_workgroup_id_x 1
.end_amdhsa_kernel
""" % KNAME

probs = []
for nm, ls in (("compute", entry_lines + compute_lines + final_lines), ("loader", entry_lines + loader_lines + final_lines)):
    probs += check_hazards(ls, nm)
    probs += check_hazards([l for l in ls if ";slow" not in l], nm + "-fast")
for p in sorted(set(probs)): print("HAZARD", p)
out = "\n".join(hdr + entry_lines + loader_lines + compute_lines + final_lines) + "\n" + tail
if OPT["scx"] == 0: out = out.replace(" sc0 sc1", " sc1")
open(sys.argv[1], "w").write(out)
open(sys.argv[1] + ".bar", "w").write(",".join(n for n, _ in units))
open(sys.argv[1] + ".cst", "w").write(",".join(CST))
print("units", [(n, x) for n, x in units], "lines", out.count("\n"))
```
